```python
import torch

def _softmax(x, axis=-1):
    return torch.softmax(x, dim=axis)
def _gelu(x):
    return torch.nn.functional.gelu(x, approximate="tanh")
def _silu(x):
    return torch.nn.functional.silu(x)
def _sigmoid(x):
    return torch.sigmoid(x)
def _layernorm(x, axis=-1, eps=1e-5):
    m = x.mean(dim=axis, keepdim=True)
    v = x.var(dim=axis, keepdim=True, unbiased=False)
    return (x - m) / torch.sqrt(v + eps)
def _scatter_add(tgt, idx, src, axis=0):
    return tgt.clone().index_add_(axis, idx, src)
def _segment_sum(src, seg, n):
    out = torch.zeros((n,) + src.shape[1:], dtype=src.dtype)
    return out.index_add_(0, seg, src)
def _pad(x, pw):
    flat = tuple(v for pair in reversed(pw) for v in pair)
    return torch.nn.functional.pad(x, flat)

kernel_name = 'standalone__weight_only_int_quip__prompt'

def setup_inputs():

    _w = (lambda a: (lambda t: t.to(torch.bfloat16) if t.is_floating_point() else t)(torch.as_tensor(a)))
    B, S, D, F = 1, 2048, 1024, 3584
    G = 32 if 32 > 0 else D
    D = (D // G) * G
    ng = D // G
    bits = 8 if 8 > 0 else 4
    qmax = 1 << bits
    qw = torch.randint(0, qmax, (D, F)).to(torch.int32)
    U, _ = (lambda *_a, **_k: torch.linalg.qr(*[torch.as_tensor(_x).float() for _x in _a], **_k))((lambda *s: torch.randn(*s, dtype=torch.bfloat16) * 0.05)(D, D))
    V, _ = (lambda *_a, **_k: torch.linalg.qr(*[torch.as_tensor(_x).float() for _x in _a], **_k))((lambda *s: torch.randn(*s, dtype=torch.bfloat16) * 0.05)(F, F))
    return {
        "x": _w((lambda *s: torch.randn(*s, dtype=torch.bfloat16) * 0.05)(B, S, D)),
        "qw": _w(qw),
        "scales": _w(torch.abs((lambda *s: torch.randn(*s, dtype=torch.bfloat16) * 0.05)(ng, F)) * 0.02 + 0.005),
        "zeros": _w(torch.full((ng, F), qmax / 2.0, dtype=float)),
        "U": _w(U.to(float)),
        "V": _w(V.to(float)),
    }

def reference(x, qw, scales, zeros, U, V):
    B, S, D = x.shape
    ng, F = scales.shape
    G = D // ng
    s = (lambda x, n, axis: torch.repeat_interleave(x, n, dim=axis))(scales, G, axis=0)
    z = (lambda x, n, axis: torch.repeat_interleave(x, n, dim=axis))(zeros, G, axis=0)
    wq = ((lambda x, dt: x.to(dt))(qw, x.dtype) - z) * s
    xr = torch.einsum("bsd,de->bse", x, U)
    h  = torch.einsum("bse,ef->bsf", xr, wq)
    y  = torch.einsum("bsf,fg->bsg", h, V)
    return y
```

```python
import sys

S, D, F = 2048, 1024, 3584
WS_WQ = 0
WS_WV = 8 << 20
WS_XR = 16 << 20
SZ_WQ = D * F * 2
SZ_XR = S * D * 2

class Asm:
    def __init__(self):
        self.L = []
    def __call__(self, s):
        for line in s.split("\n"):
            line = line.strip()
            if line:
                self.L.append(("    " if not line.endswith(":") and not line.startswith(".") else "") + line)
    def text(self):
        return "\n".join(self.L) + "\n"

def vr(b, n=1):
    return f"v{b}" if n == 1 else f"v[{b}:{b+n-1}]"

def srd(e, d, base, add, nbytes):
    if add:
        e(f"s_add_u32 s{d}, s{base}, {add}\ns_addc_u32 s{d+1}, s{base+1}, 0")
    else:
        e(f"s_mov_b32 s{d}, s{base}\ns_mov_b32 s{d+1}, s{base+1}")
    e(f"s_mov_b32 s{d+2}, {nbytes}\ns_mov_b32 s{d+3}, 0x20000")

def kernel_head(e, name):
    e(f".globl {name}\n.p2align 8\n.type {name},@function\n{name}:")

def kernel_desc(e, name, vgpr=256, sgpr=96):
    e(f'.section .rodata,"a"\n.p2align 6\n.amdhsa_kernel {name}')
    e(f".amdhsa_next_free_vgpr {vgpr}\n.amdhsa_next_free_sgpr {sgpr}\n.amdhsa_accum_offset {(vgpr+3)//4*4}")
    e(".amdhsa_group_segment_fixed_size 0\n.amdhsa_kernarg_size 72\n.amdhsa_user_sgpr_count 2")
    e(".amdhsa_user_sgpr_kernarg_segment_ptr 1\n.amdhsa_system_sgpr_workgroup_id_x 1")
    e(".amdhsa_float_denorm_mode_32 3")
    e(".end_amdhsa_kernel")

def chunk_of_pos(e, spos, scls, sdst, st1, st2, nch, lead, sxor=None):
    e(f"s_sub_u32 {st1}, {spos}, {scls}")
    e(f"s_and_b32 {st1}, {st1}, 3")
    e(f"s_cmp_le_u32 {st1}, {lead}")
    e(f"s_cselect_b32 {st2}, -1, 0")
    e(f"s_cmp_eq_u32 {st1}, 0")
    e(f"s_cselect_b32 {st2}, {lead}, {st2}")
    e(f"s_cmp_lt_u32 {spos}, {scls}")
    e(f"s_cselect_b32 {st2}, 0, {st2}")
    e(f"s_sub_u32 {st1}, {spos}, {st1}")
    e(f"s_cmp_ge_i32 {st1}, {nch-3}")
    e(f"s_cselect_b32 {st2}, 0, {st2}")
    e(f"s_add_u32 {sdst}, {spos}, {st2}")
    if sxor:
        e(f"s_xor_b32 {sdst}, {sdst}, {sxor}")

def interleave(e, mfmas, others, per=2, start=0):
    o = list(others)
    for n, m in enumerate(mfmas):
        e(m)
        if n >= start:
            for _ in range(per):
                if o:
                    e(o.pop(0))
    for x in o:
        e(x)

R128 = 3
STG = 32768
def gemm128(e, tag, kind, nst, trow, epilogue, lead=2):
    R = R128
    e(f"s_cmp_ge_u32 s25, 4")
    e(f"s_cbranch_scc1 L_{tag}_prod")
    ACC, F0, F1 = 0 + 32, 96, 128
    VT, VO = 8, 12
    BT, BO = 16, 20
    e("s_lshr_b32 s30, s25, 1")
    e("s_and_b32 s31, s25, 1")
    e("v_lshrrev_b32 v3, 4, v2")
    e("v_and_b32 v4, 15, v2")
    e("v_lshrrev_b32 v5, 2, v4")
    e("v_and_b32 v6, 3, v4")
    e("v_lshlrev_b32 v7, 3, v3\nv_add_u32 v7, v7, v5\nv_lshlrev_b32 v7, 8, v7")
    e("v_lshlrev_b32 v6, 3, v6\nv_add_u32 v7, v7, v6")
    e("v_and_b32 v6, 1, v3\nv_lshlrev_b32 v6, 2, v6\nv_or_b32 v6, v6, v5")
    e("s_lshl_b32 s32, s31, 2")
    e("v_xor_b32 v6, s32, v6")
    for q in range(4):
        e(f"v_xor_b32 v5, {q}, v6\nv_lshlrev_b32 v5, 5, v5\nv_add_u32 v{BT+q}, v7, v5")
    if kind == "F":
        e("s_lshl_b32 s32, s30, 12\ns_add_u32 s32, s32, 16384")
        e(f"v_lshlrev_b32 v5, 4, v2\nv_add_u32 v{BO}, s32, v5")
        nO = 1
    else:
        e("s_lshl_b32 s32, s30, 13\ns_add_u32 s32, s32, 16384")
        e("v_lshrrev_b32 v5, 1, v4\nv_xor_b32 v5, v5, v3\nv_lshlrev_b32 v5, 4, v5")
        e("v_lshlrev_b32 v6, 7, v4\nv_add_u32 v5, v5, v6")
        e(f"v_add_u32 v{BO}, s32, v5")
        e(f"v_xor_b32 v{BO+1}, 64, v{BO}")
        nO = 2
    for q in range(4):
        e(f"v_mov_b32 v{VT+q}, v{BT+q}")
    for q in range(nO):
        e(f"v_mov_b32 v{VO+q}, v{BO+q}")
    for n in range(64):
        e(f"v_mov_b32 v{ACC+n}, 0")
    for n in range(32):
        e(f"v_mov_b32 v{F1+n}, 0")
    e("s_mov_b32 s33, 0")
    e(f"s_mov_b32 s34, {nst}")
    def reads(Fb, ks):
        out = []
        for a in range(4):
            if kind == "F":
                o = f"ds_read_b128 {vr(Fb+4*a,4)}, v{VO} offset:{ks*8192 + a*1024}"
            else:
                o = f"ds_read_b128 {vr(Fb+4*a,4)}, v{VO+ks} offset:{a*2048}"
            out.append(o)
            for t in range(2):
                out.append(f"ds_read_b64_tr_b16 {vr(Fb+16+4*a+2*t,2)}, v{VT+a} offset:{ks*8192 + t*1024}")
        return out
    def mfmas(Fb):
        out = []
        for a in range(4):
            for b in range(4):
                o, t = vr(Fb+4*a, 4), vr(Fb+16+4*b, 4)
                c = vr(ACC + 16*a + 4*b, 4)
                if kind == "F":
                    out.append(f"v_mfma_f32_16x16x32_bf16 {c}, {o}, {t}, {c}")
                else:
                    out.append(f"v_mfma_f32_16x16x32_bf16 {c}, {t}, {o}, {c}")
        return out
    e(f"L_{tag}_cl:")
    e("s_barrier")
    interleave(e, mfmas(F1), reads(F0, 0))
    e("s_waitcnt lgkmcnt(0)")
    upd = [f"s_add_u32 s33, s33, {STG}", f"s_cmp_ge_u32 s33, {R*STG}", "s_cselect_b32 s33, 0, s33",
           "s_sub_u32 s34, s34, 1"]
    upd += [f"v_add_u32 v{VT+q}, s33, v{BT+q}" for q in range(4)]
    upd += [f"v_add_u32 v{VO+q}, s33, v{BO+q}" for q in range(nO)]
    interleave(e, mfmas(F0), reads(F1, 1) + upd)
    e("s_waitcnt lgkmcnt(0)")
    e("s_cmp_lg_u32 s34, 0")
    e(f"s_cbranch_scc1 L_{tag}_cl")
    for m in mfmas(F1):
        e(m)
    e("s_nop 15")
    epilogue(e, ACC, F0)
    e("s_endpgm")
    e(f"L_{tag}_prod:")
    e("s_sub_u32 s30, s25, 4")
    e("v_lshrrev_b32 v3, 4, v2")
    e("v_and_b32 v4, 15, v2")
    e("s_and_b32 s31, s30, 2\ns_lshl_b32 s31, s31, 1")
    e("v_or_b32 v5, s31, v3\nv_lshlrev_b32 v5, 1, v5\nv_xor_b32 v5, v5, v4\nv_lshlrev_b32 v5, 4, v5")
    e("s_lshl_b32 s31, s30, 2")
    e(f"v_add_u32 v6, s31, v3\nv_mul_u32_u24 v6, {trow}, v6")
    e("v_add_u32 v5, v5, v6\nv_add_u32 v8, s27, v5")
    if kind == "F":
        e("s_lshl_b32 s31, s30, 12")
        e("v_lshlrev_b32 v5, 4, v2\nv_add_u32 v9, s31, v5")
    else:
        e("s_and_b32 s31, s30, 1\ns_lshl_b32 s31, s31, 2")
        e("v_or_b32 v5, s31, v3\nv_and_b32 v6, 7, v2\nv_xor_b32 v5, v5, v6\nv_lshlrev_b32 v5, 4, v5")
        e("s_lshl_b32 s31, s30, 3")
        e("v_lshrrev_b32 v6, 3, v2\nv_add_u32 v6, s31, v6\nv_lshlrev_b32 v6, 11, v6")
        e("v_add_u32 v9, v5, v6")
    e("s_lshl_b32 s35, s30, 10")
    e("s_lshl_b32 s36, s30, 12")
    e("s_mov_b32 s33, 0")
    e("s_mov_b32 s34, 0")
    def prep():
        chunk_of_pos(e, "s34", "s24", "s37", "s38", "s39", nst, lead, "s26")
        e(f"s_mul_i32 s40, s37, {64*trow}")
        if kind == "F":
            e("s_lshl_b32 s41, s37, 14\ns_add_u32 s41, s41, s28")
        else:
            e("s_lshl_b32 s41, s37, 7\ns_add_u32 s41, s41, s28")
        e("s_add_u32 s42, s33, s35")
    def issue():
        for i in range(4):
            e(f"s_add_u32 m0, s42, {i*4096}")
            if i: e(f"s_add_u32 s40, s40, {16*trow}")
            else: e("s_nop 0")
            e("buffer_load_dwordx4 v8, s[8:11], s40 offen lds")
        if kind == "F":
            e("s_add_u32 s43, s33, s36\ns_add_u32 m0, s43, 16384\ns_nop 0")
            for i in range(4):
                e(f"buffer_load_dwordx4 v9, s[12:15], s41 offen offset:{i*1024} lds")
        else:
            for i in range(4):
                e(f"s_add_u32 m0, s42, {16384 + i*4096}")
                if i: e(f"s_add_u32 s41, s41, {32*2048}")
                else: e("s_nop 0")
                e("buffer_load_dwordx4 v9, s[12:15], s41 offen lds")
        e(f"s_add_u32 s33, s33, {STG}\ns_cmp_ge_u32 s33, {R*STG}\ns_cselect_b32 s33, 0, s33")
        e("s_add_u32 s34, s34, 1")
    for _ in range(R-1):
        prep(); issue()
    e(f"L_{tag}_pl:")
    prep()
    e(f"s_waitcnt vmcnt({8*(R-2)})")
    e("s_barrier")
    issue()
    e(f"s_cmp_lt_u32 s34, {nst}")
    e(f"s_cbranch_scc1 L_{tag}_pl")
    for j in range(R-1):
        e(f"s_waitcnt vmcnt({8*(R-2-j)})")
        e("s_barrier")
    e("s_endpgm")

def pack_pair(e, dst, c0, c1):
    e(f"v_cvt_pk_bf16_f32 v{dst}, v{c0}, v{c0+1}")
    e(f"v_cvt_pk_bf16_f32 v{dst+1}, v{c0+2}, v{c0+3}")
    e(f"v_cvt_pk_bf16_f32 v{dst+2}, v{c1}, v{c1+1}")
    e(f"v_cvt_pk_bf16_f32 v{dst+3}, v{c1+2}, v{c1+3}")

HEAD_INSTR = 4
def k0(e):
    kernel_head(e, "k0_kernel")
    e("s_load_dwordx4 s[44:47], s[0:1], 0")
    e("s_load_dwordx4 s[48:51], s[0:1], 16")
    e("s_load_dwordx4 s[52:55], s[0:1], 32")
    e("s_load_dwordx2 s[56:57], s[0:1], 64")
    e("s_cmp_ge_u32 s2, 256\ns_cbranch_scc1 L_k0_end")
    e("s_and_b32 s20, s2, 7\ns_lshr_b32 s21, s2, 3")
    e("v_lshrrev_b32 v1, 6, v0\nv_and_b32 v2, 63, v0\ns_nop 0\nv_readfirstlane_b32 s25, v1")
    e("s_waitcnt lgkmcnt(0)")
    e("s_cmp_ge_u32 s21, 16\ns_cbranch_scc1 L_k0_dq")
    e("s_and_b32 s22, s20, 1\ns_lshl_b32 s22, s22, 2\ns_and_b32 s23, s21, 3\ns_add_u32 s22, s22, s23")
    e("s_lshr_b32 s23, s20, 1\ns_lshl_b32 s23, s23, 2\ns_lshr_b32 s24, s21, 2\ns_add_u32 s23, s23, s24")
    e("s_add_u32 s24, s22, s23\ns_and_b32 s24, s24, 3")
    e("s_mov_b32 s26, 0")
    srd(e, 8, 52, 0, D*D*2)
    srd(e, 12, 44, 0, S*D*2)
    srd(e, 16, 56, WS_XR, SZ_XR)
    e("s_lshl_b32 s27, s22, 8")
    e("s_lshl_b32 s28, s23, 18")
    def epi(e, ACC, T):
        e("s_lshl_b32 s40, s23, 3\ns_lshl_b32 s41, s30, 2\ns_add_u32 s40, s40, s41")
        e("s_lshr_b32 s41, s40, 4\ns_lshl_b32 s41, s41, 19")
        e("s_and_b32 s40, s40, 15\ns_lshl_b32 s40, s40, 10\ns_add_u32 s40, s40, s41")
        e("s_lshl_b32 s41, s22, 2\ns_lshl_b32 s42, s31, 1\ns_add_u32 s41, s41, s42\ns_lshl_b32 s41, s41, 14")
        e("s_add_u32 s40, s40, s41")
        e("s_add_u32 s41, s40, 16384")
        e("v_lshlrev_b32 v3, 4, v2")
        n = 0
        for u in range(2):
            for a in range(4):
                d = T + 4*n; n += 1
                pack_pair(e, d, ACC + 16*a + 4*(2*u), ACC + 16*a + 4*(2*u+1))
                e(f"buffer_store_dwordx4 {vr(d,4)}, v3, s[16:19], s{40+u} offen offset:{a*1024}")
    gemm128(e, "gb", "R", 16, 2048, epi)
    e("L_k0_dq:")
    e("s_sub_u32 s22, s21, 16\ns_lshl_b32 s22, s22, 3\ns_add_u32 s22, s22, s20")
    e("s_cmp_eq_u32 s25, 7\ns_cbranch_scc1 L_k0_pf")
    e("s_lshr_b32 s23, s22, 2\ns_and_b32 s24, s22, 3")
    e("s_mul_i32 s24, s24, 28\ns_lshl_b32 s26, s25, 2\ns_add_u32 s24, s24, s26")
    srd(e, 8, 46, 0, D*F*4)
    srd(e, 12, 48, 0, 32*F*2)
    srd(e, 16, 50, 0, 32*F*2)
    srd(e, 60, 56, WS_WQ, SZ_WQ)
    e("v_lshrrev_b32 v3, 4, v2\nv_and_b32 v4, 15, v2")
    e(f"v_mul_u32_u24 v5, {F*4}, v4\nv_lshlrev_b32 v6, 5, v3\nv_add_u32 v5, v5, v6")
    e(f"v_add_u32 v6, {16*F*4}, v5")
    e("v_lshlrev_b32 v7, 4, v3")
    e("v_lshlrev_b32 v1, 4, v2")
    e(f"s_mul_i32 s27, s23, {32*F*4}\ns_lshl_b32 s28, s24, 7\ns_add_u32 s27, s27, s28")
    e(f"s_mul_i32 s28, s23, {F*2}\ns_lshl_b32 s29, s24, 6\ns_add_u32 s28, s28, s29")
    e("s_lshr_b32 s29, s23, 2\ns_mul_i32 s29, s29, 112\ns_add_u32 s29, s29, s24\ns_lshl_b32 s29, s29, 13")
    e("s_and_b32 s30, s23, 3\ns_lshl_b32 s30, s30, 11\ns_add_u32 s29, s29, s30")
    Q, SC, ZR, T = 16, 80, 96, 112
    for j in range(4):
        e(f"buffer_load_dwordx4 {vr(SC+4*j,4)}, v7, s[12:15], s28 offen offset:{j*64}")
        e(f"buffer_load_dwordx4 {vr(ZR+4*j,4)}, v7, s[16:19], s28 offen offset:{j*64}")
        for h in range(2):
            for c in range(2):
                e(f"buffer_load_dwordx4 {vr(Q+16*j+8*h+4*c,4)}, v{5+h}, s[8:11], s27 offen offset:{j*128+c*16}")
    for j in range(4):
        e(f"s_waitcnt vmcnt({6*(3-j) + 2*j})")
        for n in range(4):
            e(f"v_lshlrev_b32 v{T+2*n}, 16, v{SC+4*j+n}\nv_and_b32 v{T+2*n+1}, 0xffff0000, v{SC+4*j+n}")
            e(f"v_lshlrev_b32 v{T+8+2*n}, 16, v{ZR+4*j+n}\nv_and_b32 v{T+8+2*n+1}, 0xffff0000, v{ZR+4*j+n}")
        for h in range(2):
            q = Q + 16*j + 8*h
            for n in range(8): e(f"v_cvt_f32_i32 v{q+n}, v{q+n}")
            for n in range(8): e(f"v_cvt_pk_bf16_f32 v{q+n}, 0, v{q+n}")
            for n in range(8): e(f"v_sub_f32 v{q+n}, v{q+n}, v{T+8+n}")
            for n in range(8): e(f"v_cvt_pk_bf16_f32 v{q+n}, 0, v{q+n}")
            for n in range(8): e(f"v_mul_f32 v{q+n}, v{q+n}, v{T+n}")
            for n in range(4): e(f"v_cvt_pk_bf16_f32 v{q+n}, v{q+2*n}, v{q+2*n+1}")
            e(f"buffer_store_dwordx4 {vr(q,4)}, v1, s[60:63], s29 offen offset:{h*1024}")
        e("s_add_u32 s29, s29, 8192")
    e("s_endpgm")
    e("L_k0_pf:")
    srd(e, 8, 54, 0, F*F*2)
    e("v_lshlrev_b32 v3, 7, v2")
    e("s_lshl_b32 s27, s22, 13")
    for n in range(HEAD_INSTR):
        e(f"buffer_load_dword v{8+n}, v3, s[8:11], s27 offen")
        e(f"s_add_u32 s27, s27, {128*8192}")
    e("s_waitcnt vmcnt(0)")
    e("L_k0_end:")
    e("s_endpgm")

def k1(e):
    kernel_head(e, "k1_kernel")
    e("s_load_dwordx2 s[54:55], s[0:1], 40")
    e("s_load_dwordx2 s[56:57], s[0:1], 64")
    e("s_cmp_ge_u32 s2, 256\ns_cbranch_scc1 L_k1_end")
    e("s_and_b32 s20, s2, 7\ns_lshr_b32 s21, s2, 3")
    e("v_lshrrev_b32 v1, 6, v0\nv_and_b32 v2, 63, v0\ns_nop 0\nv_readfirstlane_b32 s25, v1")
    e("s_waitcnt lgkmcnt(0)")
    srd(e, 8, 54, 0, F*F*2)
    e("s_cmp_ge_u32 s21, 28\ns_cbranch_scc1 L_k1_pf")
    e("s_and_b32 s22, s20, 1\ns_lshl_b32 s22, s22, 2\ns_and_b32 s23, s21, 3\ns_add_u32 s22, s22, s23")
    e("s_lshr_b32 s23, s20, 1\ns_mul_i32 s23, s23, 7\ns_lshr_b32 s24, s21, 2\ns_add_u32 s23, s23, s24")
    e("s_add_u32 s24, s22, s23\ns_and_b32 s24, s24, 3")
    e("s_and_b32 s26, s20, 1")
    srd(e, 12, 56, WS_WQ, SZ_WQ)
    srd(e, 16, 56, WS_WV, SZ_WQ)
    e("s_lshl_b32 s27, s23, 8")
    e(f"s_mul_i32 s28, s22, {112*8192}")
    def epi(e, ACC, T):
        e("s_lshl_b32 s40, s22, 2\ns_lshl_b32 s41, s30, 1\ns_add_u32 s40, s40, s41")
        e("s_mul_i32 s40, s40, 7168")
        e("s_lshl_b32 s41, s23, 3\ns_lshl_b32 s42, s31, 2\ns_add_u32 s41, s41, s42")
        e("v_lshlrev_b32 v3, 4, v2")
        e("v_add_u32 v4, 7168, v3")
        n = 0
        for b in range(4):
            e(f"s_add_u32 s42, s41, {b}")
            e("s_mul_i32 s43, s42, 9363\ns_lshr_b32 s43, s43, 16")
            e(f"s_mul_i32 s44, s43, {32*7*1024 - 7*1024}\ns_lshl_b32 s42, s42, 10\ns_add_u32 s42, s42, s44")
            e(f"s_add_u32 s{48+b}, s42, s40")
            for u in range(2):
                d = T + 4*n; n += 1
                pack_pair(e, d, ACC + 16*(2*u) + 4*b, ACC + 16*(2*u+1) + 4*b)
                e(f"buffer_store_dwordx4 {vr(d,4)}, v{3+u}, s[16:19], s{48+b} offen")
    gemm128(e, "ga", "F", 56, F*2, epi)
    e("L_k1_pf:")
    e("v_lshlrev_b32 v3, 7, v2")
    e("s_sub_u32 s26, s21, 28\ns_lshl_b32 s26, s26, 3\ns_add_u32 s26, s26, s20")
    e("s_cmp_ge_u32 s25, 4\ns_cbranch_scc1 L_k1_end")
    e("s_lshl_b32 s26, s26, 2\ns_add_u32 s26, s26, s25")
    e(f"s_lshl_b32 s27, s26, 13\ns_add_u32 s27, s27, {HEAD_INSTR*128*8192}")
    e("L_k1_pfl:")
    e("s_waitcnt vmcnt(3)")
    e("buffer_load_dword v8, v3, s[8:11], s27 offen")
    e(f"s_add_u32 s27, s27, {128*8192}")
    e(f"s_cmp_lt_u32 s27, {F*F*2}")
    e("s_cbranch_scc1 L_k1_pfl")
    e("s_waitcnt vmcnt(0)")
    e("L_k1_end:")
    e("s_endpgm")

R2 = 3
STG2 = 46 * 1024
def k2(e, lead=2):
    R, nst = R2, 16
    kernel_head(e, "k2_kernel")
    e("s_load_dwordx2 s[54:55], s[0:1], 48")
    e("s_load_dwordx2 s[56:57], s[0:1], 64")
    e("s_cmp_ge_u32 s2, 256\ns_cbranch_scc1 L_k2_end")
    e("s_and_b32 s20, s2, 7\ns_lshr_b32 s21, s2, 3")
    e("v_lshrrev_b32 v1, 6, v0\nv_and_b32 v2, 63, v0\ns_nop 0\nv_readfirstlane_b32 s25, v1")
    e("s_and_b32 s22, s20, 1\ns_lshl_b32 s22, s22, 2\ns_and_b32 s23, s21, 3\ns_add_u32 s22, s22, s23")
    e("s_lshr_b32 s23, s20, 1\ns_lshl_b32 s23, s23, 3\ns_lshr_b32 s24, s21, 2\ns_add_u32 s23, s23, s24")
    e("s_add_u32 s24, s22, s23\ns_and_b32 s24, s24, 3")
    e("s_waitcnt lgkmcnt(0)")
    srd(e, 8, 56, WS_XR, SZ_XR)
    srd(e, 12, 56, WS_WV, SZ_WQ)
    srd(e, 16, 54, 0, S*F*2)
    e("s_cmp_ge_u32 s25, 4\ns_cbranch_scc1 L_k2_prod")
    ACC, F0, F1 = 16, 128, 172
    e("v_lshlrev_b32 v4, 4, v2")
    e("s_lshl_b32 s30, s25, 12")
    e("v_add_u32 v5, s30, v4")
    e("v_add_u32 v4, 32768, v4")
    e("v_mov_b32 v8, v4\nv_mov_b32 v9, v5")
    for n in range(112): e(f"v_mov_b32 v{ACC+n}, 0")
    for n in range(44): e(f"v_mov_b32 v{F1+n}, 0")
    e(f"s_mov_b32 s33, 0\ns_mov_b32 s34, {nst}")
    def reads(Fb, ks):
        out = []
        xr = [f"ds_read_b128 {vr(Fb+28+4*b,4)}, v9 offset:{ks*16384 + b*1024}" for b in range(4)]
        wv = [f"ds_read_b128 {vr(Fb+4*a,4)}, v8 offset:{ks*7168 + a*1024}" for a in range(7)]
        return xr + wv
    def mfmas(Fb):
        return [f"v_mfma_f32_16x16x32_bf16 {vr(ACC+16*a+4*b,4)}, {vr(Fb+4*a,4)}, {vr(Fb+28+4*b,4)}, {vr(ACC+16*a+4*b,4)}"
                for a in range(7) for b in range(4)]
    e("L_k2_cl:")
    e("s_barrier")
    interleave(e, mfmas(F1), reads(F0, 0), per=1)
    e("s_waitcnt lgkmcnt(0)")
    upd = [f"s_add_u32 s33, s33, {STG2}", f"s_cmp_ge_u32 s33, {R*STG2}", "s_cselect_b32 s33, 0, s33",
           "s_sub_u32 s34, s34, 1", "v_add_u32 v8, s33, v4", "v_add_u32 v9, s33, v5"]
    interleave(e, mfmas(F0), reads(F1, 1) + upd, per=1)
    e("s_waitcnt lgkmcnt(0)")
    e("s_cmp_lg_u32 s34, 0\ns_cbranch_scc1 L_k2_cl")
    for m in mfmas(F1): e(m)
    e("v_lshrrev_b32 v3, 4, v2\nv_and_b32 v4, 15, v2")
    e(f"v_mul_u32_u24 v5, {F*2}, v4")
    e("v_and_b32 v6, 1, v3\nv_lshlrev_b32 v6, 5, v6\nv_lshrrev_b32 v7, 1, v3\nv_lshlrev_b32 v7, 4, v7")
    e("v_add3_u32 v6, v5, v6, v7")
    e("v_lshlrev_b32 v7, 3, v3\nv_add_u32 v7, v5, v7")
    e(f"s_lshl_b32 s40, s22, 8\ns_lshl_b32 s41, s25, 6\ns_add_u32 s40, s40, s41\ns_mul_i32 s40, s40, {F*2}")
    e("s_mul_i32 s41, s23, 224\ns_add_u32 s40, s40, s41")
    e("s_nop 7")
    n = 0
    for b in range(4):
        for u in range(3):
            d = F0 + 4*(n % 16); n += 1
            pack_pair(e, d, ACC + 16*(2*u) + 4*b, ACC + 16*(2*u+1) + 4*b)
            e("s_nop 1")
            e(f"v_permlane16_swap_b32 v{d}, v{d+2}")
            e(f"v_permlane16_swap_b32 v{d+1}, v{d+3}")
            e(f"buffer_store_dwordx4 {vr(d,4)}, v6, s[16:19], s40 offen offset:{u*64}")
        d = F0 + 4*(n % 16); n += 1
        c = ACC + 16*6 + 4*b
        e(f"v_cvt_pk_bf16_f32 v{d}, v{c}, v{c+1}\nv_cvt_pk_bf16_f32 v{d+1}, v{c+2}, v{c+3}")
        e(f"buffer_store_dwordx2 {vr(d,2)}, v7, s[16:19], s40 offen offset:192")
        e(f"s_add_u32 s40, s40, {16*F*2}")
    e("s_endpgm")
    e("L_k2_prod:")
    e("s_sub_u32 s30, s25, 4")
    e("v_lshlrev_b32 v3, 4, v2")
    e("s_lshl_b32 s35, s30, 13\nv_add_u32 v8, s35, v3\nv_add_u32 v9, 4096, v8")
    e("s_lshl_b32 s36, s30, 10\nv_add_u32 v10, s36, v3")
    e("s_add_u32 s36, s36, 32768")
    e("s_lshl_b32 s28, s22, 19")
    e(f"s_mul_i32 s29, s23, {32*7168}")
    e("s_mov_b32 s33, 0\ns_mov_b32 s34, 0")
    def body(nwv, tag):
        nl = 8 + nwv
        def prep():
            chunk_of_pos(e, "s34", "s24", "s37", "s38", "s39", nst, lead)
            e("s_lshl_b32 s40, s37, 15\ns_add_u32 s40, s40, s28")
            e(f"s_mul_i32 s41, s37, 14336\ns_add_u32 s41, s41, s29")
            e("s_add_u32 s42, s33, s35\ns_add_u32 s43, s33, s36")
        def issue():
            for i in range(nwv):
                e(f"s_add_u32 m0, s43, {i*4096}")
                if i: e("s_add_u32 s41, s41, 4096")
                else: e("s_nop 0")
                e("buffer_load_dwordx4 v10, s[12:15], s41 offen lds")
            for h in range(2):
                e(f"s_add_u32 m0, s42, {h*4096}\ns_nop 0")
                for i in range(4):
                    e(f"buffer_load_dwordx4 v{8+h}, s[8:11], s40 offen offset:{i*1024} lds")
            e(f"s_add_u32 s33, s33, {STG2}\ns_cmp_ge_u32 s33, {R*STG2}\ns_cselect_b32 s33, 0, s33")
            e("s_add_u32 s34, s34, 1")
        for _ in range(R-1):
            prep(); issue()
        e(f"L_k2_pl{tag}:")
        prep()
        e(f"s_waitcnt vmcnt({nl*(R-2)})")
        e("s_barrier")
        issue()
        e(f"s_cmp_lt_u32 s34, {nst}\ns_cbranch_scc1 L_k2_pl{tag}")
        for j in range(R-1):
            e(f"s_waitcnt vmcnt({nl*(R-2-j)})")
            e("s_barrier")
        e("s_endpgm")
    e("s_cmp_ge_u32 s30, 2\ns_cbranch_scc1 L_k2_prod3")
    body(4, "a")
    e("L_k2_prod3:")
    body(3, "b")
    e("L_k2_end:")
    e("s_endpgm")

HEADER = open("standalone__weight_only_int_quip__prompt.s.ref").read().split("; Override")[0]

def generate():
    e = Asm()
    out = HEADER
    out += f"; @launch kernel=k0_kernel grid=(256,1,1) block=(512,1,1) lds={R128*STG}\n"
    out += f"; @launch kernel=k1_kernel grid=(256,1,1) block=(512,1,1) lds={R128*STG}\n"
    out += f"; @launch kernel=k2_kernel grid=(256,1,1) block=(512,1,1) lds={R2*STG2}\n"
    e('.amdgcn_target "amdgcn-amd-amdhsa--gfx950"\n.text')
    k0(e); k1(e); k2(e)
    kernel_desc(e, "k0_kernel", 160); kernel_desc(e, "k1_kernel", 160); kernel_desc(e, "k2_kernel", 216)
    return out + e.text()

if __name__ == "__main__":
    path = sys.argv[1] if len(sys.argv) > 1 else "standalone__weight_only_int_quip__prompt.s"
    open(path, "w").write(generate())
    print("wrote", path)
```

```python
import sys

S, D, F = 2048, 1024, 3584
WS_WQ = 0
WS_WV = 8 << 20
WS_XR = 16 << 20
SZ_WQ = D * F * 2
SZ_XR = S * D * 2

class Asm:
    def __init__(self):
        self.L = []
    def __call__(self, s):
        for line in s.split("\n"):
            line = line.strip()
            if line:
                self.L.append(("    " if not line.endswith(":") and not line.startswith(".") else "") + line)
    def text(self):
        return "\n".join(self.L) + "\n"

def vr(b, n=1):
    return f"v{b}" if n == 1 else f"v[{b}:{b+n-1}]"

def srd(e, d, base, add, nbytes):
    if add:
        e(f"s_add_u32 s{d}, s{base}, {add}\ns_addc_u32 s{d+1}, s{base+1}, 0")
    else:
        e(f"s_mov_b32 s{d}, s{base}\ns_mov_b32 s{d+1}, s{base+1}")
    e(f"s_mov_b32 s{d+2}, {nbytes}\ns_mov_b32 s{d+3}, 0x20000")

STAMP = False
STAUX = ""
OUTAUX = ""
WS_ST = 64 << 20
def stamp(e, n):
    if STAMP:
        e(f"s_memrealtime s[{80+2*n}:{81+2*n}]")
        if n in (1, 2):
            e(f"s_memtime s[{90+2*n}:{91+2*n}]")
def stamp_flush(e, kid):
    if not STAMP:
        return
    stamp(e, 5)
    e("s_waitcnt lgkmcnt(0) vmcnt(0)")
    stamp(e, 4)
    e("s_waitcnt lgkmcnt(0)")
    srd(e, 76, 56, WS_ST, 1 << 20)
    e(f"s_add_u32 s75, s2, {kid*256}\ns_lshl_b32 s75, s75, 3\ns_add_u32 s75, s75, s25\ns_lshl_b32 s75, s75, 6")
    for n in range(16):
        e(f"v_mov_b32 v{8+n}, s{80+n}")
    e("v_mov_b32 v4, 0")
    e("s_mov_b64 exec, 1")
    for n in range(4):
        e(f"buffer_store_dwordx4 v[{8+4*n}:{11+4*n}], v4, s[76:79], s75 offen offset:{16*n}")
def kernel_head(e, name):
    e(f".globl {name}\n.p2align 8\n.type {name},@function\n{name}:")
    if STAMP:
        for n in range(1, 8): e(f"s_mov_b64 s[{80+2*n}:{81+2*n}], 0")
    stamp(e, 0)

def kernel_desc(e, name, vgpr=256, sgpr=96):
    e(f'.section .rodata,"a"\n.p2align 6\n.amdhsa_kernel {name}')
    e(f".amdhsa_next_free_vgpr {vgpr}\n.amdhsa_next_free_sgpr {sgpr}\n.amdhsa_accum_offset {(vgpr+3)//4*4}")
    e(".amdhsa_group_segment_fixed_size 0\n.amdhsa_kernarg_size 72\n.amdhsa_user_sgpr_count 2")
    e(".amdhsa_user_sgpr_kernarg_segment_ptr 1\n.amdhsa_system_sgpr_workgroup_id_x 1")
    e(".amdhsa_float_denorm_mode_32 3")
    e(".end_amdhsa_kernel")

def chunk_of_pos(e, spos, scls, sdst, st1, st2, nch, lead, sxor=None):
    e(f"s_sub_u32 {st1}, {spos}, {scls}")
    e(f"s_and_b32 {st1}, {st1}, 3")
    e(f"s_cmp_le_u32 {st1}, {lead}")
    e(f"s_cselect_b32 {st2}, -1, 0")
    e(f"s_cmp_eq_u32 {st1}, 0")
    e(f"s_cselect_b32 {st2}, {lead}, {st2}")
    e(f"s_cmp_lt_u32 {spos}, {scls}")
    e(f"s_cselect_b32 {st2}, 0, {st2}")
    e(f"s_sub_u32 {st1}, {spos}, {st1}")
    e(f"s_cmp_ge_i32 {st1}, {nch-3}")
    e(f"s_cselect_b32 {st2}, 0, {st2}")
    e(f"s_add_u32 {sdst}, {spos}, {st2}")
    if sxor:
        e(f"s_xor_b32 {sdst}, {sdst}, {sxor}")

def interleave(e, mfmas, others, per=2, start=0):
    o = list(others)
    for n, m in enumerate(mfmas):
        e(m)
        if n >= start:
            for _ in range(per):
                if o:
                    e(o.pop(0))
    for x in o:
        e(x)

R128 = 3
STG = 32768
def first_stamp(e, tag, sreg, val):
    if STAMP:
        e(f"s_cmp_eq_u32 {sreg}, {val}\ns_cbranch_scc0 L_{tag}_ns")
        stamp(e, 1)
        e(f"L_{tag}_ns:")

def gemm128(e, tag, kind, nst, trow, epilogue, kid, lead=2):
    R = R128
    e(f"s_cmp_ge_u32 s25, 4")
    e(f"s_cbranch_scc1 L_{tag}_prod")
    ACC, F0, F1 = 0 + 32, 96, 128
    VT, VO = 8, 12
    BT, BO = 16, 20
    e("s_lshr_b32 s30, s25, 1")
    e("s_and_b32 s31, s25, 1")
    e("v_lshrrev_b32 v3, 4, v2")
    e("v_and_b32 v4, 15, v2")
    e("v_lshrrev_b32 v5, 2, v4")
    e("v_and_b32 v6, 3, v4")
    e("v_lshlrev_b32 v7, 3, v3\nv_add_u32 v7, v7, v5\nv_lshlrev_b32 v7, 8, v7")
    e("v_lshlrev_b32 v6, 3, v6\nv_add_u32 v7, v7, v6")
    e("v_and_b32 v6, 1, v3\nv_lshlrev_b32 v6, 2, v6\nv_or_b32 v6, v6, v5")
    e("s_lshl_b32 s32, s31, 2")
    e("v_xor_b32 v6, s32, v6")
    for q in range(4):
        e(f"v_xor_b32 v5, {q}, v6\nv_lshlrev_b32 v5, 5, v5\nv_add_u32 v{BT+q}, v7, v5")
    if kind == "F":
        e("s_lshl_b32 s32, s30, 12\ns_add_u32 s32, s32, 16384")
        e(f"v_lshlrev_b32 v5, 4, v2\nv_add_u32 v{BO}, s32, v5")
        nO = 1
    else:
        e("s_lshl_b32 s32, s30, 13\ns_add_u32 s32, s32, 16384")
        e("v_lshrrev_b32 v5, 1, v4\nv_xor_b32 v5, v5, v3\nv_lshlrev_b32 v5, 4, v5")
        e("v_lshlrev_b32 v6, 7, v4\nv_add_u32 v5, v5, v6")
        e(f"v_add_u32 v{BO}, s32, v5")
        e(f"v_xor_b32 v{BO+1}, 64, v{BO}")
        nO = 2
    for q in range(4):
        e(f"v_mov_b32 v{VT+q}, v{BT+q}")
    for q in range(nO):
        e(f"v_mov_b32 v{VO+q}, v{BO+q}")
    for n in range(64):
        e(f"v_mov_b32 v{ACC+n}, 0")
    for n in range(32):
        e(f"v_mov_b32 v{F1+n}, 0")
    e("s_mov_b32 s33, 0")
    e(f"s_mov_b32 s34, {nst}")
    def reads(Fb, ks):
        out = []
        for a in range(4):
            if kind == "F":
                o = f"ds_read_b128 {vr(Fb+4*a,4)}, v{VO} offset:{ks*8192 + a*1024}"
            else:
                o = f"ds_read_b128 {vr(Fb+4*a,4)}, v{VO+ks} offset:{a*2048}"
            out.append(o)
            for t in range(2):
                out.append(f"ds_read_b64_tr_b16 {vr(Fb+16+4*a+2*t,2)}, v{VT+a} offset:{ks*8192 + t*1024}")
        return out
    def mfmas(Fb):
        out = []
        for a in range(4):
            for b in range(4):
                o, t = vr(Fb+4*a, 4), vr(Fb+16+4*b, 4)
                c = vr(ACC + 16*a + 4*b, 4)
                if kind == "F":
                    out.append(f"v_mfma_f32_16x16x32_bf16 {c}, {o}, {t}, {c}")
                else:
                    out.append(f"v_mfma_f32_16x16x32_bf16 {c}, {t}, {o}, {c}")
        return out
    e(f"L_{tag}_cl:")
    e("s_barrier")
    first_stamp(e, tag, "s34", nst)
    interleave(e, mfmas(F1), reads(F0, 0))
    e("s_waitcnt lgkmcnt(0)")
    upd = [f"s_add_u32 s33, s33, {STG}", f"s_cmp_ge_u32 s33, {R*STG}", "s_cselect_b32 s33, 0, s33",
           "s_sub_u32 s34, s34, 1"]
    upd += [f"v_add_u32 v{VT+q}, s33, v{BT+q}" for q in range(4)]
    upd += [f"v_add_u32 v{VO+q}, s33, v{BO+q}" for q in range(nO)]
    interleave(e, mfmas(F0), reads(F1, 1) + upd)
    e("s_waitcnt lgkmcnt(0)")
    e("s_cmp_lg_u32 s34, 0")
    e(f"s_cbranch_scc1 L_{tag}_cl")
    for m in mfmas(F1):
        e(m)
    stamp(e, 2)
    e("s_nop 15")
    epilogue(e, ACC, F0)
    stamp_flush(e, kid)
    e("s_endpgm")
    e(f"L_{tag}_prod:")
    e("s_sub_u32 s30, s25, 4")
    e("v_lshrrev_b32 v3, 4, v2")
    e("v_and_b32 v4, 15, v2")
    e("s_and_b32 s31, s30, 2\ns_lshl_b32 s31, s31, 1")
    e("v_or_b32 v5, s31, v3\nv_lshlrev_b32 v5, 1, v5\nv_xor_b32 v5, v5, v4\nv_lshlrev_b32 v5, 4, v5")
    e("s_lshl_b32 s31, s30, 2")
    e(f"v_add_u32 v6, s31, v3\nv_mul_u32_u24 v6, {trow}, v6")
    e("v_add_u32 v5, v5, v6\nv_add_u32 v8, s27, v5")
    if kind == "F":
        e("s_lshl_b32 s31, s30, 12")
        e("v_lshlrev_b32 v5, 4, v2\nv_add_u32 v9, s31, v5")
    else:
        e("s_and_b32 s31, s30, 1\ns_lshl_b32 s31, s31, 2")
        e("v_or_b32 v5, s31, v3\nv_and_b32 v6, 7, v2\nv_xor_b32 v5, v5, v6\nv_lshlrev_b32 v5, 4, v5")
        e("s_lshl_b32 s31, s30, 3")
        e("v_lshrrev_b32 v6, 3, v2\nv_add_u32 v6, s31, v6\nv_lshlrev_b32 v6, 11, v6")
        e("v_add_u32 v9, v5, v6")
    e("s_lshl_b32 s35, s30, 10")
    e("s_lshl_b32 s36, s30, 12")
    e("s_mov_b32 s33, 0")
    e("s_mov_b32 s34, 0")
    def prep():
        chunk_of_pos(e, "s34", "s24", "s37", "s38", "s39", nst, lead, "s26")
        e(f"s_mul_i32 s40, s37, {64*trow}")
        if kind == "F":
            e("s_lshl_b32 s41, s37, 14\ns_add_u32 s41, s41, s28")
        else:
            e("s_lshl_b32 s41, s37, 7\ns_add_u32 s41, s41, s28")
        e("s_add_u32 s42, s33, s35")
    def issue():
        for i in range(4):
            e(f"s_add_u32 m0, s42, {i*4096}")
            if i: e(f"s_add_u32 s40, s40, {16*trow}")
            else: e("s_nop 0")
            e("buffer_load_dwordx4 v8, s[8:11], s40 offen lds")
        if kind == "F":
            e("s_add_u32 s43, s33, s36\ns_add_u32 m0, s43, 16384\ns_nop 0")
            for i in range(4):
                e(f"buffer_load_dwordx4 v9, s[12:15], s41 offen offset:{i*1024} lds")
        else:
            for i in range(4):
                e(f"s_add_u32 m0, s42, {16384 + i*4096}")
                if i: e(f"s_add_u32 s41, s41, {32*2048}")
                else: e("s_nop 0")
                e("buffer_load_dwordx4 v9, s[12:15], s41 offen lds")
        e(f"s_add_u32 s33, s33, {STG}\ns_cmp_ge_u32 s33, {R*STG}\ns_cselect_b32 s33, 0, s33")
        e("s_add_u32 s34, s34, 1")
    for _ in range(R-1):
        prep(); issue()
    e(f"L_{tag}_pl:")
    prep()
    e(f"s_waitcnt vmcnt({8*(R-2)})")
    e("s_barrier")
    issue()
    e(f"s_cmp_lt_u32 s34, {nst}")
    e(f"s_cbranch_scc1 L_{tag}_pl")
    for j in range(R-1):
        e(f"s_waitcnt vmcnt({8*(R-2-j)})")
        e("s_barrier")
    stamp_flush(e, kid)
    e("s_endpgm")

def pack_pair(e, dst, c0, c1):
    e(f"v_cvt_pk_bf16_f32 v{dst}, v{c0}, v{c0+1}")
    e(f"v_cvt_pk_bf16_f32 v{dst+1}, v{c0+2}, v{c0+3}")
    e(f"v_cvt_pk_bf16_f32 v{dst+2}, v{c1}, v{c1+1}")
    e(f"v_cvt_pk_bf16_f32 v{dst+3}, v{c1+2}, v{c1+3}")

HEAD_INSTR = 4
def k0(e):
    kernel_head(e, "k0_kernel")
    e("s_load_dwordx4 s[44:47], s[0:1], 0")
    e("s_load_dwordx4 s[48:51], s[0:1], 16")
    e("s_load_dwordx4 s[52:55], s[0:1], 32")
    e("s_load_dwordx2 s[56:57], s[0:1], 64")
    e("s_cmp_ge_u32 s2, 256\ns_cbranch_scc1 L_k0_end")
    e("s_and_b32 s20, s2, 7\ns_lshr_b32 s21, s2, 3")
    e("v_lshrrev_b32 v1, 6, v0\nv_and_b32 v2, 63, v0\ns_nop 0\nv_readfirstlane_b32 s25, v1")
    e("s_waitcnt lgkmcnt(0)")
    e("s_cmp_ge_u32 s21, 16\ns_cbranch_scc1 L_k0_dq")
    e("s_and_b32 s22, s20, 1\ns_lshl_b32 s22, s22, 2\ns_and_b32 s23, s21, 3\ns_add_u32 s22, s22, s23")
    e("s_lshr_b32 s23, s20, 1\ns_lshl_b32 s23, s23, 2\ns_lshr_b32 s24, s21, 2\ns_add_u32 s23, s23, s24")
    e("s_add_u32 s24, s22, s23\ns_and_b32 s24, s24, 3")
    e("s_mov_b32 s26, 0")
    srd(e, 8, 52, 0, D*D*2)
    srd(e, 12, 44, 0, S*D*2)
    srd(e, 16, 56, WS_XR, SZ_XR)
    e("s_lshl_b32 s27, s22, 8")
    e("s_lshl_b32 s28, s23, 18")
    def epi(e, ACC, T):
        e("s_lshl_b32 s40, s23, 3\ns_lshl_b32 s41, s30, 2\ns_add_u32 s40, s40, s41")
        e("s_lshr_b32 s41, s40, 4\ns_lshl_b32 s41, s41, 19")
        e("s_and_b32 s40, s40, 15\ns_lshl_b32 s40, s40, 10\ns_add_u32 s40, s40, s41")
        e("s_lshl_b32 s41, s22, 2\ns_lshl_b32 s42, s31, 1\ns_add_u32 s41, s41, s42\ns_lshl_b32 s41, s41, 14")
        e("s_add_u32 s40, s40, s41")
        e("s_add_u32 s41, s40, 16384")
        e("v_lshlrev_b32 v3, 4, v2")
        n = 0
        for u in range(2):
            for a in range(4):
                d = T + 4*n; n += 1
                pack_pair(e, d, ACC + 16*a + 4*(2*u), ACC + 16*a + 4*(2*u+1))
                e(f"buffer_store_dwordx4 {vr(d,4)}, v3, s[16:19], s{40+u} offen offset:{a*1024} {STAUX}")
    gemm128(e, "gb", "R", 16, 2048, epi, 0)
    e("L_k0_dq:")
    e("s_sub_u32 s22, s21, 16\ns_lshl_b32 s22, s22, 3\ns_add_u32 s22, s22, s20")
    e("s_cmp_eq_u32 s25, 7\ns_cbranch_scc1 L_k0_pf")
    e("s_lshr_b32 s23, s22, 2\ns_and_b32 s24, s22, 3")
    e("s_mul_i32 s24, s24, 28\ns_lshl_b32 s26, s25, 2\ns_add_u32 s24, s24, s26")
    srd(e, 8, 46, 0, D*F*4)
    srd(e, 12, 48, 0, 32*F*2)
    srd(e, 16, 50, 0, 32*F*2)
    srd(e, 60, 56, WS_WQ, SZ_WQ)
    e("v_lshrrev_b32 v3, 4, v2\nv_and_b32 v4, 15, v2")
    e(f"v_mul_u32_u24 v5, {F*4}, v4\nv_lshlrev_b32 v6, 5, v3\nv_add_u32 v5, v5, v6")
    e(f"v_add_u32 v6, {16*F*4}, v5")
    e("v_lshlrev_b32 v7, 4, v3")
    e("v_lshlrev_b32 v1, 4, v2")
    e(f"s_mul_i32 s27, s23, {32*F*4}\ns_lshl_b32 s28, s24, 7\ns_add_u32 s27, s27, s28")
    e(f"s_mul_i32 s28, s23, {F*2}\ns_lshl_b32 s29, s24, 6\ns_add_u32 s28, s28, s29")
    e("s_lshr_b32 s29, s23, 2\ns_mul_i32 s29, s29, 112\ns_add_u32 s29, s29, s24\ns_lshl_b32 s29, s29, 13")
    e("s_and_b32 s30, s23, 3\ns_lshl_b32 s30, s30, 11\ns_add_u32 s29, s29, s30")
    Q, SC, ZR, T = 16, 80, 96, 112
    for j in range(4):
        e(f"buffer_load_dwordx4 {vr(SC+4*j,4)}, v7, s[12:15], s28 offen offset:{j*64}")
        e(f"buffer_load_dwordx4 {vr(ZR+4*j,4)}, v7, s[16:19], s28 offen offset:{j*64}")
        for h in range(2):
            for c in range(2):
                e(f"buffer_load_dwordx4 {vr(Q+16*j+8*h+4*c,4)}, v{5+h}, s[8:11], s27 offen offset:{j*128+c*16}")
    for j in range(4):
        e(f"s_waitcnt vmcnt({6*(3-j) + 2*j})")
        for n in range(4):
            e(f"v_lshlrev_b32 v{T+2*n}, 16, v{SC+4*j+n}\nv_and_b32 v{T+2*n+1}, 0xffff0000, v{SC+4*j+n}")
            e(f"v_lshlrev_b32 v{T+8+2*n}, 16, v{ZR+4*j+n}\nv_and_b32 v{T+8+2*n+1}, 0xffff0000, v{ZR+4*j+n}")
        for h in range(2):
            q = Q + 16*j + 8*h
            for n in range(8): e(f"v_cvt_f32_i32 v{q+n}, v{q+n}")
            for n in range(8): e(f"v_cvt_pk_bf16_f32 v{q+n}, 0, v{q+n}")
            for n in range(8): e(f"v_sub_f32 v{q+n}, v{q+n}, v{T+8+n}")
            for n in range(8): e(f"v_cvt_pk_bf16_f32 v{q+n}, 0, v{q+n}")
            for n in range(8): e(f"v_mul_f32 v{q+n}, v{q+n}, v{T+n}")
            for n in range(4): e(f"v_cvt_pk_bf16_f32 v{q+n}, v{q+2*n}, v{q+2*n+1}")
            e(f"buffer_store_dwordx4 {vr(q,4)}, v1, s[60:63], s29 offen offset:{h*1024} {STAUX}")
        e("s_add_u32 s29, s29, 8192")
    stamp_flush(e, 0)
    e("s_endpgm")
    e("L_k0_pf:")
    srd(e, 8, 54, 0, F*F*2)
    e("v_lshlrev_b32 v3, 7, v2")
    e("s_lshl_b32 s27, s22, 13")
    for n in range(HEAD_INSTR):
        e(f"buffer_load_dword v{8+n}, v3, s[8:11], s27 offen")
        e(f"s_add_u32 s27, s27, {128*8192}")
    e("s_waitcnt vmcnt(0)")
    stamp_flush(e, 0)
    e("L_k0_end:")
    e("s_endpgm")

def k1(e):
    kernel_head(e, "k1_kernel")
    e("s_load_dwordx2 s[54:55], s[0:1], 40")
    e("s_load_dwordx2 s[56:57], s[0:1], 64")
    e("s_cmp_ge_u32 s2, 256\ns_cbranch_scc1 L_k1_end")
    e("s_and_b32 s20, s2, 7\ns_lshr_b32 s21, s2, 3")
    e("v_lshrrev_b32 v1, 6, v0\nv_and_b32 v2, 63, v0\ns_nop 0\nv_readfirstlane_b32 s25, v1")
    e("s_waitcnt lgkmcnt(0)")
    srd(e, 8, 54, 0, F*F*2)
    e("s_cmp_ge_u32 s21, 28\ns_cbranch_scc1 L_k1_pf")
    e("s_and_b32 s22, s20, 1\ns_lshl_b32 s22, s22, 2\ns_and_b32 s23, s21, 3\ns_add_u32 s22, s22, s23")
    e("s_lshr_b32 s23, s20, 1\ns_mul_i32 s23, s23, 7\ns_lshr_b32 s24, s21, 2\ns_add_u32 s23, s23, s24")
    e("s_add_u32 s24, s22, s23\ns_and_b32 s24, s24, 3")
    e("s_and_b32 s26, s20, 1")
    srd(e, 12, 56, WS_WQ, SZ_WQ)
    srd(e, 16, 56, WS_WV, SZ_WQ)
    e("s_lshl_b32 s27, s23, 8")
    e(f"s_mul_i32 s28, s22, {112*8192}")
    def epi(e, ACC, T):
        e("s_lshl_b32 s40, s22, 2\ns_lshl_b32 s41, s30, 1\ns_add_u32 s40, s40, s41")
        e("s_mul_i32 s40, s40, 7168")
        e("s_lshl_b32 s41, s23, 3\ns_lshl_b32 s42, s31, 2\ns_add_u32 s41, s41, s42")
        e("v_lshlrev_b32 v3, 4, v2")
        e("v_add_u32 v4, 7168, v3")
        n = 0
        for b in range(4):
            e(f"s_add_u32 s42, s41, {b}")
            e("s_mul_i32 s43, s42, 9363\ns_lshr_b32 s43, s43, 16")
            e(f"s_mul_i32 s44, s43, {32*7*1024 - 7*1024}\ns_lshl_b32 s42, s42, 10\ns_add_u32 s42, s42, s44")
            e(f"s_add_u32 s{48+b}, s42, s40")
            for u in range(2):
                d = T + 4*n; n += 1
                pack_pair(e, d, ACC + 16*(2*u) + 4*b, ACC + 16*(2*u+1) + 4*b)
                e(f"buffer_store_dwordx4 {vr(d,4)}, v{3+u}, s[16:19], s{48+b} offen {STAUX}")
    gemm128(e, "ga", "F", 56, F*2, epi, 1)
    e("L_k1_pf:")
    e("v_lshlrev_b32 v3, 7, v2")
    e("s_sub_u32 s26, s21, 28\ns_lshl_b32 s26, s26, 3\ns_add_u32 s26, s26, s20")
    e("s_cmp_ge_u32 s25, 4\ns_cbranch_scc1 L_k1_end")
    e("s_lshl_b32 s26, s26, 2\ns_add_u32 s26, s26, s25")
    e(f"s_lshl_b32 s27, s26, 13\ns_add_u32 s27, s27, {HEAD_INSTR*128*8192}")
    e("L_k1_pfl:")
    e("s_waitcnt vmcnt(3)")
    e("buffer_load_dword v8, v3, s[8:11], s27 offen")
    e(f"s_add_u32 s27, s27, {128*8192}")
    e(f"s_cmp_lt_u32 s27, {F*F*2}")
    e("s_cbranch_scc1 L_k1_pfl")
    e("s_waitcnt vmcnt(0)")
    stamp_flush(e, 1)
    e("L_k1_end:")
    e("s_endpgm")

R2 = 3
STG2 = 46 * 1024
def k2(e, lead=2):
    R, nst = R2, 16
    kernel_head(e, "k2_kernel")
    e("s_load_dwordx2 s[54:55], s[0:1], 48")
    e("s_load_dwordx2 s[56:57], s[0:1], 64")
    e("s_cmp_ge_u32 s2, 256\ns_cbranch_scc1 L_k2_end")
    e("s_and_b32 s20, s2, 7\ns_lshr_b32 s21, s2, 3")
    e("v_lshrrev_b32 v1, 6, v0\nv_and_b32 v2, 63, v0\ns_nop 0\nv_readfirstlane_b32 s25, v1")
    e("s_and_b32 s22, s20, 1\ns_lshl_b32 s22, s22, 2\ns_and_b32 s23, s21, 3\ns_add_u32 s22, s22, s23")
    e("s_lshr_b32 s23, s20, 1\ns_lshl_b32 s23, s23, 3\ns_lshr_b32 s24, s21, 2\ns_add_u32 s23, s23, s24")
    e("s_add_u32 s24, s22, s23\ns_and_b32 s24, s24, 3")
    e("s_waitcnt lgkmcnt(0)")
    srd(e, 8, 56, WS_XR, SZ_XR)
    srd(e, 12, 56, WS_WV, SZ_WQ)
    srd(e, 16, 54, 0, S*F*2)
    e("s_cmp_ge_u32 s25, 4\ns_cbranch_scc1 L_k2_prod")
    ACC, F0, F1 = 16, 128, 172
    e("v_lshlrev_b32 v4, 4, v2")
    e("s_lshl_b32 s30, s25, 12")
    e("v_add_u32 v5, s30, v4")
    e("v_add_u32 v4, 32768, v4")
    e("v_mov_b32 v8, v4\nv_mov_b32 v9, v5")
    for n in range(112): e(f"v_mov_b32 v{ACC+n}, 0")
    for n in range(44): e(f"v_mov_b32 v{F1+n}, 0")
    e(f"s_mov_b32 s33, 0\ns_mov_b32 s34, {nst}")
    def reads(Fb, ks):
        out = []
        xr = [f"ds_read_b128 {vr(Fb+28+4*b,4)}, v9 offset:{ks*16384 + b*1024}" for b in range(4)]
        wv = [f"ds_read_b128 {vr(Fb+4*a,4)}, v8 offset:{ks*7168 + a*1024}" for a in range(7)]
        return xr + wv
    def mfmas(Fb):
        return [f"v_mfma_f32_16x16x32_bf16 {vr(ACC+16*a+4*b,4)}, {vr(Fb+4*a,4)}, {vr(Fb+28+4*b,4)}, {vr(ACC+16*a+4*b,4)}"
                for a in range(7) for b in range(4)]
    e("L_k2_cl:")
    e("s_barrier")
    first_stamp(e, "k2", "s34", nst)
    interleave(e, mfmas(F1), reads(F0, 0), per=1)
    e("s_waitcnt lgkmcnt(0)")
    upd = [f"s_add_u32 s33, s33, {STG2}", f"s_cmp_ge_u32 s33, {R*STG2}", "s_cselect_b32 s33, 0, s33",
           "s_sub_u32 s34, s34, 1", "v_add_u32 v8, s33, v4", "v_add_u32 v9, s33, v5"]
    interleave(e, mfmas(F0), reads(F1, 1) + upd, per=1)
    e("s_waitcnt lgkmcnt(0)")
    e("s_cmp_lg_u32 s34, 0\ns_cbranch_scc1 L_k2_cl")
    for m in mfmas(F1): e(m)
    stamp(e, 2)
    e("v_lshrrev_b32 v3, 4, v2\nv_and_b32 v4, 15, v2")
    e(f"v_mul_u32_u24 v5, {F*2}, v4")
    e("v_and_b32 v6, 1, v3\nv_lshlrev_b32 v6, 5, v6\nv_lshrrev_b32 v7, 1, v3\nv_lshlrev_b32 v7, 4, v7")
    e("v_add3_u32 v6, v5, v6, v7")
    e("v_lshlrev_b32 v7, 3, v3\nv_add_u32 v7, v5, v7")
    e(f"s_lshl_b32 s40, s22, 8\ns_lshl_b32 s41, s25, 6\ns_add_u32 s40, s40, s41\ns_mul_i32 s40, s40, {F*2}")
    e("s_mul_i32 s41, s23, 224\ns_add_u32 s40, s40, s41")
    e("s_nop 7")
    n = 0
    for b in range(4):
        for u in range(3):
            d = F0 + 4*(n % 16); n += 1
            pack_pair(e, d, ACC + 16*(2*u) + 4*b, ACC + 16*(2*u+1) + 4*b)
            e("s_nop 1")
            e(f"v_permlane16_swap_b32 v{d}, v{d+2}")
            e(f"v_permlane16_swap_b32 v{d+1}, v{d+3}")
            e(f"buffer_store_dwordx4 {vr(d,4)}, v6, s[16:19], s40 offen offset:{u*64} {OUTAUX}")
        d = F0 + 4*(n % 16); n += 1
        c = ACC + 16*6 + 4*b
        e(f"v_cvt_pk_bf16_f32 v{d}, v{c}, v{c+1}\nv_cvt_pk_bf16_f32 v{d+1}, v{c+2}, v{c+3}")
        e(f"buffer_store_dwordx2 {vr(d,2)}, v7, s[16:19], s40 offen offset:192 {OUTAUX}")
        e(f"s_add_u32 s40, s40, {16*F*2}")
    stamp_flush(e, 2)
    e("s_endpgm")
    e("L_k2_prod:")
    e("s_sub_u32 s30, s25, 4")
    e("v_lshlrev_b32 v3, 4, v2")
    e("s_lshl_b32 s35, s30, 13\nv_add_u32 v8, s35, v3\nv_add_u32 v9, 4096, v8")
    e("s_lshl_b32 s36, s30, 10\nv_add_u32 v10, s36, v3")
    e("s_add_u32 s36, s36, 32768")
    e("s_lshl_b32 s28, s22, 19")
    e(f"s_mul_i32 s29, s23, {32*7168}")
    e("s_mov_b32 s33, 0\ns_mov_b32 s34, 0")
    def body(nwv, tag):
        nl = 8 + nwv
        def prep():
            chunk_of_pos(e, "s34", "s24", "s37", "s38", "s39", nst, lead)
            e("s_lshl_b32 s40, s37, 15\ns_add_u32 s40, s40, s28")
            e(f"s_mul_i32 s41, s37, 14336\ns_add_u32 s41, s41, s29")
            e("s_add_u32 s42, s33, s35\ns_add_u32 s43, s33, s36")
        def issue():
            for i in range(nwv):
                e(f"s_add_u32 m0, s43, {i*4096}")
                if i: e("s_add_u32 s41, s41, 4096")
                else: e("s_nop 0")
                e("buffer_load_dwordx4 v10, s[12:15], s41 offen lds")
            for h in range(2):
                e(f"s_add_u32 m0, s42, {h*4096}\ns_nop 0")
                for i in range(4):
                    e(f"buffer_load_dwordx4 v{8+h}, s[8:11], s40 offen offset:{i*1024} lds")
            e(f"s_add_u32 s33, s33, {STG2}\ns_cmp_ge_u32 s33, {R*STG2}\ns_cselect_b32 s33, 0, s33")
            e("s_add_u32 s34, s34, 1")
        for _ in range(R-1):
            prep(); issue()
        e(f"L_k2_pl{tag}:")
        prep()
        e(f"s_waitcnt vmcnt({nl*(R-2)})")
        e("s_barrier")
        issue()
        e(f"s_cmp_lt_u32 s34, {nst}\ns_cbranch_scc1 L_k2_pl{tag}")
        for j in range(R-1):
            e(f"s_waitcnt vmcnt({nl*(R-2-j)})")
            e("s_barrier")
        stamp_flush(e, 2)
        e("s_endpgm")
    e("s_cmp_ge_u32 s30, 2\ns_cbranch_scc1 L_k2_prod3")
    body(4, "a")
    e("L_k2_prod3:")
    body(3, "b")
    e("L_k2_end:")
    e("s_endpgm")

HEADER = open("standalone__weight_only_int_quip__prompt.s.ref").read().split("; Override")[0]

def generate():
    e = Asm()
    out = HEADER
    out += f"; @launch kernel=k0_kernel grid=(256,1,1) block=(512,1,1) lds={R128*STG}\n"
    out += f"; @launch kernel=k1_kernel grid=(256,1,1) block=(512,1,1) lds={R128*STG}\n"
    out += f"; @launch kernel=k2_kernel grid=(256,1,1) block=(512,1,1) lds={R2*STG2}\n"
    e('.amdgcn_target "amdgcn-amd-amdhsa--gfx950"\n.text')
    k0(e); k1(e); k2(e)
    kernel_desc(e, "k0_kernel", 160); kernel_desc(e, "k1_kernel", 160); kernel_desc(e, "k2_kernel", 216)
    return out + e.text()

if __name__ == "__main__":
    args = [a for a in sys.argv[1:] if not a.startswith("-")]
    for a in sys.argv[1:]:
        if a.startswith("-"):
            k, v = a[1:].split("=")
            globals()[k] = eval(v)
    path = args[0] if args else "standalone__weight_only_int_quip__prompt.s"
    open(path, "w").write(generate())
    print("wrote", path)
```

```python
import sys, re

S, D, F = 2048, 1024, 3584
WS_WQ, WS_WV, WS_XR, WS_FL, WS_ST = 0, 8 << 20, 16 << 20, 24 << 20, 64 << 20
SZ_WQ, SZ_XR = D * F * 2, S * D * 2
FL_WQ, FL_WV, FL_XR, FL_E = 0, 224 * 128, 448 * 128, 512 * 128
FL_BYTES = 513 * 128
NAME = "standalone__weight_only_int_quip__prompt_kernel"

NOMFMA = NOREAD = NOLOAD = False
STAMP = False
STAUX = "sc1"
OUTAUX = "sc1"
QAUX = ""
SKEW = True
LEAD = 2
NTOUCH = 1
XUTOUCH = True
UNIT = 16384
SLOT = 3 * UNIT
LDS_BYTES = 3 * SLOT
PREB = 2
SALU_PER = 1
SPIN = 1 << 17
PSLEEP = 2
ACC = 28

class Asm:
    def __init__(self):
        self.L = []
    def __call__(self, s):
        for line in s.split("\n"):
            line = line.strip()
            if NOMFMA and line.startswith("v_mfma"): continue
            if NOREAD and line.startswith("ds_read"): continue
            if NOLOAD and line.startswith("buffer_load") and line.endswith("lds"): continue
            if line:
                self.L.append(("    " if not line.endswith(":") and not line.startswith(".") else "") + line)
    def text(self):
        return "\n".join(self.L) + "\n"

def vr(b, n=1):
    return f"v{b}" if n == 1 else f"v[{b}:{b+n-1}]"

P_X, P_QW, P_SC, P_ZR, P_U, P_V, P_OUT, P_WS = 60, 62, 64, 66, 68, 70, 72, 56
def srd(e, d, base, add, nbytes):
    if add:
        e(f"s_add_u32 s{d}, s{base}, {add}\ns_addc_u32 s{d+1}, s{base+1}, 0")
    else:
        e(f"s_mov_b32 s{d}, s{base}\ns_mov_b32 s{d+1}, s{base+1}")
    e(f"s_mov_b32 s{d+2}, {nbytes}\ns_mov_b32 s{d+3}, 0x20000")

def stamp(e, n):
    if STAMP:
        e(f"s_memrealtime s[{80+2*n}:{81+2*n}]")
        if n in (1, 2):
            e(f"s_memtime s[{90+2*n}:{91+2*n}]")
def stamp_flush(e):
    if not STAMP:
        return
    e("s_waitcnt lgkmcnt(0) vmcnt(0)")
    stamp(e, 4)
    e("s_waitcnt lgkmcnt(0)")
    srd(e, 76, P_WS, WS_ST, 1 << 20)
    e(f"s_lshl_b32 s75, s2, 3\ns_add_u32 s75, s75, s25\ns_lshl_b32 s75, s75, 6")
    for n in range(16):
        e(f"v_mov_b32 v{8+n}, s{80+n}")
    e("v_mov_b32 v4, 0")
    e("s_mov_b64 exec, 1")
    for n in range(4):
        e(f"buffer_store_dwordx4 v[{8+4*n}:{11+4*n}], v4, s[76:79], s75 offen offset:{16*n}")

def chunk_of_pos(e, spos, scls, sdst, st1, st2, nch, lead, sxor=None):
    if not SKEW:
        e(f"s_mov_b32 {sdst}, {spos}")
        return
    e(f"s_sub_u32 {st1}, {spos}, {scls}")
    e(f"s_and_b32 {st1}, {st1}, 3")
    e(f"s_cmp_le_u32 {st1}, {lead}")
    e(f"s_cselect_b32 {st2}, -1, 0")
    e(f"s_cmp_eq_u32 {st1}, 0")
    e(f"s_cselect_b32 {st2}, {lead}, {st2}")
    e(f"s_cmp_lt_u32 {spos}, {scls}")
    e(f"s_cselect_b32 {st2}, 0, {st2}")
    e(f"s_sub_u32 {st1}, {spos}, {st1}")
    e(f"s_cmp_ge_i32 {st1}, {nch-3}")
    e(f"s_cselect_b32 {st2}, 0, {st2}")
    e(f"s_add_u32 {sdst}, {spos}, {st2}")
    if sxor:
        e(f"s_xor_b32 {sdst}, {sdst}, {sxor}")

def interleave(e, mfmas, others, per=1, lead=0):
    reads = [x for x in others if x.startswith("ds_")]
    salu = [x for x in others if x.startswith("s_")]
    valu = [x for x in others if x.startswith("v_")]
    def ready(x):
        ops = [t.strip(",") for t in x.split()[1:]]
        dst, srcs = ops[0], ops[1:]
        if any(re.search(rf", {dst}( |$)", r) for r in reads): return False
        if any(y.split()[1].strip(",") in srcs for y in salu): return False
        return True
    for _ in range(lead):
        if reads: e(reads.pop(0))
    for k, m in enumerate(mfmas):
        e(m)
        c = 0
        for _ in range(per):
            if reads: e(reads.pop(0)); c += 1
        while c < 2 and valu and ready(valu[0]):
            e(valu.pop(0)); c += 1
        for _ in range(SALU_PER if c else SALU_PER + 1):
            if salu: e(salu.pop(0))
    for x in reads + salu + valu:
        e(x)

def pack_pair(e, dst, c0, c1):
    e(f"v_cvt_pk_bf16_f32 v{dst}, v{c0}, v{c0+1}")
    e(f"v_cvt_pk_bf16_f32 v{dst+1}, v{c0+2}, v{c0+3}")
    e(f"v_cvt_pk_bf16_f32 v{dst+2}, v{c1}, v{c1+1}")
    e(f"v_cvt_pk_bf16_f32 v{dst+3}, v{c1+2}, v{c1+3}")

def next_slot(s="s33"):
    return [f"s_add_u32 {s}, {s}, {SLOT}", f"s_cmp_eq_u32 {s}, {3*SLOT}", f"s_cselect_b32 {s}, 0, {s}"]

class Phase:
    pass

def consumer(e, tag, P, nst, stampn=None, drain=False):
    def upd():
        return [f"v_add_u32 v{c}, s33, v{b}" for (c, b) in P.addr]
    for x in upd(): e(x)
    e(f"s_mov_b32 s36, {nst}")
    e("s_barrier")
    if stampn is not None: stamp(e, stampn)
    for r in P.reads(P.F0, 0): e(r)
    e(f"s_branch L_{tag}_mid")
    m1 = P.mfmas(P.F1)
    e(f"L_{tag}_top:")
    for m in m1[:PREB]: e(m)
    e("s_barrier")
    interleave(e, m1[PREB:], P.reads(P.F0, 0), lead=1)
    e(f"L_{tag}_mid:")
    e("s_waitcnt lgkmcnt(0)")
    tail = next_slot() + ["s_sub_u32 s36, s36, 1", "s_cmp_lg_u32 s36, 0"] + upd()
    interleave(e, P.mfmas(P.F0), P.reads(P.F1, 1) + tail)
    e("s_waitcnt vmcnt(0) lgkmcnt(0)" if drain else "s_waitcnt lgkmcnt(0)")
    e(f"s_cbranch_scc1 L_{tag}_top")
    for m in m1: e(m)

def emit(e, groups):
    for g in groups:
        for x in g: e(x)

def snake(na, nb):
    return [(a, (b if a % 2 == 0 else nb - 1 - b)) for a in range(na) for b in range(nb)]

def t_addr(e, kind, swt, dst):
    e("v_lshrrev_b32 v3, 4, v2\nv_and_b32 v4, 15, v2\nv_lshrrev_b32 v5, 2, v4\nv_and_b32 v6, 3, v4")
    e(f"v_lshlrev_b32 v7, {2 if kind == 'F' else 3}, v3\nv_add_u32 v7, v7, v5\nv_lshlrev_b32 v7, 8, v7")
    e("v_lshlrev_b32 v6, 3, v6\nv_add_u32 v7, v7, v6")
    e("v_and_b32 v6, 1, v3\nv_lshlrev_b32 v6, 2, v6\nv_or_b32 v6, v6, v5")
    e(f"s_lshl_b32 s26, {swt}, 2")
    e("v_xor_b32 v6, s26, v6")
    for q in range(4):
        e(f"v_xor_b32 v5, {q}, v6\nv_lshlrev_b32 v5, 5, v5\nv_add_u32 v{dst+q}, v7, v5")

def t_voff(e, kind, trow, scol, dst):
    e("v_lshrrev_b32 v3, 4, v2\nv_and_b32 v4, 15, v2")
    if kind == "F":
        e("s_and_b32 s26, s30, 1\ns_lshl_b32 s26, s26, 2")
    else:
        e("s_and_b32 s26, s30, 2\ns_lshl_b32 s26, s26, 1")
    e("v_or_b32 v5, s26, v3\nv_lshlrev_b32 v5, 1, v5\nv_xor_b32 v5, v5, v4\nv_lshlrev_b32 v5, 4, v5")
    e("s_lshl_b32 s26, s30, 2")
    e(f"v_add_u32 v6, s26, v3\nv_mul_u32_u24 v6, {trow}, v6")
    e(f"v_add_u32 v5, v5, v6")
    if scol: e(f"v_add_u32 v{dst}, {scol}, v5")
    else: e(f"v_mov_b32 v{dst}, v5")

def t_loads(vreg, srdn, soff, unit, trow):
    out = []
    for i in range(4):
        if i == 0:
            g = [f"s_add_u32 s44, s33, s31", f"s_add_u32 m0, s44, {unit*UNIT}", "s_nop 0"]
        else:
            g = [f"s_add_u32 m0, s44, {unit*UNIT + i*4096}", f"s_add_u32 {soff}, {soff}, {16*trow}"]
        g.append(f"buffer_load_dwordx4 v{vreg}, s[{srdn}:{srdn+3}], {soff} offen lds")
        out.append(g)
    return out

def f_loads(vreg, srdn, soff, unit):
    out = []
    for i in range(4):
        g = ["s_add_u32 s43, s33, s32", f"s_add_u32 m0, s43, {unit*UNIT}", "s_nop 0"] if i == 0 else []
        g.append(f"buffer_load_dwordx4 v{vreg}, s[{srdn}:{srdn+3}], {soff} offen offset:{i*1024} lds")
        out.append(g)
    return out

def make_tag(e):
    e("s_waitcnt lgkmcnt(0)")
    e("s_mul_i32 s4, s6, 0x9e3779b1\ns_add_u32 s4, s4, 0x7f4a7c15")
    e("s_mul_i32 s5, s7, 0x85ebca6b\ns_add_u32 s5, s5, 0xc2b2ae35")
def flag_store(e, soff):
    e("v_mov_b32 v10, s4\nv_mov_b32 v11, s5\nv_mov_b32 v12, 0")
    e("s_mov_b64 exec, 1")
    e(f"buffer_store_dwordx2 v[10:11], v12, s[48:51], {soff} offen sc1")
    e("s_mov_b64 exec, -1")
def flag_read(e, vaddr, soff):
    e(f"buffer_load_dwordx2 v[10:11], v{vaddr}, s[48:51], {soff} offen sc1")
def flag_mask(e):
    e("v_cmp_eq_u64 vcc, s[4:5], v[10:11]")
def flag_wait_all(e, tag, vaddr, soff, preloaded=False):
    e(f"s_mov_b32 s35, {SPIN}")
    if preloaded: e(f"s_branch L_{tag}_chk")
    e(f"L_{tag}_rd:")
    flag_read(e, vaddr, soff)
    e("s_waitcnt vmcnt(0)")
    e(f"L_{tag}_chk:")
    e("v_cmp_ne_u64 vcc, s[4:5], v[10:11]")
    e(f"s_cbranch_vccz L_{tag}_ok")
    e(f"s_sleep {PSLEEP}")
    e("s_sub_u32 s35, s35, 1\ns_cmp_lg_u32 s35, 0")
    e(f"s_cbranch_scc1 L_{tag}_rd")
    e(f"L_{tag}_ok:")
def lane_flag_addr(e, dst, n):
    e(f"v_min_u32 v{dst}, {n-1}, v2\nv_lshlrev_b32 v{dst}, 7, v{dst}")

def dequant(e):
    srd(e, 8, P_QW, 0, D*F*4)
    srd(e, 12, P_SC, 0, 32*F*2)
    srd(e, 16, P_ZR, 0, 32*F*2)
    e("v_lshrrev_b32 v3, 3, v2\nv_and_b32 v4, 7, v2")
    e(f"v_mul_u32_u24 v5, {F*4}, v3\nv_lshlrev_b32 v6, 4, v4\nv_add_u32 v5, v5, v6")
    e(f"v_add_u32 v8, {8*F*4}, v5")
    e("v_lshlrev_b32 v7, 3, v4")
    e("s_lshl_b32 s26, s22, 3\ns_add_u32 s26, s26, s25")
    e(f"s_mul_i32 s27, s26, {16*F*4}\ns_lshl_b32 s28, s23, 9\ns_add_u32 s27, s27, s28")
    e(f"s_lshr_b32 s28, s26, 1\ns_mul_i32 s28, s28, {F*2}\ns_lshl_b32 s29, s23, 8\ns_add_u32 s28, s28, s29")
    Q, SC, ZR, T = 32, 64, 72, 80
    for j in range(2):
        for o in range(2):
            for t in range(2):
                e(f"buffer_load_dwordx4 {vr(Q+16*j+8*o+4*t,4)}, v{5 if o == 0 else 8}, s[8:11], s27 offen offset:{j*256+t*128} {QAUX}")
        for t in range(2):
            e(f"buffer_load_dwordx2 {vr(SC+4*j+2*t,2)}, v7, s[12:15], s28 offen offset:{j*128+t*64}")
            e(f"buffer_load_dwordx2 {vr(ZR+4*j+2*t,2)}, v7, s[16:19], s28 offen offset:{j*128+t*64}")
    e("v_lshrrev_b32 v1, 2, v4\nv_lshlrev_b32 v1, 13, v1\nv_and_b32 v6, 3, v4\nv_lshlrev_b32 v6, 8, v6")
    e("v_lshlrev_b32 v3, 4, v3\nv_add3_u32 v1, v1, v6, v3")
    e("s_mul_i32 s29, s22, 56\ns_lshl_b32 s30, s23, 1\ns_add_u32 s29, s29, s30\ns_lshl_b32 s29, s29, 14")
    e("s_lshl_b32 s30, s25, 10\ns_add_u32 s29, s29, s30")
    srd(e, 8, P_V, 0, F*F*2)
    srd(e, 12, P_WS, WS_WQ, SZ_WQ)
    srd(e, 16, P_WS, WS_WV, SZ_WQ)
    for j in range(2):
        e(f"s_waitcnt vmcnt({8*(1-j) + 2*j})")
        for n in range(4):
            e(f"v_lshlrev_b32 v{T+2*n}, 16, v{SC+4*j+n}\nv_and_b32 v{T+2*n+1}, 0xffff0000, v{SC+4*j+n}")
            e(f"v_lshlrev_b32 v{T+8+2*n}, 16, v{ZR+4*j+n}\nv_and_b32 v{T+8+2*n+1}, 0xffff0000, v{ZR+4*j+n}")
        for o in range(2):
            q = Q + 16*j + 8*o
            for n in range(8): e(f"v_cvt_f32_i32 v{q+n}, v{q+n}")
            for n in range(8): e(f"v_cvt_pk_bf16_f32 v{q+n}, 0, v{q+n}")
            for n in range(8): e(f"v_sub_f32 v{q+n}, v{q+n}, v{T+8+n}")
            for n in range(8): e(f"v_cvt_pk_bf16_f32 v{q+n}, 0, v{q+n}")
            for n in range(8): e(f"v_mul_f32 v{q+n}, v{q+n}, v{T+n}")
            for n in range(4): e(f"v_cvt_pk_bf16_f32 v{q+n}, v{q+2*n}, v{q+2*n+1}")
            e(f"buffer_store_dwordx4 {vr(q,4)}, v1, s[12:15], s29 offen offset:{o*128} {STAUX}")
        e("s_add_u32 s29, s29, 16384")

def main_consumer(e):
    if NTOUCH:
        e("v_lshlrev_b32 v3, 7, v2")
        e(f"s_lshl_b32 s26, s2, 2\ns_add_u32 s26, s26, s25\ns_lshl_b32 s26, s26, 13\ns_add_u32 s26, s26, {128*F*2}")
        for n in range(NTOUCH):
            e(f"buffer_load_dword v{24+n%4}, v3, s[8:11], s26 offen")
            e(f"s_add_u32 s26, s26, {224*4*8192}")
    P = Phase(); P.F0, P.F1 = ACC + 128, ACC + 176
    e("s_lshr_b32 s30, s25, 1\ns_and_b32 s31, s25, 1")
    t_addr(e, "F", "s31", 16)
    e(f"s_lshl_b32 s26, s30, 12\ns_add_u32 s26, s26, {UNIT}\nv_lshlrev_b32 v5, 4, v2\nv_add_u32 v20, s26, v5")
    e(f"s_waitcnt vmcnt({NTOUCH})")
    e("s_barrier")
    P.addr = [(8+q, 16+q) for q in range(4)] + [(12, 20)]
    def reads(Fb, ks):
        out = []
        for a in range(4):
            out.append(f"ds_read_b128 {vr(Fb+4*a,4)}, v12 offset:{ks*8192 + a*1024}")
            for t in range(2):
                out.append(f"ds_read_b64_tr_b16 {vr(Fb+16+4*a+2*t,2)}, v{8+a} offset:{ks*4096 + t*8192}")
        return out
    def mfmas(Fb):
        return [f"v_mfma_f32_16x16x32_bf16 {vr(ACC+16*a+4*b,4)}, {vr(Fb+4*a,4)}, {vr(Fb+16+4*b,4)}, {vr(ACC+16*a+4*b,4)}"
                for a, b in snake(4, 4)]
    P.reads, P.mfmas = reads, mfmas
    for n in range(128): e(f"v_mov_b32 v{ACC+n}, 0")
    consumer(e, "ga", P, 56, stampn=1)
    stamp(e, 2)
    e("s_lshl_b32 s40, s23, 5\ns_lshl_b32 s41, s22, 2\ns_add_u32 s40, s40, s41\ns_lshl_b32 s41, s30, 1\ns_add_u32 s40, s40, s41")
    e("s_lshl_b32 s40, s40, 13\ns_lshl_b32 s42, s31, 12\ns_add_u32 s40, s40, s42")
    e("s_add_u32 s41, s40, 8192")
    e("s_mov_b32 s43, s33")
    for x in next_slot("s43"): e(x)
    e("s_cmp_eq_u32 s30, 0\ns_cselect_b32 s43, s33, s43\ns_add_u32 s43, s43, s42")
    e("v_and_b32 v3, 0x33, v2\nv_lshrrev_b32 v4, 1, v2\nv_and_b32 v4, 4, v4\nv_or_b32 v3, v3, v4\nv_lshlrev_b32 v3, 4, v3")
    e("v_and_b32 v4, 4, v2\nv_lshlrev_b32 v4, 8, v4\nv_or_b32 v3, v3, v4")
    e("v_add_u32 v4, s43, v3")
    n = 0
    for u in range(2):
        for b in range(4):
            d = P.F0 + 4*n; n += 1
            pack_pair(e, d, ACC + 16*(2*u) + 4*b, ACC + 16*(2*u+1) + 4*b)
            e(f"ds_write_b128 v4, {vr(d,4)} offset:{u*8192 + (b>>1)*2048 + (b&1)*128}")
            e(f"buffer_store_dwordx4 {vr(d,4)}, v3, s[16:19], s{40+u} offen offset:{(b>>1)*2048 + (b&1)*128} {STAUX}")
    for n in range(64): e(f"v_mov_b32 v{ACC+n}, 0")
    srd(e, 16, P_OUT, 0, S*F*2)
    e("v_lshlrev_b32 v16, 4, v2")
    e(f"s_lshl_b32 s26, s25, 12\ns_add_u32 s26, s26, {UNIT}\nv_add_u32 v17, s26, v16")
    P.addr = [(9, 17), (8, 16)]
    def reads(Fb, ks):
        xr = [f"ds_read_b128 {vr(Fb+32+4*b,4)}, v9 offset:{ks*UNIT + b*1024}" for b in range(4)]
        wv = [f"ds_read_b128 {vr(Fb+4*a,4)}, v8 offset:{ks*8192 + a*1024}" for a in range(8)]
        return xr + wv
    def mfmas(Fb):
        return [f"v_mfma_f32_16x16x32_bf16 {vr(ACC+16*a+4*b,4)}, {vr(Fb+4*a,4)}, {vr(Fb+32+4*b,4)}, {vr(ACC+16*a+4*b,4)}"
                for a, b in snake(8, 4)]
    P.reads, P.mfmas = reads, mfmas
    e("s_waitcnt lgkmcnt(0)")
    consumer(e, "gc", P, 16, stampn=3, drain=True)
    stamp(e, 5)
    e("v_lshrrev_b32 v3, 4, v2\nv_and_b32 v4, 15, v2")
    e(f"s_lshl_b32 s40, s22, 8\ns_lshl_b32 s41, s25, 6\ns_add_u32 s40, s40, s41\ns_mul_i32 s40, s40, {F*2}")
    e("s_lshl_b32 s41, s23, 8\ns_add_u32 s40, s40, s41")
    e(f"v_and_b32 v5, 7, v4\nv_mul_u32_u24 v5, {F*2}, v5")
    e("v_lshlrev_b32 v6, 4, v3\nv_and_b32 v7, 8, v4\nv_lshlrev_b32 v7, 3, v7\nv_add3_u32 v6, v5, v6, v7")
    e(f"v_add_u32 v7, {8*F*2}, v6")
    n = 0
    for b in range(4):
        for Ln in range(2):
            d = P.F0 + 12*(n % 8); n += 1
            for h in range(2):
                u = 2*Ln + h
                pack_pair(e, d + 4*h, ACC + 16*(2*u) + 4*b, ACC + 16*(2*u+1) + 4*b)
            for j in range(4): e(f"v_mov_b32 v{d+8+j}, v{d+j}")
            for j in range(4): e(f"v_mov_b32_dpp v{d+j}, v{d+4+j} row_ror:8 row_mask:0xf bank_mask:0xc")
            for j in range(4): e(f"v_mov_b32_dpp v{d+4+j}, v{d+8+j} row_ror:8 row_mask:0xf bank_mask:0x3")
            e(f"buffer_store_dwordx4 {vr(d,4)}, v6, s[16:19], s40 offen offset:{Ln*128} {OUTAUX}")
            e(f"buffer_store_dwordx4 {vr(d+4,4)}, v7, s[16:19], s40 offen offset:{Ln*128} {OUTAUX}")
        e(f"s_add_u32 s40, s40, {16*F*2}")
    stamp_flush(e)
    e("s_endpgm")

def main_producer(e):
    e("s_sub_u32 s30, s25, 4\ns_lshl_b32 s31, s30, 10\ns_lshl_b32 s32, s30, 12")
    e("s_lshl_b32 s27, s23, 8")
    t_voff(e, "F", F*2, "s27", 8)
    e("v_lshlrev_b32 v5, 4, v2\nv_add_u32 v9, s32, v5")
    e(f"s_mul_i32 s28, s22, {112*8192}")
    e("s_and_b32 s29, s20, 1")
    def prep():
        chunk_of_pos(e, "s36", "s24", "s37", "s38", "s39", 56, LEAD, "s29")
        e(f"s_mul_i32 s45, s37, {64*F*2}")
        e("s_lshl_b32 s46, s37, 14\ns_add_u32 s46, s46, s28")
    TL, FL = t_loads(8, 8, "s45", 0, F*2), f_loads(9, 12, "s46", 1)
    def adv():
        for x in next_slot(): e(x)
        e("s_add_u32 s36, s36, 1")
    e("s_mov_b32 s36, 0")
    for _ in range(2):
        prep(); emit(e, TL); adv()
    lane_flag_addr(e, 13, 28)
    e(f"s_mul_i32 s34, s22, {28*128}")
    e("s_lshl_b32 s26, s23, 7\ns_add_u32 s26, s26, s34")
    make_tag(e)
    e("s_waitcnt vmcnt(8)")
    e("s_barrier")
    stamp(e, 2)
    e("s_cmp_lg_u32 s30, 0\ns_cbranch_scc1 L_pa_nf")
    flag_store(e, "s26")
    e("L_pa_nf:")
    flag_wait_all(e, "fwq", 13, "s34")
    stamp(e, 1)
    e("s_mov_b32 s36, 0\ns_mov_b32 s33, 0")
    for _ in range(2):
        prep(); emit(e, FL); adv()
    prep()
    e("s_waitcnt vmcnt(4)\ns_barrier")
    emit(e, TL + FL); adv()
    e("L_ga_ptop:")
    prep()
    e("s_waitcnt vmcnt(8)\ns_barrier")
    emit(e, TL + FL); adv()
    e("s_cmp_lt_u32 s36, 56\ns_cbranch_scc1 L_ga_ptop")
    lane_flag_addr(e, 13, 8)
    e(f"s_lshl_b32 s34, s22, 10\ns_add_u32 s34, s34, {FL_XR}")
    e("s_waitcnt vmcnt(8)\ns_barrier")
    flag_read(e, 13, "s34")
    srd(e, 8, P_WS, WS_XR, SZ_XR)
    srd(e, 12, P_WS, WS_WV, SZ_WQ)
    e("s_lshl_b32 s28, s22, 19\ns_lshl_b32 s29, s23, 18\ns_and_b32 s24, s23, 3\ns_lshl_b32 s27, s22, 1")
    e("s_waitcnt vmcnt(0)\ns_barrier")
    flag_wait_all(e, "fxr", 13, "s34", preloaded=True)
    stamp(e, 3)
    def prepc(own=None):
        if own is None:
            chunk_of_pos(e, "s36", "s24", "s37", "s38", "s39", 14, LEAD)
            e("s_add_u32 s37, s37, s27\ns_add_u32 s37, s37, 2\ns_and_b32 s37, s37, 15")
        else:
            e(f"s_add_u32 s37, s27, {own}")
        e("s_lshl_b32 s45, s37, 14\ns_add_u32 s45, s45, s29")
        e("s_lshl_b32 s46, s37, 15\ns_add_u32 s46, s46, s28\ns_add_u32 s47, s46, 16384")
    WL, XL = f_loads(9, 12, "s45", 0), f_loads(9, 8, "s46", 1) + f_loads(9, 8, "s47", 2)
    for o in range(2):
        prepc(o); emit(e, XL)
        for x in next_slot(): e(x)
    e(f"s_lshl_b32 s34, s23, 10\ns_add_u32 s34, s34, {FL_WV}")
    e("s_lshl_b32 s26, s22, 7\ns_add_u32 s26, s26, s34")
    e("s_mov_b32 s52, 0")
    e("s_mov_b32 s36, 0")
    def need_tile(tag):
        e("s_lshr_b32 s38, s37, 1\ns_bitcmp1_b32 s52, s38")
        e(f"s_cbranch_scc1 L_{tag}_ok")
        e(f"s_mov_b32 s35, {SPIN}")
        e(f"L_{tag}_rd:")
        flag_read(e, 13, "s34")
        e("s_waitcnt vmcnt(0)")
        flag_mask(e)
        e("s_nop 1\ns_mov_b32 s52, vcc_lo")
        e("s_bitcmp1_b32 s52, s38")
        e(f"s_cbranch_scc1 L_{tag}_ok")
        e(f"s_sleep {PSLEEP}")
        e("s_sub_u32 s35, s35, 1\ns_cmp_lg_u32 s35, 0")
        e(f"s_cbranch_scc1 L_{tag}_rd")
        e(f"L_{tag}_ok:")
    prepc()
    e("s_waitcnt vmcnt(8)\ns_barrier")
    emit(e, XL)
    e("s_waitcnt vmcnt(8)\ns_barrier")
    e("s_cmp_lg_u32 s30, 0\ns_cbranch_scc1 L_pc_nf")
    flag_store(e, "s26")
    e("L_pc_nf:")
    need_tile("fw0")
    stamp(e, 5)
    emit(e, WL); adv()
    prepc()
    need_tile("fw1")
    emit(e, WL + XL); adv()
    e("L_gc_ptop:")
    prepc()
    e("s_waitcnt vmcnt(12)\ns_barrier")
    need_tile("fw2")
    emit(e, WL + XL); adv()
    e("s_cmp_lt_u32 s36, 14\ns_cbranch_scc1 L_gc_ptop")
    e("s_waitcnt vmcnt(12)\ns_barrier\ns_waitcnt vmcnt(0)\ns_barrier")
    e("s_or_b32 s26, s2, s30\ns_cmp_lg_u32 s26, 0\ns_cbranch_scc1 L_pc_end")
    lane_flag_addr(e, 13, 64)
    e(f"s_mov_b32 s34, {FL_XR}")
    flag_wait_all(e, "fall", 13, "s34")
    e(f"s_mov_b32 s26, {FL_E}")
    flag_store(e, "s26")
    e("L_pc_end:")
    stamp_flush(e)
    e("s_endpgm")

def spare(e):
    srd(e, 8, P_U, 0, D*D*2)
    srd(e, 12, P_X, 0, S*D*2)
    srd(e, 16, P_WS, WS_XR, SZ_XR)
    e("s_and_b32 s23, s20, 1\ns_lshl_b32 s23, s23, 2\ns_sub_u32 s24, s21, 28\ns_add_u32 s23, s23, s24")
    e("s_and_b32 s22, s20, 6")
    e("s_cmp_ge_u32 s25, 4\ns_cbranch_scc1 L_pb")
    e("s_lshr_b32 s30, s25, 1\ns_and_b32 s31, s25, 1")
    t_addr(e, "R", "s31", 16)
    e("v_lshrrev_b32 v5, 1, v4\nv_xor_b32 v5, v5, v3\nv_lshlrev_b32 v5, 4, v5")
    e(f"s_lshl_b32 s26, s30, 14\ns_add_u32 s26, s26, {UNIT}")
    e("v_lshlrev_b32 v6, 7, v4\nv_add3_u32 v20, v5, v6, s26\nv_xor_b32 v21, 64, v20")
    P = Phase(); P.F0, P.F1 = ACC + 128, ACC + 176
    P.addr = [(8+q, 16+q) for q in range(4)] + [(12, 20), (13, 21)]
    def reads(Fb, ks):
        out = []
        for a in range(4):
            for t in range(2):
                out.append(f"ds_read_b64_tr_b16 {vr(Fb+32+4*a+2*t,2)}, v{8+a} offset:{ks*8192 + t*1024}")
            for h in range(2):
                out.append(f"ds_read_b128 {vr(Fb+4*(2*a+h),4)}, v{12+ks} offset:{(2*a+h)*2048}")
        return out
    def mfmas(Fb):
        return [f"v_mfma_f32_16x16x32_bf16 {vr(ACC+16*a+4*b,4)}, {vr(Fb+32+4*b,4)}, {vr(Fb+4*a,4)}, {vr(ACC+16*a+4*b,4)}"
                for a, b in snake(8, 4)]
    P.reads, P.mfmas = reads, mfmas
    stamp(e, 1)
    e("L_bl:")
    for n in range(128): e(f"v_mov_b32 v{ACC+n}, 0")
    consumer(e, "gb", P, 16, drain=True)
    e("s_lshl_b32 s40, s22, 5\ns_lshl_b32 s41, s23, 2\ns_add_u32 s40, s40, s41\ns_lshl_b32 s41, s31, 1\ns_add_u32 s40, s40, s41")
    e("s_lshl_b32 s40, s40, 14\ns_lshl_b32 s41, s30, 13\ns_add_u32 s40, s40, s41")
    e("s_add_u32 s41, s40, 4096\ns_add_u32 s42, s40, 16384\ns_add_u32 s43, s40, 20480")
    e("v_lshlrev_b32 v3, 4, v2")
    n = 0
    for u in range(2):
        for a in range(8):
            d = P.F0 + 4*n; n += 1
            pack_pair(e, d, ACC + 16*a + 4*(2*u), ACC + 16*a + 4*(2*u+1))
            e(f"buffer_store_dwordx4 {vr(d,4)}, v3, s[16:19], s{40+2*u+(a>>2)} offen offset:{(a&3)*1024} {STAUX}")
    e("s_add_u32 s22, s22, 1\ns_and_b32 s26, s22, 1\ns_cmp_lg_u32 s26, 0\ns_cbranch_scc1 L_bl")
    stamp(e, 2)
    e("s_waitcnt vmcnt(0)\ns_barrier")
    stamp_flush(e)
    e("s_endpgm")
    e("L_pb:")
    e("s_sub_u32 s30, s25, 4\ns_lshl_b32 s31, s30, 10\ns_lshl_b32 s32, s30, 12")
    t_voff(e, "R", 2048, None, 8)
    e("s_and_b32 s26, s30, 1\ns_lshl_b32 s26, s26, 2")
    e("v_or_b32 v5, s26, v3\nv_and_b32 v6, 7, v2\nv_xor_b32 v5, v5, v6\nv_lshlrev_b32 v5, 4, v5")
    e("s_lshl_b32 s26, s30, 3")
    e("v_lshrrev_b32 v6, 3, v2\nv_add_u32 v6, s26, v6\nv_lshlrev_b32 v6, 11, v6")
    e("v_add_u32 v9, v5, v6")
    def prep():
        e("s_and_b32 s34, s36, 15")
        chunk_of_pos(e, "s34", "s24", "s37", "s38", "s39", 16, LEAD)
        e(f"s_lshl_b32 s45, s37, 17\ns_lshl_b32 s38, s23, 8\ns_add_u32 s45, s45, s38")
        e(f"s_lshr_b32 s38, s36, 4\ns_add_u32 s38, s38, s22\ns_lshl_b32 s38, s38, 19\ns_lshl_b32 s46, s37, 7\ns_add_u32 s46, s46, s38")
    xl = []
    for u in range(2):
        for i in range(4):
            g = [f"s_add_u32 m0, s44, {(1+u)*UNIT + i*4096}"]
            g += [f"s_add_u32 s46, s46, {32*2048}" if (u or i) else "s_nop 0"]
            g.append("buffer_load_dwordx4 v9, s[12:15], s46 offen lds")
            xl.append(g)
    LD = t_loads(8, 8, "s45", 0, 2048) + xl
    def adv():
        for x in next_slot(): e(x)
        e("s_add_u32 s36, s36, 1")
    e(f"s_lshl_b32 s27, s22, 10\ns_lshl_b32 s26, s23, 7\ns_add_u32 s27, s27, s26\ns_add_u32 s27, s27, {FL_XR}")
    e("s_mov_b32 s36, 0")
    for _ in range(2):
        prep(); emit(e, LD); adv()
    make_tag(e)
    e("L_gb_ptop:")
    prep()
    e("s_waitcnt vmcnt(12)\ns_barrier")
    e("s_xor_b32 s26, s36, 19\ns_or_b32 s26, s26, s30\ns_cmp_lg_u32 s26, 0\ns_cbranch_scc1 L_pb_nf")
    flag_store(e, "s27")
    e("L_pb_nf:")
    emit(e, LD); adv()
    e("s_cmp_lt_u32 s36, 32\ns_cbranch_scc1 L_gb_ptop")
    e("s_waitcnt vmcnt(12)\ns_barrier\ns_waitcnt vmcnt(0)\ns_barrier")
    e("s_barrier")
    e("s_cmp_lg_u32 s30, 0\ns_cbranch_scc1 L_pb_end")
    e("s_add_u32 s27, s27, 1024")
    flag_store(e, "s27")
    e("L_pb_end:")
    stamp_flush(e)
    e("s_endpgm")

def kernel(e):
    e(f".globl {NAME}\n.p2align 8\n.type {NAME},@function\n{NAME}:")
    if STAMP:
        for n in range(1, 8): e(f"s_mov_b64 s[{80+2*n}:{81+2*n}], 0")
    stamp(e, 0)
    e("s_load_dwordx16 s[60:75], s[0:1], 0")
    e("s_load_dwordx2 s[56:57], s[0:1], 64")
    e("s_cmp_ge_u32 s2, 256\ns_cbranch_scc1 L_end")
    e("s_and_b32 s20, s2, 7\ns_lshr_b32 s21, s2, 3")
    e("v_lshrrev_b32 v1, 6, v0\nv_and_b32 v2, 63, v0\ns_nop 0\nv_readfirstlane_b32 s25, v1")
    e("s_and_b32 s22, s20, 1\ns_lshl_b32 s22, s22, 2\ns_and_b32 s23, s21, 3\ns_add_u32 s22, s22, s23")
    e("s_lshr_b32 s23, s20, 1\ns_mul_i32 s23, s23, 7\ns_lshr_b32 s24, s21, 2\ns_add_u32 s23, s23, s24")
    e("s_add_u32 s24, s22, s23\ns_and_b32 s24, s24, 3")
    e("s_mov_b32 s33, 0")
    e(f"s_mov_b32 s26, {WS_FL + FL_E}")
    e("s_waitcnt lgkmcnt(0)")
    e("s_load_dwordx2 s[6:7], s[56:57], s26")
    srd(e, 48, P_WS, WS_FL, FL_BYTES)
    e("s_cmp_ge_u32 s21, 28\ns_cbranch_scc1 L_spare")
    dequant(e)
    e("s_cmp_ge_u32 s25, 4\ns_cbranch_scc1 L_mainp")
    main_consumer(e)
    e("L_mainp:")
    main_producer(e)
    e("L_spare:")
    spare(e)
    e("L_end:")
    e("s_endpgm")
    e(f'.section .rodata,"a"\n.p2align 6\n.amdhsa_kernel {NAME}')
    e(f".amdhsa_next_free_vgpr 256\n.amdhsa_next_free_sgpr 96\n.amdhsa_accum_offset 256")
    e(".amdhsa_group_segment_fixed_size 0\n.amdhsa_kernarg_size 72\n.amdhsa_user_sgpr_count 2")
    e(".amdhsa_user_sgpr_kernarg_segment_ptr 1\n.amdhsa_system_sgpr_workgroup_id_x 1")
    e(".amdhsa_float_denorm_mode_32 3")
    e(".end_amdhsa_kernel")

HEADER = open("standalone__weight_only_int_quip__prompt.s.ref").read().split("; Override")[0]
ASLIST = False
def generate():
    e = Asm()
    out = HEADER
    if ASLIST:
        out += f"; @launch kernel={NAME} grid=(256,1,1) block=(512,1,1) lds={LDS_BYTES}\n"
    else:
        out += f"; @launch grid=(256,1,1) block=(512,1,1) lds={LDS_BYTES}\n"
    e('.amdgcn_target "amdgcn-amd-amdhsa--gfx950"\n.text')
    kernel(e)
    return out + e.text()

if __name__ == "__main__":
    args = [a for a in sys.argv[1:] if not a.startswith("-")]
    for a in sys.argv[1:]:
        if a.startswith("-"):
            k, v = a[1:].split("=", 1)
            globals()[k] = eval(v)
    path = args[0] if args else "standalone__weight_only_int_quip__prompt.s"
    open(path, "w").write(generate())
    print("wrote", path)
```

```python
import sys, re

S, D, F = 2048, 1024, 3584
WS_WQ, WS_WV, WS_XR, WS_FL, WS_ST = 0, 8 << 20, 16 << 20, 24 << 20, 64 << 20
SZ_WQ, SZ_XR = D * F * 2, S * D * 2
FL_WQ, FL_WV, FL_XR, FL_E = 0, 224 * 128, 448 * 128, 512 * 128
FL_BYTES = 513 * 128
NAME = "standalone__weight_only_int_quip__prompt_kernel"

NOMFMA = NOREAD = NOLOAD = False
STAMP = False
STAUX = "sc1"
OUTAUX = "sc1"
QAUX = ""
SKEW = True
LEAD = 2
NTOUCH = 0
XUT = 0
UNIT = 16384
SLOT = 3 * UNIT
LDS_BYTES = 3 * SLOT
PREB = 2
SALU_PER = 1
SPIN = 1 << 17
PSLEEP = 2
ACC = 28

class Asm:
    def __init__(self):
        self.L = []
    def __call__(self, s):
        for line in s.split("\n"):
            line = line.strip()
            if NOMFMA and line.startswith("v_mfma"): continue
            if NOREAD and line.startswith("ds_read"): continue
            if NOLOAD and line.startswith("buffer_load") and line.endswith("lds"): continue
            if line:
                self.L.append(("    " if not line.endswith(":") and not line.startswith(".") else "") + line)
    def text(self):
        return "\n".join(self.L) + "\n"

def vr(b, n=1):
    return f"v{b}" if n == 1 else f"v[{b}:{b+n-1}]"

P_X, P_QW, P_SC, P_ZR, P_U, P_V, P_OUT, P_WS = 60, 62, 64, 66, 68, 70, 72, 56
def srd(e, d, base, add, nbytes):
    if add:
        e(f"s_add_u32 s{d}, s{base}, {add}\ns_addc_u32 s{d+1}, s{base+1}, 0")
    else:
        e(f"s_mov_b32 s{d}, s{base}\ns_mov_b32 s{d+1}, s{base+1}")
    e(f"s_mov_b32 s{d+2}, {nbytes}\ns_mov_b32 s{d+3}, 0x20000")

DIAG = ""
def stamp(e, n, diag=""):
    if n in (3, 5) and diag != DIAG: return
    if STAMP:
        e(f"s_memrealtime s[{80+2*n}:{81+2*n}]")
        if n in (1, 2):
            e(f"s_memtime s[{90+2*n}:{91+2*n}]")
DBGSTAMP = False
def stamp_flush(e, role=""):
    if not STAMP:
        return
    e("s_waitcnt lgkmcnt(0) vmcnt(0)")
    stamp(e, 4)
    e("s_waitcnt lgkmcnt(0)")
    if DBGSTAMP:
        srd(e, 76, 74, 0, 256)
        e("v_mov_b32 v4, 0\ns_mov_b64 exec, 1")
        sel = {"cons": [(0, 0, 1), (1, 1, 1), (1, 2, 0), (2, 3, 1), (2, 4, 0), (3, 5, 1), (3, 6, 0), (5, 7, 1), (5, 8, 0), (4, 9, 0), (0, 15, 0)],
               "prod": [(2, 10, 0), (1, 11, 0), (3, 12, 0)], "bcons": [(2, 13, 1), (2, 14, 0)]}.get(role, [])
        for k, (st, w, inv) in enumerate(sel):
            e(f"v_mov_b32 v{8+k}, s{80+2*st}")
            if inv: e(f"v_not_b32 v{8+k}, v{8+k}")
            e(f"buffer_atomic_umax v{8+k}, v4, s[76:79], 0 offen offset:{4*w}")
        return
    srd(e, 76, P_WS, WS_ST, 1 << 20)
    e(f"s_lshl_b32 s75, s2, 3\ns_add_u32 s75, s75, s25\ns_lshl_b32 s75, s75, 6")
    for n in range(16):
        e(f"v_mov_b32 v{8+n}, s{80+n}")
    e("v_mov_b32 v4, 0")
    e("s_mov_b64 exec, 1")
    for n in range(4):
        e(f"buffer_store_dwordx4 v[{8+4*n}:{11+4*n}], v4, s[76:79], s75 offen offset:{16*n}")

def chunk_of_pos(e, spos, scls, sdst, st1, st2, nch, lead, sxor=None):
    if not SKEW:
        e(f"s_mov_b32 {sdst}, {spos}")
        return
    e(f"s_sub_u32 {st1}, {spos}, {scls}")
    e(f"s_and_b32 {st1}, {st1}, 3")
    e(f"s_cmp_le_u32 {st1}, {lead}")
    e(f"s_cselect_b32 {st2}, -1, 0")
    e(f"s_cmp_eq_u32 {st1}, 0")
    e(f"s_cselect_b32 {st2}, {lead}, {st2}")
    e(f"s_cmp_lt_u32 {spos}, {scls}")
    e(f"s_cselect_b32 {st2}, 0, {st2}")
    e(f"s_sub_u32 {st1}, {spos}, {st1}")
    e(f"s_cmp_ge_i32 {st1}, {nch-3}")
    e(f"s_cselect_b32 {st2}, 0, {st2}")
    e(f"s_add_u32 {sdst}, {spos}, {st2}")
    if sxor:
        e(f"s_xor_b32 {sdst}, {sdst}, {sxor}")

def interleave(e, mfmas, others, per=1, lead=0):
    reads = [x for x in others if x.startswith("ds_")]
    salu = [x for x in others if x.startswith("s_")]
    valu = [x for x in others if x.startswith("v_")]
    def ready(x):
        ops = [t.strip(",") for t in x.split()[1:]]
        dst, srcs = ops[0], ops[1:]
        if any(re.search(rf", {dst}( |$)", r) for r in reads): return False
        if any(y.split()[1].strip(",") in srcs for y in salu): return False
        return True
    for _ in range(lead):
        if reads: e(reads.pop(0))
    for k, m in enumerate(mfmas):
        e(m)
        c = 0
        for _ in range(per):
            if reads: e(reads.pop(0)); c += 1
        while c < 2 and valu and ready(valu[0]):
            e(valu.pop(0)); c += 1
        for _ in range(SALU_PER if c else SALU_PER + 1):
            if salu: e(salu.pop(0))
    for x in reads + salu + valu:
        e(x)

def pack_pair(e, dst, c0, c1):
    e(f"v_cvt_pk_bf16_f32 v{dst}, v{c0}, v{c0+1}")
    e(f"v_cvt_pk_bf16_f32 v{dst+1}, v{c0+2}, v{c0+3}")
    e(f"v_cvt_pk_bf16_f32 v{dst+2}, v{c1}, v{c1+1}")
    e(f"v_cvt_pk_bf16_f32 v{dst+3}, v{c1+2}, v{c1+3}")

def next_slot(s="s33"):
    return [f"s_add_u32 {s}, {s}, {SLOT}", f"s_cmp_eq_u32 {s}, {3*SLOT}", f"s_cselect_b32 {s}, 0, {s}"]

class Phase:
    pass

def consumer(e, tag, P, nst, stampn=None, drain=False):
    def upd():
        return [f"v_add_u32 v{c}, s33, v{b}" for (c, b) in P.addr]
    for x in upd(): e(x)
    e(f"s_mov_b32 s36, {nst}")
    e("s_barrier")
    if stampn is not None: stamp(e, stampn)
    for r in P.reads(P.F0, 0): e(r)
    e(f"s_branch L_{tag}_mid")
    m1 = P.mfmas(P.F1)
    e(f"L_{tag}_top:")
    for m in m1[:PREB]: e(m)
    e("s_barrier")
    interleave(e, m1[PREB:], P.reads(P.F0, 0), lead=1)
    e(f"L_{tag}_mid:")
    e("s_waitcnt lgkmcnt(0)")
    tail = next_slot() + ["s_sub_u32 s36, s36, 1", "s_cmp_lg_u32 s36, 0"] + upd()
    interleave(e, P.mfmas(P.F0), P.reads(P.F1, 1) + tail)
    e("s_waitcnt vmcnt(0) lgkmcnt(0)" if drain else "s_waitcnt lgkmcnt(0)")
    e(f"s_cbranch_scc1 L_{tag}_top")
    for m in m1: e(m)

def emit(e, groups):
    for g in groups:
        for x in g: e(x)

def snake(na, nb):
    return [(a, (b if a % 2 == 0 else nb - 1 - b)) for a in range(na) for b in range(nb)]

def t_addr(e, kind, swt, dst):
    e("v_lshrrev_b32 v3, 4, v2\nv_and_b32 v4, 15, v2\nv_lshrrev_b32 v5, 2, v4\nv_and_b32 v6, 3, v4")
    e(f"v_lshlrev_b32 v7, {2 if kind == 'F' else 3}, v3\nv_add_u32 v7, v7, v5\nv_lshlrev_b32 v7, 8, v7")
    e("v_lshlrev_b32 v6, 3, v6\nv_add_u32 v7, v7, v6")
    e("v_and_b32 v6, 1, v3\nv_lshlrev_b32 v6, 2, v6\nv_or_b32 v6, v6, v5")
    e(f"s_lshl_b32 s26, {swt}, 2")
    e("v_xor_b32 v6, s26, v6")
    for q in range(4):
        e(f"v_xor_b32 v5, {q}, v6\nv_lshlrev_b32 v5, 5, v5\nv_add_u32 v{dst+q}, v7, v5")

def t_voff(e, kind, trow, scol, dst):
    e("v_lshrrev_b32 v3, 4, v2\nv_and_b32 v4, 15, v2")
    if kind == "F":
        e("s_and_b32 s26, s30, 1\ns_lshl_b32 s26, s26, 2")
    else:
        e("s_and_b32 s26, s30, 2\ns_lshl_b32 s26, s26, 1")
    e("v_or_b32 v5, s26, v3\nv_lshlrev_b32 v5, 1, v5\nv_xor_b32 v5, v5, v4\nv_lshlrev_b32 v5, 4, v5")
    e("s_lshl_b32 s26, s30, 2")
    e(f"v_add_u32 v6, s26, v3\nv_mul_u32_u24 v6, {trow}, v6")
    e(f"v_add_u32 v5, v5, v6")
    if scol: e(f"v_add_u32 v{dst}, {scol}, v5")
    else: e(f"v_mov_b32 v{dst}, v5")

def t_loads(vreg, srdn, soff, unit, trow):
    out = []
    for i in range(4):
        if i == 0:
            g = [f"s_add_u32 s44, s33, s31", f"s_add_u32 m0, s44, {unit*UNIT}", "s_nop 0"]
        else:
            g = [f"s_add_u32 m0, s44, {unit*UNIT + i*4096}", f"s_add_u32 {soff}, {soff}, {16*trow}"]
        g.append(f"buffer_load_dwordx4 v{vreg}, s[{srdn}:{srdn+3}], {soff} offen lds")
        out.append(g)
    return out

def f_loads(vreg, srdn, soff, unit):
    out = []
    for i in range(4):
        g = ["s_add_u32 s43, s33, s32", f"s_add_u32 m0, s43, {unit*UNIT}", "s_nop 0"] if i == 0 else []
        g.append(f"buffer_load_dwordx4 v{vreg}, s[{srdn}:{srdn+3}], {soff} offen offset:{i*1024} lds")
        out.append(g)
    return out

CPF = 0
_ct = [0]
def code_touch(e, halves=(0, 1)):
    _ct[0] += 1
    lab = f"L_ct{_ct[0]}"
    e("s_getpc_b64 s[76:77]")
    e(f"{lab}:")
    e(f"s_sub_u32 s76, s76, {lab}-{NAME}\ns_subb_u32 s77, s77, 0")
    e(f"s_mov_b32 s78, L_code_end-{NAME}\ns_mov_b32 s79, 0x20000")
    e("v_lshlrev_b32 v27, 7, v2")
    for h in halves:
        e(f"s_movk_i32 s3, {h*8192}")
        e("buffer_load_dword v23, v27, s[76:79], s3 offen")

def make_tag(e):
    e("s_waitcnt lgkmcnt(0)")
    e("s_mul_i32 s4, s6, 0x9e3779b1\ns_add_u32 s4, s4, 0x7f4a7c15")
    e("s_mul_i32 s5, s7, 0x85ebca6b\ns_add_u32 s5, s5, 0xc2b2ae35")
def flag_store(e, soff):
    e("v_mov_b32 v10, s4\nv_mov_b32 v11, s5\nv_mov_b32 v12, 0")
    e("s_mov_b64 exec, 1")
    e(f"buffer_store_dwordx2 v[10:11], v12, s[48:51], {soff} offen sc1")
    e("s_mov_b64 exec, -1")
def flag_read(e, vaddr, soff):
    e(f"buffer_load_dwordx2 v[10:11], v{vaddr}, s[48:51], {soff} offen sc1")
def flag_mask(e):
    e("v_cmp_eq_u64 vcc, s[4:5], v[10:11]")
def flag_wait_all(e, tag, vaddr, soff, preloaded=False):
    e(f"s_mov_b32 s35, {SPIN}")
    if preloaded: e(f"s_branch L_{tag}_chk")
    e(f"L_{tag}_rd:")
    flag_read(e, vaddr, soff)
    e("s_waitcnt vmcnt(0)")
    e(f"L_{tag}_chk:")
    e("v_cmp_ne_u64 vcc, s[4:5], v[10:11]")
    e(f"s_cbranch_vccz L_{tag}_ok")
    e(f"s_sleep {PSLEEP}")
    e("s_sub_u32 s35, s35, 1\ns_cmp_lg_u32 s35, 0")
    e(f"s_cbranch_scc1 L_{tag}_rd")
    e(f"L_{tag}_ok:")
def lane_flag_addr(e, dst, n):
    e(f"v_min_u32 v{dst}, {n-1}, v2\nv_lshlrev_b32 v{dst}, 7, v{dst}")

def dequant(e):
    srd(e, 8, P_QW, 0, D*F*4)
    srd(e, 12, P_SC, 0, 32*F*2)
    srd(e, 16, P_ZR, 0, 32*F*2)
    e("v_lshrrev_b32 v3, 3, v2\nv_and_b32 v4, 7, v2")
    e(f"v_mul_u32_u24 v5, {F*4}, v3\nv_lshlrev_b32 v6, 4, v4\nv_add_u32 v5, v5, v6")
    e(f"v_add_u32 v8, {8*F*4}, v5")
    e("v_lshlrev_b32 v7, 3, v4")
    e("s_lshl_b32 s26, s22, 3\ns_add_u32 s26, s26, s25")
    e(f"s_mul_i32 s27, s26, {16*F*4}\ns_lshl_b32 s28, s23, 9\ns_add_u32 s27, s27, s28")
    e(f"s_lshr_b32 s28, s26, 1\ns_mul_i32 s28, s28, {F*2}\ns_lshl_b32 s29, s23, 8\ns_add_u32 s28, s28, s29")
    Q, SC, ZR, T = 32, 64, 72, 80
    for j in range(2):
        for o in range(2):
            for t in range(2):
                e(f"buffer_load_dwordx4 {vr(Q+16*j+8*o+4*t,4)}, v{5 if o == 0 else 8}, s[8:11], s27 offen offset:{j*256+t*128} {QAUX}")
        for t in range(2):
            e(f"buffer_load_dwordx2 {vr(SC+4*j+2*t,2)}, v7, s[12:15], s28 offen offset:{j*128+t*64}")
            e(f"buffer_load_dwordx2 {vr(ZR+4*j+2*t,2)}, v7, s[16:19], s28 offen offset:{j*128+t*64}")
    stamp(e, 3, "start")
    e("v_lshrrev_b32 v1, 2, v4\nv_lshlrev_b32 v1, 13, v1\nv_and_b32 v6, 3, v4\nv_lshlrev_b32 v6, 8, v6")
    e("v_lshlrev_b32 v3, 4, v3\nv_add3_u32 v1, v1, v6, v3")
    e("s_mul_i32 s29, s22, 56\ns_lshl_b32 s30, s23, 1\ns_add_u32 s29, s29, s30\ns_lshl_b32 s29, s29, 14")
    e("s_lshl_b32 s30, s25, 10\ns_add_u32 s29, s29, s30")
    e(f"s_add_u32 s30, s30, {UNIT}\nv_add_u32 v9, s30, v1")
    srd(e, 8, P_V, 0, F*F*2)
    srd(e, 12, P_WS, WS_WQ, SZ_WQ)
    srd(e, 16, P_WS, WS_WV, SZ_WQ)
    for j in range(2):
        e(f"s_waitcnt vmcnt({8*(1-j) + 2*j})")
        if j == 0: stamp(e, 5, "start")
        if j == 1: stamp(e, 3, "start2")
        for n in range(4):
            e(f"v_lshlrev_b32 v{T+2*n}, 16, v{SC+4*j+n}\nv_and_b32 v{T+2*n+1}, 0xffff0000, v{SC+4*j+n}")
            e(f"v_lshlrev_b32 v{T+8+2*n}, 16, v{ZR+4*j+n}\nv_and_b32 v{T+8+2*n+1}, 0xffff0000, v{ZR+4*j+n}")
        for o in range(2):
            q = Q + 16*j + 8*o
            for n in range(8): e(f"v_cvt_f32_i32 v{q+n}, v{q+n}")
            for n in range(8): e(f"v_cvt_pk_bf16_f32 v{q+n}, 0, v{q+n}")
            for n in range(8): e(f"v_sub_f32 v{q+n}, v{q+n}, v{T+8+n}")
            for n in range(8): e(f"v_cvt_pk_bf16_f32 v{q+n}, 0, v{q+n}")
            for n in range(8): e(f"v_mul_f32 v{q+n}, v{q+n}, v{T+n}")
            for n in range(4): e(f"v_cvt_pk_bf16_f32 v{q+n}, v{q+2*n}, v{q+2*n+1}")
            e(f"buffer_store_dwordx4 {vr(q,4)}, v1, s[12:15], s29 offen offset:{o*128} {STAUX}")
            e(f"ds_write_b128 v9, {vr(q,4)} offset:{j*SLOT + o*128}")
        e("s_add_u32 s29, s29, 16384")
    stamp(e, 5, "start2")

def main_consumer(e):
    P = Phase(); P.F0, P.F1 = ACC + 128, ACC + 176
    e("s_lshr_b32 s30, s25, 1\ns_and_b32 s31, s25, 1")
    t_addr(e, "F", "s31", 16)
    e(f"s_lshl_b32 s26, s30, 12\ns_add_u32 s26, s26, {UNIT}\nv_lshlrev_b32 v5, 4, v2\nv_add_u32 v20, s26, v5")
    P.addr = [(8+q, 16+q) for q in range(4)] + [(12, 20)]
    def reads(Fb, ks):
        out = []
        for a in range(4):
            out.append(f"ds_read_b128 {vr(Fb+4*a,4)}, v12 offset:{ks*8192 + a*1024}")
            for t in range(2):
                out.append(f"ds_read_b64_tr_b16 {vr(Fb+16+4*a+2*t,2)}, v{8+a} offset:{ks*4096 + t*8192}")
        return out
    def mfmas(Fb):
        return [f"v_mfma_f32_16x16x32_bf16 {vr(ACC+16*a+4*b,4)}, {vr(Fb+4*a,4)}, {vr(Fb+16+4*b,4)}, {vr(ACC+16*a+4*b,4)}"
                for a, b in snake(4, 4)]
    P.reads, P.mfmas = reads, mfmas
    for n in range(128): e(f"v_mov_b32 v{ACC+n}, 0")
    e("s_waitcnt vmcnt(0) lgkmcnt(0)\ns_barrier")
    e("v_lshlrev_b32 v3, 7, v2")
    if XUT:
        srd(e, 40, P_X, 0, S*D*2)
        srd(e, 44, P_U, 0, D*D*2)
        e("s_lshl_b32 s26, s2, 2\ns_add_u32 s26, s26, s25\ns_lshl_b32 s27, s26, 13")
        e("s_cmp_ge_u32 s26, 256\ns_cbranch_scc1 L_tx")
        e("buffer_load_dword v23, v3, s[44:47], s27 offen")
        e("s_branch L_td")
        e("L_tx:")
        e(f"s_sub_u32 s27, s27, {256*8192}")
        e("buffer_load_dword v23, v3, s[40:43], s27 offen")
        e("L_td:")
    if NTOUCH:
        e(f"s_lshl_b32 s26, s2, 2\ns_add_u32 s26, s26, s25\ns_lshl_b32 s26, s26, 13")
        for n in range(NTOUCH):
            e(f"buffer_load_dword v{24+n%4}, v3, s[8:11], s26 offen")
            e(f"s_add_u32 s26, s26, {224*4*8192}")
    consumer(e, "ga", P, 56, stampn=1)
    stamp(e, 2)
    e("s_lshl_b32 s40, s23, 5\ns_lshl_b32 s41, s22, 2\ns_add_u32 s40, s40, s41\ns_lshl_b32 s41, s30, 1\ns_add_u32 s40, s40, s41")
    e("s_lshl_b32 s40, s40, 13\ns_lshl_b32 s42, s31, 12\ns_add_u32 s40, s40, s42")
    e("s_add_u32 s41, s40, 8192")
    e("s_mov_b32 s43, s33")
    for x in next_slot("s43"): e(x)
    e("s_cmp_eq_u32 s30, 0\ns_cselect_b32 s43, s33, s43\ns_add_u32 s43, s43, s42")
    e("v_and_b32 v3, 0x33, v2\nv_lshrrev_b32 v4, 1, v2\nv_and_b32 v4, 4, v4\nv_or_b32 v3, v3, v4\nv_lshlrev_b32 v3, 4, v3")
    e("v_and_b32 v4, 4, v2\nv_lshlrev_b32 v4, 8, v4\nv_or_b32 v3, v3, v4")
    e("v_add_u32 v4, s43, v3")
    n = 0
    for u in range(2):
        for b in range(4):
            d = P.F0 + 4*n; n += 1
            pack_pair(e, d, ACC + 16*(2*u) + 4*b, ACC + 16*(2*u+1) + 4*b)
            e(f"buffer_store_dwordx4 {vr(d,4)}, v3, s[16:19], s{40+u} offen offset:{(b>>1)*2048 + (b&1)*128} {STAUX}")
            e(f"ds_write_b128 v4, {vr(d,4)} offset:{u*8192 + (b>>1)*2048 + (b&1)*128}")
    for n in range(64): e(f"v_mov_b32 v{ACC+n}, 0")
    srd(e, 16, P_OUT, 0, S*F*2)
    e("v_lshlrev_b32 v16, 4, v2")
    e(f"s_lshl_b32 s26, s25, 12\ns_add_u32 s26, s26, {UNIT}\nv_add_u32 v17, s26, v16")
    P.addr = [(9, 17), (8, 16)]
    def reads(Fb, ks):
        xr = [f"ds_read_b128 {vr(Fb+32+4*b,4)}, v9 offset:{ks*UNIT + b*1024}" for b in range(4)]
        wv = [f"ds_read_b128 {vr(Fb+4*a,4)}, v8 offset:{ks*8192 + a*1024}" for a in range(8)]
        return xr + wv
    def mfmas(Fb):
        return [f"v_mfma_f32_16x16x32_bf16 {vr(ACC+16*a+4*b,4)}, {vr(Fb+4*a,4)}, {vr(Fb+32+4*b,4)}, {vr(ACC+16*a+4*b,4)}"
                for a, b in snake(8, 4)]
    P.reads, P.mfmas = reads, mfmas
    e("s_waitcnt lgkmcnt(0)")
    consumer(e, "gc", P, 16, stampn=3, drain=True)
    stamp(e, 5)
    e("v_lshrrev_b32 v3, 4, v2\nv_and_b32 v4, 15, v2")
    e(f"s_lshl_b32 s40, s22, 8\ns_lshl_b32 s41, s25, 6\ns_add_u32 s40, s40, s41\ns_mul_i32 s40, s40, {F*2}")
    e("s_lshl_b32 s41, s23, 8\ns_add_u32 s40, s40, s41")
    e(f"v_and_b32 v5, 7, v4\nv_mul_u32_u24 v5, {F*2}, v5")
    e("v_lshlrev_b32 v6, 4, v3\nv_and_b32 v7, 8, v4\nv_lshlrev_b32 v7, 3, v7\nv_add3_u32 v6, v5, v6, v7")
    e(f"v_add_u32 v7, {8*F*2}, v6")
    n = 0
    for b in range(4):
        for Ln in range(2):
            d = P.F0 + 12*(n % 8); n += 1
            for h in range(2):
                u = 2*Ln + h
                pack_pair(e, d + 4*h, ACC + 16*(2*u) + 4*b, ACC + 16*(2*u+1) + 4*b)
            for j in range(4): e(f"v_mov_b32 v{d+8+j}, v{d+j}")
            for j in range(4): e(f"v_mov_b32_dpp v{d+j}, v{d+4+j} row_ror:8 row_mask:0xf bank_mask:0xc")
            for j in range(4): e(f"v_mov_b32_dpp v{d+4+j}, v{d+8+j} row_ror:8 row_mask:0xf bank_mask:0x3")
            e(f"buffer_store_dwordx4 {vr(d,4)}, v6, s[16:19], s40 offen offset:{Ln*128} {OUTAUX}")
            e(f"buffer_store_dwordx4 {vr(d+4,4)}, v7, s[16:19], s40 offen offset:{Ln*128} {OUTAUX}")
        e(f"s_add_u32 s40, s40, {16*F*2}")
    stamp_flush(e, "cons")
    e("s_endpgm")

def main_producer(e):
    e("s_sub_u32 s30, s25, 4\ns_lshl_b32 s31, s30, 10\ns_lshl_b32 s32, s30, 12")
    e("s_lshl_b32 s27, s23, 8")
    t_voff(e, "F", F*2, "s27", 8)
    e("v_lshlrev_b32 v5, 4, v2\nv_add_u32 v9, s32, v5")
    e(f"s_mul_i32 s28, s22, {112*8192}")
    e("s_and_b32 s29, s20, 1")
    e("s_lshl_b32 s53, s23, 1")
    def prep(own=None):
        if own is None:
            chunk_of_pos(e, "s36", "s24", "s37", "s38", "s39", 54, LEAD, "s29")
            e("s_cmp_ge_u32 s37, s53\ns_cselect_b32 s38, 2, 0\ns_add_u32 s37, s37, s38")
        else:
            e(f"s_add_u32 s37, s53, {own}")
        e(f"s_mul_i32 s45, s37, {64*F*2}")
        e("s_lshl_b32 s46, s37, 14\ns_add_u32 s46, s46, s28")
    TL, FL = t_loads(8, 8, "s45", 0, F*2), f_loads(9, 12, "s46", 1)
    def adv():
        for x in next_slot(): e(x)
        e("s_add_u32 s36, s36, 1")
    make_tag(e)
    for o in range(2):
        prep(o); emit(e, TL)
        for x in next_slot(): e(x)
    e("s_mov_b32 s36, 0")
    prep(); emit(e, TL)
    lane_flag_addr(e, 13, 28)
    e(f"s_mul_i32 s34, s22, {28*128}")
    e("s_lshl_b32 s26, s23, 7\ns_add_u32 s26, s26, s34")
    e("s_waitcnt vmcnt(12)")
    e("s_barrier")
    stamp(e, 2)
    e("s_cmp_lg_u32 s30, 0\ns_cbranch_scc1 L_pa_nf")
    flag_store(e, "s26")
    e("L_pa_nf:")
    e("s_waitcnt vmcnt(8)\ns_barrier")
    flag_read(e, 13, "s34")
    e("s_waitcnt vmcnt(0)\ns_barrier")
    flag_wait_all(e, "fwq", 13, "s34", preloaded=True)
    stamp(e, 1)
    emit(e, FL); adv()
    prep()
    emit(e, TL + FL); adv()
    e(f"v_min_u32 v13, 15, v2\nv_lshlrev_b32 v14, 7, v13")
    e(f"s_lshl_b32 s26, s23, 10\ns_add_u32 s26, s26, {FL_WV}\ns_lshl_b32 s27, s22, 10\ns_add_u32 s27, s27, {FL_XR - 1024}")
    e("v_mov_b32 v3, s26\nv_mov_b32 v4, s27\nv_cmp_gt_u32 vcc, 8, v13\ns_nop 1\nv_cndmask_b32 v3, v4, v3, vcc\nv_add_u32 v13, v14, v3")
    e("s_lshl_b32 s54, s22, 7\ns_add_u32 s54, s54, s26")
    srd(e, 16, P_WS, WS_XR, SZ_XR)
    e("L_ga_ptop:")
    prep()
    e("s_waitcnt vmcnt(8)\ns_barrier")
    emit(e, TL + FL); adv()
    e("s_cmp_lt_u32 s36, 50\ns_cbranch_scc1 L_ga_ptop")
    e("s_lshl_b32 s55, s22, 19\ns_lshl_b32 s58, s23, 18\ns_and_b32 s59, s23, 3\ns_lshl_b32 s27, s22, 1")
    e("s_mov_b32 s52, 0\ns_mov_b32 s34, 0")
    def prepc(own=None, pos="s36"):
        if own is None:
            chunk_of_pos(e, pos, "s59", "s37", "s38", "s39", 14, LEAD)
            e("s_add_u32 s37, s37, s27\ns_add_u32 s37, s37, 2\ns_and_b32 s37, s37, 15")
        else:
            e(f"s_add_u32 s37, s27, {own}")
        e("s_lshl_b32 s45, s37, 14\ns_add_u32 s45, s45, s58")
        e("s_lshl_b32 s46, s37, 15\ns_add_u32 s46, s46, s55\ns_add_u32 s47, s46, 16384")
    WL, X0, X1 = f_loads(9, 12, "s45", 0), f_loads(9, 16, "s46", 1), f_loads(9, 16, "s47", 2)
    def need(tag, xr_only=False):
        e("s_lshr_b32 s38, s37, 1")
        e(f"s_lshl_b32 s38, {0x100 if xr_only else 0x101}, s38")
        e("s_andn2_b32 s39, s38, s52")
        e(f"s_cbranch_scc0 L_{tag}_ok")
        e(f"s_mov_b32 s35, {SPIN}")
        e(f"L_{tag}_rd:")
        flag_read(e, 13, "s34")
        e("s_waitcnt vmcnt(0)")
        flag_mask(e)
        e("s_nop 1\ns_mov_b32 s52, vcc_lo")
        e("s_andn2_b32 s39, s38, s52")
        e(f"s_cbranch_scc0 L_{tag}_ok")
        e(f"s_sleep {PSLEEP}")
        e("s_sub_u32 s35, s35, 1\ns_cmp_lg_u32 s35, 0")
        e(f"s_cbranch_scc1 L_{tag}_rd")
        e(f"L_{tag}_ok:")
    prep()
    e("s_waitcnt vmcnt(8)\ns_barrier")
    flag_read(e, 13, "s34")
    emit(e, TL + FL); adv()
    for k in range(3):
        prep()
        e(f"s_waitcnt vmcnt({8 if k == 0 else 12})\ns_barrier")
        if k == 0:
            flag_mask(e)
            e("s_nop 1\ns_mov_b32 s52, vcc_lo")
        emit(e, TL + FL)
        if k < 2: prepc(k)
        else: prepc(None, "s34")
        need(f"fx{k}", True)
        emit(e, X1); adv()
    srd(e, 12, P_WS, WS_WV, SZ_WQ)
    stamp(e, 3)
    prepc(0)
    e("s_waitcnt vmcnt(12)\ns_barrier")
    emit(e, X0)
    for x in next_slot(): e(x)
    prepc(1)
    e("s_waitcnt vmcnt(4)\ns_barrier")
    emit(e, X0)
    for x in next_slot(): e(x)
    e("s_mov_b32 s36, 0")
    prepc()
    e("s_waitcnt vmcnt(4)\ns_barrier")
    emit(e, X0)
    e("s_waitcnt vmcnt(4)\ns_barrier")
    e("s_cmp_lg_u32 s30, 0\ns_cbranch_scc1 L_pc_nf")
    flag_store(e, "s54")
    e("L_pc_nf:")
    need("fw0")
    stamp(e, 5)
    emit(e, WL); adv()
    prepc()
    need("fw1")
    emit(e, WL + X0 + X1); adv()
    e("L_gc_ptop:")
    prepc()
    e("s_waitcnt vmcnt(12)\ns_barrier")
    need("fw2")
    if CPF & 4:
        e("s_xor_b32 s26, s36, 11\ns_or_b32 s26, s26, s30\ns_cmp_lg_u32 s26, 0\ns_cbranch_scc1 L_nct3")
        code_touch(e, (0,))
        e("L_nct3:")
    emit(e, WL + X0 + X1); adv()
    e("s_cmp_lt_u32 s36, 14\ns_cbranch_scc1 L_gc_ptop")
    e("s_waitcnt vmcnt(12)\ns_barrier\ns_waitcnt vmcnt(0)\ns_barrier")
    e("s_or_b32 s26, s2, s30\ns_cmp_lg_u32 s26, 0\ns_cbranch_scc1 L_pc_end")
    lane_flag_addr(e, 13, 64)
    e(f"s_mov_b32 s34, {FL_XR}")
    flag_wait_all(e, "fall", 13, "s34")
    e(f"s_mov_b32 s26, {FL_E}")
    flag_store(e, "s26")
    e("L_pc_end:")
    stamp_flush(e, "prod")
    e("s_endpgm")

FAKEB = 0
PFDELAY = 0
def spare(e):
    srd(e, 8, P_U, 0, D*D*2)
    srd(e, 12, P_X, 0, S*D*2)
    srd(e, 16, P_WS, WS_XR, SZ_XR)
    e("s_mov_b32 s22, s20\ns_sub_u32 s24, s21, 28\ns_add_u32 s23, s22, s24\ns_and_b32 s23, s23, 7")
    e("s_mov_b32 s53, 0")
    e("s_cmp_ge_u32 s25, 4\ns_cbranch_scc1 L_pb")
    if CPF & 1:
        e("s_cmp_lg_u32 s25, 0\ns_cbranch_scc1 L_nct1")
        code_touch(e)
        e("L_nct1:")
    e("s_lshr_b32 s30, s25, 1\ns_and_b32 s31, s25, 1")
    t_addr(e, "R", "s31", 16)
    e("v_lshrrev_b32 v5, 1, v4\nv_xor_b32 v5, v5, v3\nv_lshlrev_b32 v5, 4, v5")
    e(f"s_lshl_b32 s26, s30, 14\ns_add_u32 s26, s26, {UNIT}")
    e("v_lshlrev_b32 v6, 7, v4\nv_add3_u32 v20, v5, v6, s26\nv_xor_b32 v21, 64, v20")
    P = Phase(); P.F0, P.F1 = ACC + 128, ACC + 176
    P.addr = [(8+q, 16+q) for q in range(4)] + [(12, 20), (13, 21)]
    def reads(Fb, ks):
        out = []
        for a in range(4):
            for t in range(2):
                out.append(f"ds_read_b64_tr_b16 {vr(Fb+32+4*a+2*t,2)}, v{8+a} offset:{ks*8192 + t*1024}")
            for h in range(2):
                out.append(f"ds_read_b128 {vr(Fb+4*(2*a+h),4)}, v{12+ks} offset:{(2*a+h)*2048}")
        return out
    def mfmas(Fb):
        return [f"v_mfma_f32_16x16x32_bf16 {vr(ACC+16*a+4*b,4)}, {vr(Fb+32+4*b,4)}, {vr(Fb+4*a,4)}, {vr(ACC+16*a+4*b,4)}"
                for a, b in snake(8, 4)]
    P.reads, P.mfmas = reads, mfmas
    stamp(e, 1)
    e("L_bl:")
    for n in range(128): e(f"v_mov_b32 v{ACC+n}, 0")
    consumer(e, "gb", P, 16, drain=True)
    e("s_lshl_b32 s40, s22, 5\ns_lshl_b32 s41, s23, 2\ns_add_u32 s40, s40, s41\ns_lshl_b32 s41, s31, 1\ns_add_u32 s40, s40, s41")
    e("s_lshl_b32 s40, s40, 14\ns_lshl_b32 s41, s30, 13\ns_add_u32 s40, s40, s41")
    e("s_add_u32 s41, s40, 4096\ns_add_u32 s42, s40, 16384\ns_add_u32 s43, s40, 20480")
    e("v_lshlrev_b32 v3, 4, v2")
    n = 0
    for u in range(2):
        for a in range(8):
            d = P.F0 + 4*n; n += 1
            pack_pair(e, d, ACC + 16*a + 4*(2*u), ACC + 16*a + 4*(2*u+1))
            e(f"buffer_store_dwordx4 {vr(d,4)}, v3, s[16:19], s{40+2*u+(a>>2)} offen offset:{(a&3)*1024} {STAUX}")
    e("s_xor_b32 s23, s23, 4\ns_add_u32 s53, s53, 1\ns_cmp_lt_u32 s53, 2\ns_cbranch_scc1 L_bl")
    stamp(e, 2)
    e("s_waitcnt vmcnt(0)\ns_barrier")
    stamp_flush(e, "bcons")
    e("s_endpgm")
    e("L_pb:")
    e("s_sub_u32 s30, s25, 4\ns_lshl_b32 s31, s30, 10\ns_lshl_b32 s32, s30, 12")
    t_voff(e, "R", 2048, None, 8)
    e("s_and_b32 s26, s30, 1\ns_lshl_b32 s26, s26, 2")
    e("v_or_b32 v5, s26, v3\nv_and_b32 v6, 7, v2\nv_xor_b32 v5, v5, v6\nv_lshlrev_b32 v5, 4, v5")
    e("s_lshl_b32 s26, s30, 3")
    e("v_lshrrev_b32 v6, 3, v2\nv_add_u32 v6, s26, v6\nv_lshlrev_b32 v6, 11, v6")
    e("v_add_u32 v9, v5, v6")
    def prep():
        e("s_and_b32 s34, s36, 15")
        chunk_of_pos(e, "s34", "s24", "s37", "s38", "s39", 16, LEAD)
        e(f"s_lshr_b32 s38, s36, 4\ns_lshl_b32 s38, s38, 2\ns_xor_b32 s38, s38, s23\ns_lshl_b32 s38, s38, 8\ns_lshl_b32 s45, s37, 17\ns_add_u32 s45, s45, s38")
        e(f"s_lshl_b32 s38, s22, 19\ns_lshl_b32 s46, s37, 7\ns_add_u32 s46, s46, s38")
    xl = []
    for u in range(2):
        for i in range(4):
            g = [f"s_add_u32 m0, s44, {(1+u)*UNIT + i*4096}"]
            g += [f"s_add_u32 s46, s46, {32*2048}" if (u or i) else "s_nop 0"]
            g.append("buffer_load_dwordx4 v9, s[12:15], s46 offen lds")
            xl.append(g)
    LD = t_loads(8, 8, "s45", 0, 2048) + xl
    def adv():
        for x in next_slot(): e(x)
        e("s_add_u32 s36, s36, 1")
    e(f"s_lshl_b32 s27, s22, 10\ns_lshl_b32 s26, s23, 7\ns_add_u32 s27, s27, s26\ns_add_u32 s27, s27, {FL_XR}")
    e("s_mov_b32 s36, 0")
    for _ in range(2):
        prep(); emit(e, LD); adv()
    make_tag(e)
    e("L_gb_ptop:")
    prep()
    e("s_waitcnt vmcnt(12)\ns_barrier")
    e("s_xor_b32 s26, s36, 19\ns_or_b32 s26, s26, s30\ns_cmp_lg_u32 s26, 0\ns_cbranch_scc1 L_pb_nf")
    flag_store(e, "s27")
    e("L_pb_nf:")
    if CPF & 2:
        e("s_xor_b32 s26, s36, 26\ns_or_b32 s26, s26, s30\ns_cmp_lg_u32 s26, 0\ns_cbranch_scc1 L_nct2")
        code_touch(e)
        e("L_nct2:")
    emit(e, LD); adv()
    e("s_cmp_lt_u32 s36, 32\ns_cbranch_scc1 L_gb_ptop")
    e("s_waitcnt vmcnt(12)\ns_barrier\ns_waitcnt vmcnt(0)\ns_barrier")
    e("s_barrier")
    e("s_cmp_lg_u32 s30, 0\ns_cbranch_scc1 L_pb_end")
    e("s_xor_b32 s27, s27, 512")
    flag_store(e, "s27")
    e("L_pb_end:")
    stamp_flush(e)
    e("s_endpgm")

def kernel(e):
    e(f".globl {NAME}\n.p2align 8\n.type {NAME},@function\n{NAME}:")
    if STAMP:
        for n in range(1, 8): e(f"s_mov_b64 s[{80+2*n}:{81+2*n}], 0")
    stamp(e, 0)
    e("s_load_dwordx16 s[60:75], s[0:1], 0")
    e("s_load_dwordx2 s[56:57], s[0:1], 64")
    e("s_cmp_ge_u32 s2, 256\ns_cbranch_scc1 L_end")
    e("s_and_b32 s20, s2, 7\ns_lshr_b32 s21, s2, 3")
    e("v_lshrrev_b32 v1, 6, v0\nv_and_b32 v2, 63, v0\ns_nop 0\nv_readfirstlane_b32 s25, v1")
    e("s_and_b32 s22, s20, 1\ns_lshl_b32 s22, s22, 2\ns_and_b32 s23, s21, 3\ns_add_u32 s22, s22, s23")
    e("s_lshr_b32 s23, s20, 1\ns_mul_i32 s23, s23, 7\ns_lshr_b32 s24, s21, 2\ns_add_u32 s23, s23, s24")
    e("s_add_u32 s24, s22, s23\ns_and_b32 s24, s24, 3")
    e("s_mov_b32 s33, 0")
    e(f"s_mov_b32 s26, {WS_FL + FL_E}")
    e("s_waitcnt lgkmcnt(0)")
    e("s_load_dwordx2 s[6:7], s[56:57], s26")
    srd(e, 48, P_WS, WS_FL, FL_BYTES)
    if CPF & 8:
        e("s_cmp_lg_u32 s25, 7\ns_cbranch_scc1 L_nct4")
        code_touch(e)
        e("L_nct4:")
    e("s_cmp_ge_u32 s21, 28\ns_cbranch_scc1 L_spare")
    dequant(e)
    e("s_cmp_ge_u32 s25, 4\ns_cbranch_scc1 L_mainp")
    main_consumer(e)
    e("L_mainp:")
    main_producer(e)
    e("L_spare:")
    spare(e)
    e("L_end:")
    e("s_endpgm")
    e("L_code_end:")
    e(f'.section .rodata,"a"\n.p2align 6\n.amdhsa_kernel {NAME}')
    e(f".amdhsa_next_free_vgpr 256\n.amdhsa_next_free_sgpr 96\n.amdhsa_accum_offset 256")
    e(".amdhsa_group_segment_fixed_size 0\n.amdhsa_kernarg_size 72\n.amdhsa_user_sgpr_count 2")
    e(".amdhsa_user_sgpr_kernarg_segment_ptr 1\n.amdhsa_system_sgpr_workgroup_id_x 1")
    e(".amdhsa_float_denorm_mode_32 3")
    e(".end_amdhsa_kernel")

HEADER = open("standalone__weight_only_int_quip__prompt.s.ref").read().split("; Override")[0]
ASLIST = False
def generate():
    e = Asm()
    out = HEADER
    if ASLIST:
        out += f"; @launch kernel={NAME} grid=(256,1,1) block=(512,1,1) lds={LDS_BYTES}\n"
    else:
        out += f"; @launch grid=(256,1,1) block=(512,1,1) lds={LDS_BYTES}\n"
    e('.amdgcn_target "amdgcn-amd-amdhsa--gfx950"\n.text')
    kernel(e)
    return out + e.text()

if __name__ == "__main__":
    args = [a for a in sys.argv[1:] if not a.startswith("-")]
    for a in sys.argv[1:]:
        if a.startswith("-"):
            k, v = a[1:].split("=", 1)
            globals()[k] = eval(v)
    path = args[0] if args else "standalone__weight_only_int_quip__prompt.s"
    open(path, "w").write(generate())
    print("wrote", path)
```

```python
import sys, re

S, D, F = 2048, 1024, 3584
WS_WQ, WS_WV, WS_XR, WS_FL, WS_ST = 0, 8 << 20, 16 << 20, 24 << 20, 64 << 20
SZ_WQ, SZ_XR = D * F * 2, S * D * 2
FL_WQ, FL_WV, FL_XR, FL_E = 0, 224 * 128, 448 * 128, 512 * 128
FL_BYTES = 513 * 128
NAME = "standalone__weight_only_int_quip__prompt_kernel"

NOMFMA = NOREAD = NOLOAD = False
STAMP = False
STAUX = "sc1"
OUTAUX = "sc1"
QAUX = ""
SKEW = True
LEAD = 2
NTOUCH = 0
XUT = 0
UNIT = 16384
SLOT = 3 * UNIT
LDS_BYTES = 3 * SLOT
PREB = 2
SALU_PER = 1
SPIN = 1 << 17
PSLEEP = 2
ACC = 28

class Asm:
    def __init__(self):
        self.L = []
    def __call__(self, s):
        for line in s.split("\n"):
            line = line.strip()
            if NOMFMA and line.startswith("v_mfma"): continue
            if NOREAD and line.startswith("ds_read"): continue
            if NOLOAD and line.startswith("buffer_load") and line.endswith("lds"): continue
            if line:
                self.L.append(("    " if not line.endswith(":") and not line.startswith(".") else "") + line)
    def text(self):
        return "\n".join(self.L) + "\n"

def vr(b, n=1):
    return f"v{b}" if n == 1 else f"v[{b}:{b+n-1}]"

P_X, P_QW, P_SC, P_ZR, P_U, P_V, P_OUT, P_WS = 60, 62, 64, 66, 68, 70, 72, 56
def srd(e, d, base, add, nbytes):
    if add:
        e(f"s_add_u32 s{d}, s{base}, {add}\ns_addc_u32 s{d+1}, s{base+1}, 0")
    else:
        e(f"s_mov_b32 s{d}, s{base}\ns_mov_b32 s{d+1}, s{base+1}")
    e(f"s_mov_b32 s{d+2}, {nbytes}\ns_mov_b32 s{d+3}, 0x20000")

DIAG = ""
def stamp(e, n, diag=""):
    if n in (3, 5) and diag != DIAG: return
    if STAMP:
        e(f"s_memrealtime s[{80+2*n}:{81+2*n}]")
        if n in (1, 2):
            e(f"s_memtime s[{90+2*n}:{91+2*n}]")
DBGSTAMP = False
ECHO = None
def stamp_flush(e, role=""):
    if not STAMP:
        return
    e("s_waitcnt lgkmcnt(0) vmcnt(0)")
    stamp(e, 4)
    e("s_waitcnt lgkmcnt(0)")
    if ECHO:
        if role == "cons":
            a_, b_, mult = ECHO
            e("s_or_b32 s26, s2, s25\ns_cmp_lg_u32 s26, 0\ns_cbranch_scc1 L_echo_end")
            e(f"s_sub_u32 s26, s{80+2*b_}, s{80+2*a_}\ns_mul_i32 s26, s26, {mult}\ns_add_u32 s26, s26, 6000")
            e("L_echo:")
            e("s_memrealtime s[28:29]\ns_waitcnt lgkmcnt(0)")
            e("s_sub_u32 s27, s28, s80\ns_cmp_lt_u32 s27, s26\ns_cbranch_scc1 L_echo")
            e("L_echo_end:")
        return
    if DBGSTAMP:
        srd(e, 76, 74, 0, 256)
        e("v_mov_b32 v4, 0\ns_mov_b64 exec, 1")
        sel = {"cons": [(0, 0, 1), (1, 1, 1), (1, 2, 0), (2, 3, 1), (2, 4, 0), (3, 5, 1), (3, 6, 0), (5, 7, 1), (5, 8, 0), (4, 9, 0), (0, 15, 0)],
               "prod": [(2, 10, 0), (1, 11, 0), (3, 12, 0)], "bcons": [(2, 13, 1), (2, 14, 0)]}.get(role, [])
        for k, (st, w, inv) in enumerate(sel):
            e(f"v_mov_b32 v{8+k}, s{80+2*st}")
            if inv: e(f"v_not_b32 v{8+k}, v{8+k}")
            e(f"buffer_atomic_umax v{8+k}, v4, s[76:79], 0 offen offset:{4*w}")
        return
    srd(e, 76, P_WS, WS_ST, 1 << 20)
    e(f"s_lshl_b32 s75, s2, 3\ns_add_u32 s75, s75, s25\ns_lshl_b32 s75, s75, 6")
    for n in range(16):
        e(f"v_mov_b32 v{8+n}, s{80+n}")
    e("v_mov_b32 v4, 0")
    e("s_mov_b64 exec, 1")
    for n in range(4):
        e(f"buffer_store_dwordx4 v[{8+4*n}:{11+4*n}], v4, s[76:79], s75 offen offset:{16*n}")

def chunk_of_pos(e, spos, scls, sdst, st1, st2, nch, lead, sxor=None):
    if not SKEW:
        e(f"s_mov_b32 {sdst}, {spos}")
        return
    e(f"s_sub_u32 {st1}, {spos}, {scls}")
    e(f"s_and_b32 {st1}, {st1}, 3")
    e(f"s_cmp_le_u32 {st1}, {lead}")
    e(f"s_cselect_b32 {st2}, -1, 0")
    e(f"s_cmp_eq_u32 {st1}, 0")
    e(f"s_cselect_b32 {st2}, {lead}, {st2}")
    e(f"s_cmp_lt_u32 {spos}, {scls}")
    e(f"s_cselect_b32 {st2}, 0, {st2}")
    e(f"s_sub_u32 {st1}, {spos}, {st1}")
    e(f"s_cmp_ge_i32 {st1}, {nch-3}")
    e(f"s_cselect_b32 {st2}, 0, {st2}")
    e(f"s_add_u32 {sdst}, {spos}, {st2}")
    if sxor:
        e(f"s_xor_b32 {sdst}, {sdst}, {sxor}")

def interleave(e, mfmas, others, per=1, lead=0):
    reads = [x for x in others if x.startswith("ds_")]
    salu = [x for x in others if x.startswith("s_")]
    valu = [x for x in others if x.startswith("v_")]
    def ready(x):
        ops = [t.strip(",") for t in x.split()[1:]]
        dst, srcs = ops[0], ops[1:]
        if any(re.search(rf", {dst}( |$)", r) for r in reads): return False
        if any(y.split()[1].strip(",") in srcs for y in salu): return False
        return True
    for _ in range(lead):
        if reads: e(reads.pop(0))
    for k, m in enumerate(mfmas):
        e(m)
        c = 0
        for _ in range(per):
            if reads: e(reads.pop(0)); c += 1
        while c < 2 and valu and ready(valu[0]):
            e(valu.pop(0)); c += 1
        for _ in range(SALU_PER if c else SALU_PER + 1):
            if salu: e(salu.pop(0))
    for x in reads + salu + valu:
        e(x)

def pack_pair(e, dst, c0, c1):
    e(f"v_cvt_pk_bf16_f32 v{dst}, v{c0}, v{c0+1}")
    e(f"v_cvt_pk_bf16_f32 v{dst+1}, v{c0+2}, v{c0+3}")
    e(f"v_cvt_pk_bf16_f32 v{dst+2}, v{c1}, v{c1+1}")
    e(f"v_cvt_pk_bf16_f32 v{dst+3}, v{c1+2}, v{c1+3}")

def next_slot(s="s33"):
    return [f"s_add_u32 {s}, {s}, {SLOT}", f"s_cmp_eq_u32 {s}, {3*SLOT}", f"s_cselect_b32 {s}, 0, {s}"]

class Phase:
    pass

def consumer(e, tag, P, nst, stampn=None, drain=False):
    def upd():
        return [f"v_add_u32 v{c}, s33, v{b}" for (c, b) in P.addr]
    for x in upd(): e(x)
    e(f"s_mov_b32 s36, {nst}")
    e("s_barrier")
    if stampn is not None: stamp(e, stampn)
    for r in P.reads(P.F0, 0): e(r)
    e(f"s_branch L_{tag}_mid")
    m1 = P.mfmas(P.F1)
    e(f"L_{tag}_top:")
    for m in m1[:PREB]: e(m)
    e("s_barrier")
    interleave(e, m1[PREB:], P.reads(P.F0, 0), lead=1)
    e(f"L_{tag}_mid:")
    e("s_waitcnt lgkmcnt(0)")
    tail = next_slot() + ["s_sub_u32 s36, s36, 1", "s_cmp_lg_u32 s36, 0"] + upd()
    interleave(e, P.mfmas(P.F0), P.reads(P.F1, 1) + tail)
    e("s_waitcnt vmcnt(0) lgkmcnt(0)" if drain else "s_waitcnt lgkmcnt(0)")
    e(f"s_cbranch_scc1 L_{tag}_top")
    for m in m1: e(m)

def emit(e, groups):
    for g in groups:
        for x in g: e(x)

def snake(na, nb):
    return [(a, (b if a % 2 == 0 else nb - 1 - b)) for a in range(na) for b in range(nb)]

def t_addr(e, kind, swt, dst):
    e("v_lshrrev_b32 v3, 4, v2\nv_and_b32 v4, 15, v2\nv_lshrrev_b32 v5, 2, v4\nv_and_b32 v6, 3, v4")
    e(f"v_lshlrev_b32 v7, {2 if kind == 'F' else 3}, v3\nv_add_u32 v7, v7, v5\nv_lshlrev_b32 v7, 8, v7")
    e("v_lshlrev_b32 v6, 3, v6\nv_add_u32 v7, v7, v6")
    e("v_and_b32 v6, 1, v3\nv_lshlrev_b32 v6, 2, v6\nv_or_b32 v6, v6, v5")
    e(f"s_lshl_b32 s26, {swt}, 2")
    e("v_xor_b32 v6, s26, v6")
    for q in range(4):
        e(f"v_xor_b32 v5, {q}, v6\nv_lshlrev_b32 v5, 5, v5\nv_add_u32 v{dst+q}, v7, v5")

def t_voff(e, kind, trow, scol, dst):
    e("v_lshrrev_b32 v3, 4, v2\nv_and_b32 v4, 15, v2")
    if kind == "F":
        e("s_and_b32 s26, s30, 1\ns_lshl_b32 s26, s26, 2")
    else:
        e("s_and_b32 s26, s30, 2\ns_lshl_b32 s26, s26, 1")
    e("v_or_b32 v5, s26, v3\nv_lshlrev_b32 v5, 1, v5\nv_xor_b32 v5, v5, v4\nv_lshlrev_b32 v5, 4, v5")
    e("s_lshl_b32 s26, s30, 2")
    e(f"v_add_u32 v6, s26, v3\nv_mul_u32_u24 v6, {trow}, v6")
    e(f"v_add_u32 v5, v5, v6")
    if scol: e(f"v_add_u32 v{dst}, {scol}, v5")
    else: e(f"v_mov_b32 v{dst}, v5")

def t_loads(vreg, srdn, soff, unit, trow):
    out = []
    for i in range(4):
        if i == 0:
            g = [f"s_add_u32 s44, s33, s31", f"s_add_u32 m0, s44, {unit*UNIT}", "s_nop 0"]
        else:
            g = [f"s_add_u32 m0, s44, {unit*UNIT + i*4096}", f"s_add_u32 {soff}, {soff}, {16*trow}"]
        g.append(f"buffer_load_dwordx4 v{vreg}, s[{srdn}:{srdn+3}], {soff} offen lds")
        out.append(g)
    return out

def f_loads(vreg, srdn, soff, unit):
    out = []
    for i in range(4):
        g = ["s_add_u32 s43, s33, s32", f"s_add_u32 m0, s43, {unit*UNIT}", "s_nop 0"] if i == 0 else []
        g.append(f"buffer_load_dwordx4 v{vreg}, s[{srdn}:{srdn+3}], {soff} offen offset:{i*1024} lds")
        out.append(g)
    return out

CPF = 0
_ct = [0]
def code_touch(e, halves=(0, 1)):
    _ct[0] += 1
    lab = f"L_ct{_ct[0]}"
    e("s_getpc_b64 s[76:77]")
    e(f"{lab}:")
    e(f"s_sub_u32 s76, s76, {lab}-{NAME}\ns_subb_u32 s77, s77, 0")
    e(f"s_mov_b32 s78, L_code_end-{NAME}\ns_mov_b32 s79, 0x20000")
    e("v_lshlrev_b32 v27, 7, v2")
    for h in halves:
        e(f"s_movk_i32 s3, {h*8192}")
        e("buffer_load_dword v23, v27, s[76:79], s3 offen")

def make_tag(e):
    e("s_waitcnt lgkmcnt(0)")
    e("s_mul_i32 s4, s6, 0x9e3779b1\ns_add_u32 s4, s4, 0x7f4a7c15")
    e("s_mul_i32 s5, s7, 0x85ebca6b\ns_add_u32 s5, s5, 0xc2b2ae35")
def flag_store(e, soff):
    e("v_mov_b32 v10, s4\nv_mov_b32 v11, s5\nv_mov_b32 v12, 0")
    e("s_mov_b64 exec, 1")
    e(f"buffer_store_dwordx2 v[10:11], v12, s[48:51], {soff} offen sc1")
    e("s_mov_b64 exec, -1")
def flag_read(e, vaddr, soff):
    e(f"buffer_load_dwordx2 v[10:11], v{vaddr}, s[48:51], {soff} offen sc1")
def flag_mask(e):
    e("v_cmp_eq_u64 vcc, s[4:5], v[10:11]")
def flag_wait_all(e, tag, vaddr, soff, preloaded=False):
    e(f"s_mov_b32 s35, {SPIN}")
    if preloaded: e(f"s_branch L_{tag}_chk")
    e(f"L_{tag}_rd:")
    flag_read(e, vaddr, soff)
    e("s_waitcnt vmcnt(0)")
    e(f"L_{tag}_chk:")
    e("v_cmp_ne_u64 vcc, s[4:5], v[10:11]")
    e(f"s_cbranch_vccz L_{tag}_ok")
    e(f"s_sleep {PSLEEP}")
    e("s_sub_u32 s35, s35, 1\ns_cmp_lg_u32 s35, 0")
    e(f"s_cbranch_scc1 L_{tag}_rd")
    e(f"L_{tag}_ok:")
def lane_flag_addr(e, dst, n):
    e(f"v_min_u32 v{dst}, {n-1}, v2\nv_lshlrev_b32 v{dst}, 7, v{dst}")

def dequant(e):
    srd(e, 8, P_QW, 0, D*F*4)
    srd(e, 12, P_SC, 0, 32*F*2)
    srd(e, 16, P_ZR, 0, 32*F*2)
    e("v_lshrrev_b32 v3, 3, v2\nv_and_b32 v4, 7, v2")
    e(f"v_mul_u32_u24 v5, {F*4}, v3\nv_lshlrev_b32 v6, 4, v4\nv_add_u32 v5, v5, v6")
    e(f"v_add_u32 v8, {8*F*4}, v5")
    e("v_lshlrev_b32 v7, 3, v4")
    e("s_lshl_b32 s26, s22, 3\ns_add_u32 s26, s26, s25")
    e(f"s_mul_i32 s27, s26, {16*F*4}\ns_lshl_b32 s28, s23, 9\ns_add_u32 s27, s27, s28")
    e(f"s_lshr_b32 s28, s26, 1\ns_mul_i32 s28, s28, {F*2}\ns_lshl_b32 s29, s23, 8\ns_add_u32 s28, s28, s29")
    Q, SC, ZR, T = 32, 64, 72, 80
    for j in range(2):
        for o in range(2):
            for t in range(2):
                e(f"buffer_load_dwordx4 {vr(Q+16*j+8*o+4*t,4)}, v{5 if o == 0 else 8}, s[8:11], s27 offen offset:{j*256+t*128} {QAUX}")
        for t in range(2):
            e(f"buffer_load_dwordx2 {vr(SC+4*j+2*t,2)}, v7, s[12:15], s28 offen offset:{j*128+t*64}")
            e(f"buffer_load_dwordx2 {vr(ZR+4*j+2*t,2)}, v7, s[16:19], s28 offen offset:{j*128+t*64}")
    stamp(e, 3, "start")
    e("v_lshrrev_b32 v1, 2, v4\nv_lshlrev_b32 v1, 13, v1\nv_and_b32 v6, 3, v4\nv_lshlrev_b32 v6, 8, v6")
    e("v_lshlrev_b32 v3, 4, v3\nv_add3_u32 v1, v1, v6, v3")
    e("s_mul_i32 s29, s22, 56\ns_lshl_b32 s30, s23, 1\ns_add_u32 s29, s29, s30\ns_lshl_b32 s29, s29, 14")
    e("s_lshl_b32 s30, s25, 10\ns_add_u32 s29, s29, s30")
    e(f"s_add_u32 s30, s30, {UNIT}\nv_add_u32 v9, s30, v1")
    srd(e, 8, P_V, 0, F*F*2)
    srd(e, 12, P_WS, WS_WQ, SZ_WQ)
    srd(e, 16, P_WS, WS_WV, SZ_WQ)
    for j in range(2):
        e(f"s_waitcnt vmcnt({8*(1-j) + 2*j})")
        if j == 0: stamp(e, 5, "start")
        if j == 1: stamp(e, 3, "start2")
        for n in range(4):
            e(f"v_lshlrev_b32 v{T+2*n}, 16, v{SC+4*j+n}\nv_and_b32 v{T+2*n+1}, 0xffff0000, v{SC+4*j+n}")
            e(f"v_lshlrev_b32 v{T+8+2*n}, 16, v{ZR+4*j+n}\nv_and_b32 v{T+8+2*n+1}, 0xffff0000, v{ZR+4*j+n}")
        for o in range(2):
            q = Q + 16*j + 8*o
            for n in range(8): e(f"v_cvt_f32_i32 v{q+n}, v{q+n}")
            for n in range(8): e(f"v_cvt_pk_bf16_f32 v{q+n}, 0, v{q+n}")
            for n in range(8): e(f"v_sub_f32 v{q+n}, v{q+n}, v{T+8+n}")
            for n in range(8): e(f"v_cvt_pk_bf16_f32 v{q+n}, 0, v{q+n}")
            for n in range(8): e(f"v_mul_f32 v{q+n}, v{q+n}, v{T+n}")
            for n in range(4): e(f"v_cvt_pk_bf16_f32 v{q+n}, v{q+2*n}, v{q+2*n+1}")
            e(f"buffer_store_dwordx4 {vr(q,4)}, v1, s[12:15], s29 offen offset:{o*128} {STAUX}")
            e(f"ds_write_b128 v9, {vr(q,4)} offset:{j*SLOT + o*128}")
        e("s_add_u32 s29, s29, 16384")
    stamp(e, 5, "start2")

def main_consumer(e):
    P = Phase(); P.F0, P.F1 = ACC + 128, ACC + 176
    e("s_lshr_b32 s30, s25, 1\ns_and_b32 s31, s25, 1")
    t_addr(e, "F", "s31", 16)
    e(f"s_lshl_b32 s26, s30, 12\ns_add_u32 s26, s26, {UNIT}\nv_lshlrev_b32 v5, 4, v2\nv_add_u32 v20, s26, v5")
    P.addr = [(8+q, 16+q) for q in range(4)] + [(12, 20)]
    def reads(Fb, ks):
        out = []
        for a in range(4):
            out.append(f"ds_read_b128 {vr(Fb+4*a,4)}, v12 offset:{ks*8192 + a*1024}")
            for t in range(2):
                out.append(f"ds_read_b64_tr_b16 {vr(Fb+16+4*a+2*t,2)}, v{8+a} offset:{ks*4096 + t*8192}")
        return out
    def mfmas(Fb):
        return [f"v_mfma_f32_16x16x32_bf16 {vr(ACC+16*a+4*b,4)}, {vr(Fb+4*a,4)}, {vr(Fb+16+4*b,4)}, {vr(ACC+16*a+4*b,4)}"
                for a, b in snake(4, 4)]
    P.reads, P.mfmas = reads, mfmas
    for n in range(128): e(f"v_mov_b32 v{ACC+n}, 0")
    e("s_waitcnt vmcnt(0) lgkmcnt(0)\ns_barrier")
    e("v_lshlrev_b32 v3, 7, v2")
    if XUT:
        srd(e, 40, P_X, 0, S*D*2)
        srd(e, 44, P_U, 0, D*D*2)
        e("s_lshl_b32 s26, s2, 2\ns_add_u32 s26, s26, s25\ns_lshl_b32 s27, s26, 13")
        e("s_cmp_ge_u32 s26, 256\ns_cbranch_scc1 L_tx")
        e("buffer_load_dword v23, v3, s[44:47], s27 offen")
        e("s_branch L_td")
        e("L_tx:")
        e(f"s_sub_u32 s27, s27, {256*8192}")
        e("buffer_load_dword v23, v3, s[40:43], s27 offen")
        e("L_td:")
    if NTOUCH:
        e(f"s_lshl_b32 s26, s2, 2\ns_add_u32 s26, s26, s25\ns_lshl_b32 s26, s26, 13")
        for n in range(NTOUCH):
            e(f"buffer_load_dword v{24+n%4}, v3, s[8:11], s26 offen")
            e(f"s_add_u32 s26, s26, {224*4*8192}")
    consumer(e, "ga", P, 56, stampn=1)
    stamp(e, 2)
    e("s_lshl_b32 s40, s23, 5\ns_lshl_b32 s41, s22, 2\ns_add_u32 s40, s40, s41\ns_lshl_b32 s41, s30, 1\ns_add_u32 s40, s40, s41")
    e("s_lshl_b32 s40, s40, 13\ns_lshl_b32 s42, s31, 12\ns_add_u32 s40, s40, s42")
    e("s_add_u32 s41, s40, 8192")
    e("s_mov_b32 s43, s33")
    for x in next_slot("s43"): e(x)
    e("s_cmp_eq_u32 s30, 0\ns_cselect_b32 s43, s33, s43\ns_add_u32 s43, s43, s42")
    e("v_and_b32 v3, 0x33, v2\nv_lshrrev_b32 v4, 1, v2\nv_and_b32 v4, 4, v4\nv_or_b32 v3, v3, v4\nv_lshlrev_b32 v3, 4, v3")
    e("v_and_b32 v4, 4, v2\nv_lshlrev_b32 v4, 8, v4\nv_or_b32 v3, v3, v4")
    e("v_add_u32 v4, s43, v3")
    n = 0
    for u in range(2):
        for b in range(4):
            d = P.F0 + 4*n; n += 1
            pack_pair(e, d, ACC + 16*(2*u) + 4*b, ACC + 16*(2*u+1) + 4*b)
            e(f"buffer_store_dwordx4 {vr(d,4)}, v3, s[16:19], s{40+u} offen offset:{(b>>1)*2048 + (b&1)*128} {STAUX}")
            e(f"ds_write_b128 v4, {vr(d,4)} offset:{u*8192 + (b>>1)*2048 + (b&1)*128}")
    for n in range(64): e(f"v_mov_b32 v{ACC+n}, 0")
    srd(e, 16, P_OUT, 0, S*F*2)
    e("v_lshlrev_b32 v16, 4, v2")
    e(f"s_lshl_b32 s26, s25, 12\ns_add_u32 s26, s26, {UNIT}\nv_add_u32 v17, s26, v16")
    P.addr = [(9, 17), (8, 16)]
    def reads(Fb, ks):
        xr = [f"ds_read_b128 {vr(Fb+32+4*b,4)}, v9 offset:{ks*UNIT + b*1024}" for b in range(4)]
        wv = [f"ds_read_b128 {vr(Fb+4*a,4)}, v8 offset:{ks*8192 + a*1024}" for a in range(8)]
        return xr + wv
    def mfmas(Fb):
        return [f"v_mfma_f32_16x16x32_bf16 {vr(ACC+16*a+4*b,4)}, {vr(Fb+4*a,4)}, {vr(Fb+32+4*b,4)}, {vr(ACC+16*a+4*b,4)}"
                for a, b in snake(8, 4)]
    P.reads, P.mfmas = reads, mfmas
    e("s_waitcnt lgkmcnt(0)")
    consumer(e, "gc", P, 16, stampn=3, drain=True)
    stamp(e, 5)
    e("v_lshrrev_b32 v3, 4, v2\nv_and_b32 v4, 15, v2")
    e(f"s_lshl_b32 s40, s22, 8\ns_lshl_b32 s41, s25, 6\ns_add_u32 s40, s40, s41\ns_mul_i32 s40, s40, {F*2}")
    e("s_lshl_b32 s41, s23, 8\ns_add_u32 s40, s40, s41")
    e(f"v_and_b32 v5, 7, v4\nv_mul_u32_u24 v5, {F*2}, v5")
    e("v_lshlrev_b32 v6, 4, v3\nv_and_b32 v7, 8, v4\nv_lshlrev_b32 v7, 3, v7\nv_add3_u32 v6, v5, v6, v7")
    e(f"v_add_u32 v7, {8*F*2}, v6")
    n = 0
    for b in range(4):
        for Ln in range(2):
            d = P.F0 + 12*(n % 8); n += 1
            for h in range(2):
                u = 2*Ln + h
                pack_pair(e, d + 4*h, ACC + 16*(2*u) + 4*b, ACC + 16*(2*u+1) + 4*b)
            for j in range(4): e(f"v_mov_b32 v{d+8+j}, v{d+j}")
            for j in range(4): e(f"v_mov_b32_dpp v{d+j}, v{d+4+j} row_ror:8 row_mask:0xf bank_mask:0xc")
            for j in range(4): e(f"v_mov_b32_dpp v{d+4+j}, v{d+8+j} row_ror:8 row_mask:0xf bank_mask:0x3")
            e(f"buffer_store_dwordx4 {vr(d,4)}, v6, s[16:19], s40 offen offset:{Ln*128} {OUTAUX}")
            e(f"buffer_store_dwordx4 {vr(d+4,4)}, v7, s[16:19], s40 offen offset:{Ln*128} {OUTAUX}")
        e(f"s_add_u32 s40, s40, {16*F*2}")
    stamp_flush(e, "cons")
    e("s_endpgm")

def main_producer(e):
    e("s_sub_u32 s30, s25, 4\ns_lshl_b32 s31, s30, 10\ns_lshl_b32 s32, s30, 12")
    e("s_lshl_b32 s27, s23, 8")
    t_voff(e, "F", F*2, "s27", 8)
    e("v_lshlrev_b32 v5, 4, v2\nv_add_u32 v9, s32, v5")
    e(f"s_mul_i32 s28, s22, {112*8192}")
    e("s_and_b32 s29, s20, 1")
    e("s_lshl_b32 s53, s23, 1")
    def prep(own=None):
        if own is None:
            chunk_of_pos(e, "s36", "s24", "s37", "s38", "s39", 54, LEAD, "s29")
            e("s_cmp_ge_u32 s37, s53\ns_cselect_b32 s38, 2, 0\ns_add_u32 s37, s37, s38")
        else:
            e(f"s_add_u32 s37, s53, {own}")
        e(f"s_mul_i32 s45, s37, {64*F*2}")
        e("s_lshl_b32 s46, s37, 14\ns_add_u32 s46, s46, s28")
    TL, FL = t_loads(8, 8, "s45", 0, F*2), f_loads(9, 12, "s46", 1)
    def adv():
        for x in next_slot(): e(x)
        e("s_add_u32 s36, s36, 1")
    make_tag(e)
    for o in range(2):
        prep(o); emit(e, TL)
        for x in next_slot(): e(x)
    e("s_mov_b32 s36, 0")
    prep(); emit(e, TL)
    lane_flag_addr(e, 13, 28)
    e(f"s_mul_i32 s34, s22, {28*128}")
    e("s_lshl_b32 s26, s23, 7\ns_add_u32 s26, s26, s34")
    e("s_waitcnt vmcnt(12)")
    e("s_barrier")
    stamp(e, 2)
    e("s_cmp_lg_u32 s30, 0\ns_cbranch_scc1 L_pa_nf")
    flag_store(e, "s26")
    e("L_pa_nf:")
    e("s_waitcnt vmcnt(8)\ns_barrier")
    flag_read(e, 13, "s34")
    e("s_waitcnt vmcnt(0)\ns_barrier")
    flag_wait_all(e, "fwq", 13, "s34", preloaded=True)
    stamp(e, 1)
    emit(e, FL); adv()
    prep()
    emit(e, TL + FL); adv()
    e(f"v_min_u32 v13, 15, v2\nv_lshlrev_b32 v14, 7, v13")
    e(f"s_lshl_b32 s26, s23, 10\ns_add_u32 s26, s26, {FL_WV}\ns_lshl_b32 s27, s22, 10\ns_add_u32 s27, s27, {FL_XR - 1024}")
    e("v_mov_b32 v3, s26\nv_mov_b32 v4, s27\nv_cmp_gt_u32 vcc, 8, v13\ns_nop 1\nv_cndmask_b32 v3, v4, v3, vcc\nv_add_u32 v13, v14, v3")
    e("s_lshl_b32 s54, s22, 7\ns_add_u32 s54, s54, s26")
    srd(e, 16, P_WS, WS_XR, SZ_XR)
    e("L_ga_ptop:")
    prep()
    e("s_waitcnt vmcnt(8)\ns_barrier")
    emit(e, TL + FL); adv()
    e("s_cmp_lt_u32 s36, 50\ns_cbranch_scc1 L_ga_ptop")
    e("s_lshl_b32 s55, s22, 19\ns_lshl_b32 s58, s23, 18\ns_and_b32 s59, s23, 3\ns_lshl_b32 s27, s22, 1")
    e("s_mov_b32 s52, 0\ns_mov_b32 s34, 0")
    def prepc(own=None, pos="s36"):
        if own is None:
            chunk_of_pos(e, pos, "s59", "s37", "s38", "s39", 14, LEAD)
            e("s_add_u32 s37, s37, s27\ns_add_u32 s37, s37, 2\ns_and_b32 s37, s37, 15")
        else:
            e(f"s_add_u32 s37, s27, {own}")
        e("s_lshl_b32 s45, s37, 14\ns_add_u32 s45, s45, s58")
        e("s_lshl_b32 s46, s37, 15\ns_add_u32 s46, s46, s55\ns_add_u32 s47, s46, 16384")
    WL, X0, X1 = f_loads(9, 12, "s45", 0), f_loads(9, 16, "s46", 1), f_loads(9, 16, "s47", 2)
    def need(tag, xr_only=False):
        e("s_lshr_b32 s38, s37, 1")
        e(f"s_lshl_b32 s38, {0x100 if xr_only else 0x101}, s38")
        e("s_andn2_b32 s39, s38, s52")
        e(f"s_cbranch_scc0 L_{tag}_ok")
        e(f"s_mov_b32 s35, {SPIN}")
        e(f"L_{tag}_rd:")
        flag_read(e, 13, "s34")
        e("s_waitcnt vmcnt(0)")
        flag_mask(e)
        e("s_nop 1\ns_mov_b32 s52, vcc_lo")
        e("s_andn2_b32 s39, s38, s52")
        e(f"s_cbranch_scc0 L_{tag}_ok")
        e(f"s_sleep {PSLEEP}")
        e("s_sub_u32 s35, s35, 1\ns_cmp_lg_u32 s35, 0")
        e(f"s_cbranch_scc1 L_{tag}_rd")
        e(f"L_{tag}_ok:")
    prep()
    e("s_waitcnt vmcnt(8)\ns_barrier")
    flag_read(e, 13, "s34")
    emit(e, TL + FL); adv()
    for k in range(3):
        prep()
        e(f"s_waitcnt vmcnt({8 if k == 0 else 12})\ns_barrier")
        if k == 0:
            flag_mask(e)
            e("s_nop 1\ns_mov_b32 s52, vcc_lo")
        emit(e, TL + FL)
        if k < 2: prepc(k)
        else: prepc(None, "s34")
        need(f"fx{k}", True)
        emit(e, X1); adv()
    srd(e, 12, P_WS, WS_WV, SZ_WQ)
    stamp(e, 3)
    prepc(0)
    e("s_waitcnt vmcnt(12)\ns_barrier")
    emit(e, X0)
    for x in next_slot(): e(x)
    prepc(1)
    e("s_waitcnt vmcnt(4)\ns_barrier")
    emit(e, X0)
    for x in next_slot(): e(x)
    e("s_mov_b32 s36, 0")
    prepc()
    e("s_waitcnt vmcnt(4)\ns_barrier")
    emit(e, X0)
    e("s_waitcnt vmcnt(4)\ns_barrier")
    e("s_cmp_lg_u32 s30, 0\ns_cbranch_scc1 L_pc_nf")
    flag_store(e, "s54")
    e("L_pc_nf:")
    need("fw0")
    stamp(e, 5)
    emit(e, WL); adv()
    prepc()
    need("fw1")
    emit(e, WL + X0 + X1); adv()
    e("L_gc_ptop:")
    prepc()
    e("s_waitcnt vmcnt(12)\ns_barrier")
    need("fw2")
    if CPF & 4:
        e("s_xor_b32 s26, s36, 11\ns_or_b32 s26, s26, s30\ns_cmp_lg_u32 s26, 0\ns_cbranch_scc1 L_nct3")
        code_touch(e, (0,))
        e("L_nct3:")
    emit(e, WL + X0 + X1); adv()
    e("s_cmp_lt_u32 s36, 14\ns_cbranch_scc1 L_gc_ptop")
    e("s_waitcnt vmcnt(12)\ns_barrier\ns_waitcnt vmcnt(0)\ns_barrier")
    e("s_or_b32 s26, s2, s30\ns_cmp_lg_u32 s26, 0\ns_cbranch_scc1 L_pc_end")
    lane_flag_addr(e, 13, 64)
    e(f"s_mov_b32 s34, {FL_XR}")
    flag_wait_all(e, "fall", 13, "s34")
    e(f"s_mov_b32 s26, {FL_E}")
    flag_store(e, "s26")
    e("L_pc_end:")
    stamp_flush(e, "prod")
    e("s_endpgm")

FAKEB = 0
PFDELAY = 0
def spare(e):
    srd(e, 8, P_U, 0, D*D*2)
    srd(e, 12, P_X, 0, S*D*2)
    srd(e, 16, P_WS, WS_XR, SZ_XR)
    e("s_mov_b32 s22, s20\ns_sub_u32 s24, s21, 28\ns_add_u32 s23, s22, s24\ns_and_b32 s23, s23, 7")
    e("s_mov_b32 s53, 0")
    e("s_cmp_ge_u32 s25, 4\ns_cbranch_scc1 L_pb")
    if CPF & 1:
        e("s_cmp_lg_u32 s25, 0\ns_cbranch_scc1 L_nct1")
        code_touch(e)
        e("L_nct1:")
    e("s_lshr_b32 s30, s25, 1\ns_and_b32 s31, s25, 1")
    t_addr(e, "R", "s31", 16)
    e("v_lshrrev_b32 v5, 1, v4\nv_xor_b32 v5, v5, v3\nv_lshlrev_b32 v5, 4, v5")
    e(f"s_lshl_b32 s26, s30, 14\ns_add_u32 s26, s26, {UNIT}")
    e("v_lshlrev_b32 v6, 7, v4\nv_add3_u32 v20, v5, v6, s26\nv_xor_b32 v21, 64, v20")
    P = Phase(); P.F0, P.F1 = ACC + 128, ACC + 176
    P.addr = [(8+q, 16+q) for q in range(4)] + [(12, 20), (13, 21)]
    def reads(Fb, ks):
        out = []
        for a in range(4):
            for t in range(2):
                out.append(f"ds_read_b64_tr_b16 {vr(Fb+32+4*a+2*t,2)}, v{8+a} offset:{ks*8192 + t*1024}")
            for h in range(2):
                out.append(f"ds_read_b128 {vr(Fb+4*(2*a+h),4)}, v{12+ks} offset:{(2*a+h)*2048}")
        return out
    def mfmas(Fb):
        return [f"v_mfma_f32_16x16x32_bf16 {vr(ACC+16*a+4*b,4)}, {vr(Fb+32+4*b,4)}, {vr(Fb+4*a,4)}, {vr(ACC+16*a+4*b,4)}"
                for a, b in snake(8, 4)]
    P.reads, P.mfmas = reads, mfmas
    stamp(e, 1)
    e("L_bl:")
    for n in range(128): e(f"v_mov_b32 v{ACC+n}, 0")
    consumer(e, "gb", P, 16, drain=True)
    e("s_lshl_b32 s40, s22, 5\ns_lshl_b32 s41, s23, 2\ns_add_u32 s40, s40, s41\ns_lshl_b32 s41, s31, 1\ns_add_u32 s40, s40, s41")
    e("s_lshl_b32 s40, s40, 14\ns_lshl_b32 s41, s30, 13\ns_add_u32 s40, s40, s41")
    e("s_add_u32 s41, s40, 4096\ns_add_u32 s42, s40, 16384\ns_add_u32 s43, s40, 20480")
    e("v_lshlrev_b32 v3, 4, v2")
    n = 0
    for u in range(2):
        for a in range(8):
            d = P.F0 + 4*n; n += 1
            pack_pair(e, d, ACC + 16*a + 4*(2*u), ACC + 16*a + 4*(2*u+1))
            e(f"buffer_store_dwordx4 {vr(d,4)}, v3, s[16:19], s{40+2*u+(a>>2)} offen offset:{(a&3)*1024} {STAUX}")
    e("s_xor_b32 s23, s23, 4\ns_add_u32 s53, s53, 1\ns_cmp_lt_u32 s53, 2\ns_cbranch_scc1 L_bl")
    stamp(e, 2)
    e("s_waitcnt vmcnt(0)\ns_barrier")
    stamp_flush(e, "bcons")
    e("s_endpgm")
    e("L_pb:")
    e("s_sub_u32 s30, s25, 4\ns_lshl_b32 s31, s30, 10\ns_lshl_b32 s32, s30, 12")
    t_voff(e, "R", 2048, None, 8)
    e("s_and_b32 s26, s30, 1\ns_lshl_b32 s26, s26, 2")
    e("v_or_b32 v5, s26, v3\nv_and_b32 v6, 7, v2\nv_xor_b32 v5, v5, v6\nv_lshlrev_b32 v5, 4, v5")
    e("s_lshl_b32 s26, s30, 3")
    e("v_lshrrev_b32 v6, 3, v2\nv_add_u32 v6, s26, v6\nv_lshlrev_b32 v6, 11, v6")
    e("v_add_u32 v9, v5, v6")
    def prep():
        e("s_and_b32 s34, s36, 15")
        chunk_of_pos(e, "s34", "s24", "s37", "s38", "s39", 16, LEAD)
        e(f"s_lshr_b32 s38, s36, 4\ns_lshl_b32 s38, s38, 2\ns_xor_b32 s38, s38, s23\ns_lshl_b32 s38, s38, 8\ns_lshl_b32 s45, s37, 17\ns_add_u32 s45, s45, s38")
        e(f"s_lshl_b32 s38, s22, 19\ns_lshl_b32 s46, s37, 7\ns_add_u32 s46, s46, s38")
    xl = []
    for u in range(2):
        for i in range(4):
            g = [f"s_add_u32 m0, s44, {(1+u)*UNIT + i*4096}"]
            g += [f"s_add_u32 s46, s46, {32*2048}" if (u or i) else "s_nop 0"]
            g.append("buffer_load_dwordx4 v9, s[12:15], s46 offen lds")
            xl.append(g)
    LD = t_loads(8, 8, "s45", 0, 2048) + xl
    def adv():
        for x in next_slot(): e(x)
        e("s_add_u32 s36, s36, 1")
    e(f"s_lshl_b32 s27, s22, 10\ns_lshl_b32 s26, s23, 7\ns_add_u32 s27, s27, s26\ns_add_u32 s27, s27, {FL_XR}")
    e("s_mov_b32 s36, 0")
    for _ in range(2):
        prep(); emit(e, LD); adv()
    make_tag(e)
    e("L_gb_ptop:")
    prep()
    e("s_waitcnt vmcnt(12)\ns_barrier")
    e("s_xor_b32 s26, s36, 19\ns_or_b32 s26, s26, s30\ns_cmp_lg_u32 s26, 0\ns_cbranch_scc1 L_pb_nf")
    flag_store(e, "s27")
    e("L_pb_nf:")
    if CPF & 2:
        e("s_xor_b32 s26, s36, 26\ns_or_b32 s26, s26, s30\ns_cmp_lg_u32 s26, 0\ns_cbranch_scc1 L_nct2")
        code_touch(e)
        e("L_nct2:")
    emit(e, LD); adv()
    e("s_cmp_lt_u32 s36, 32\ns_cbranch_scc1 L_gb_ptop")
    e("s_waitcnt vmcnt(12)\ns_barrier\ns_waitcnt vmcnt(0)\ns_barrier")
    e("s_barrier")
    e("s_cmp_lg_u32 s30, 0\ns_cbranch_scc1 L_pb_end")
    e("s_xor_b32 s27, s27, 512")
    flag_store(e, "s27")
    e("L_pb_end:")
    stamp_flush(e)
    e("s_endpgm")

def kernel(e):
    e(f".globl {NAME}\n.p2align 8\n.type {NAME},@function\n{NAME}:")
    if STAMP:
        for n in range(1, 8): e(f"s_mov_b64 s[{80+2*n}:{81+2*n}], 0")
    stamp(e, 0)
    e("s_load_dwordx16 s[60:75], s[0:1], 0")
    e("s_load_dwordx2 s[56:57], s[0:1], 64")
    e("s_cmp_ge_u32 s2, 256\ns_cbranch_scc1 L_end")
    e("s_and_b32 s20, s2, 7\ns_lshr_b32 s21, s2, 3")
    e("v_lshrrev_b32 v1, 6, v0\nv_and_b32 v2, 63, v0\ns_nop 0\nv_readfirstlane_b32 s25, v1")
    e("s_and_b32 s22, s20, 1\ns_lshl_b32 s22, s22, 2\ns_and_b32 s23, s21, 3\ns_add_u32 s22, s22, s23")
    e("s_lshr_b32 s23, s20, 1\ns_mul_i32 s23, s23, 7\ns_lshr_b32 s24, s21, 2\ns_add_u32 s23, s23, s24")
    e("s_add_u32 s24, s22, s23\ns_and_b32 s24, s24, 3")
    e("s_mov_b32 s33, 0")
    e(f"s_mov_b32 s26, {WS_FL + FL_E}")
    e("s_waitcnt lgkmcnt(0)")
    e("s_load_dwordx2 s[6:7], s[56:57], s26")
    srd(e, 48, P_WS, WS_FL, FL_BYTES)
    if CPF & 8:
        e("s_cmp_lg_u32 s25, 7\ns_cbranch_scc1 L_nct4")
        code_touch(e)
        e("L_nct4:")
    e("s_cmp_ge_u32 s21, 28\ns_cbranch_scc1 L_spare")
    dequant(e)
    e("s_cmp_ge_u32 s25, 4\ns_cbranch_scc1 L_mainp")
    main_consumer(e)
    e("L_mainp:")
    main_producer(e)
    e("L_spare:")
    spare(e)
    e("L_end:")
    e("s_endpgm")
    e("L_code_end:")
    e(f'.section .rodata,"a"\n.p2align 6\n.amdhsa_kernel {NAME}')
    e(f".amdhsa_next_free_vgpr 256\n.amdhsa_next_free_sgpr 96\n.amdhsa_accum_offset 256")
    e(".amdhsa_group_segment_fixed_size 0\n.amdhsa_kernarg_size 72\n.amdhsa_user_sgpr_count 2")
    e(".amdhsa_user_sgpr_kernarg_segment_ptr 1\n.amdhsa_system_sgpr_workgroup_id_x 1")
    e(".amdhsa_float_denorm_mode_32 3")
    e(".end_amdhsa_kernel")

HEADER = open("standalone__weight_only_int_quip__prompt.s.ref").read().split("; Override")[0]
ASLIST = False
def generate():
    e = Asm()
    out = HEADER
    if ASLIST:
        out += f"; @launch kernel={NAME} grid=(256,1,1) block=(512,1,1) lds={LDS_BYTES}\n"
    else:
        out += f"; @launch grid=(256,1,1) block=(512,1,1) lds={LDS_BYTES}\n"
    e('.amdgcn_target "amdgcn-amd-amdhsa--gfx950"\n.text')
    kernel(e)
    return out + e.text()

if __name__ == "__main__":
    args = [a for a in sys.argv[1:] if not a.startswith("-")]
    for a in sys.argv[1:]:
        if a.startswith("-"):
            k, v = a[1:].split("=", 1)
            globals()[k] = eval(v)
    path = args[0] if args else "standalone__weight_only_int_quip__prompt.s"
    open(path, "w").write(generate())
    print("wrote", path)
```

```python
import sys, re

S, D, F = 2048, 1024, 3584
WS_WQ, WS_WV, WS_XR, WS_FL, WS_ST = 0, 8 << 20, 16 << 20, 24 << 20, 64 << 20
SZ_WQ, SZ_XR = D * F * 2, S * D * 2
FL_WQ, FL_WV, FL_XR, FL_E = 0, 224 * 128, 448 * 128, 512 * 128
FL_BYTES = 513 * 128
NAME = "standalone__weight_only_int_quip__prompt_kernel"

NOMFMA = NOREAD = NOLOAD = False
STAMP = False
STAUX = "sc1"
OUTAUX = "sc1"
QAUX = ""
SKEW = True
LEAD = 2
NTOUCH = 0
XUT = 0
UNIT = 16384
SLOT = 3 * UNIT
LDS_BYTES = 3 * SLOT
PREB = 2
SALU_PER = 1
SPIN = 1 << 17
PSLEEP = 2
ACC = 28
TAIL = 3
BROT = True
HALF = True
LEADC = 2
TFILL = 2
XRM = 4
AORD = "AV"

class Asm:
    def __init__(self):
        self.L = []
    def __call__(self, s):
        for line in s.split("\n"):
            line = line.strip()
            if NOMFMA and line.startswith("v_mfma"): continue
            if NOREAD and line.startswith("ds_read"): continue
            if NOLOAD and line.startswith("buffer_load") and line.endswith("lds"): continue
            if line:
                self.L.append(("    " if not line.endswith(":") and not line.startswith(".") else "") + line)
    def text(self):
        return "\n".join(self.L) + "\n"

def vr(b, n=1):
    return f"v{b}" if n == 1 else f"v[{b}:{b+n-1}]"

P_X, P_QW, P_SC, P_ZR, P_U, P_V, P_OUT, P_WS = 60, 62, 64, 66, 68, 70, 72, 56
def srd(e, d, base, add, nbytes):
    if add:
        e(f"s_add_u32 s{d}, s{base}, {add}\ns_addc_u32 s{d+1}, s{base+1}, 0")
    else:
        e(f"s_mov_b32 s{d}, s{base}\ns_mov_b32 s{d+1}, s{base+1}")
    e(f"s_mov_b32 s{d+2}, {nbytes}\ns_mov_b32 s{d+3}, 0x20000")

DIAG = ""
def stamp(e, n, diag=""):
    if n in (3, 5) and diag != DIAG: return
    if STAMP:
        e(f"s_memrealtime s[{80+2*n}:{81+2*n}]")
        if n in (1, 2):
            e(f"s_memtime s[{90+2*n}:{91+2*n}]")
DBGSTAMP = False
ECHO = None
def stamp_flush(e, role=""):
    if not STAMP:
        return
    e("s_waitcnt lgkmcnt(0) vmcnt(0)")
    stamp(e, 4)
    e("s_waitcnt lgkmcnt(0)")
    if ECHO:
        if role == "cons":
            a_, b_, mult = ECHO
            e("s_or_b32 s26, s2, s25\ns_cmp_lg_u32 s26, 0\ns_cbranch_scc1 L_echo_end")
            e(f"s_sub_u32 s26, s{80+2*b_}, s{80+2*a_}\ns_mul_i32 s26, s26, {mult}\ns_add_u32 s26, s26, 6000")
            e("L_echo:")
            e("s_memrealtime s[28:29]\ns_waitcnt lgkmcnt(0)")
            e("s_sub_u32 s27, s28, s80\ns_cmp_lt_u32 s27, s26\ns_cbranch_scc1 L_echo")
            e("L_echo_end:")
        return
    if DBGSTAMP:
        srd(e, 76, 74, 0, 256)
        e("v_mov_b32 v4, 0\ns_mov_b64 exec, 1")
        sel = {"cons": [(0, 0, 1), (1, 1, 1), (1, 2, 0), (2, 3, 1), (2, 4, 0), (3, 5, 1), (3, 6, 0), (5, 7, 1), (5, 8, 0), (4, 9, 0), (0, 15, 0)],
               "prod": [(2, 10, 0), (1, 11, 0), (3, 12, 0)], "bcons": [(2, 13, 1), (2, 14, 0)]}.get(role, [])
        for k, (st, w, inv) in enumerate(sel):
            e(f"v_mov_b32 v{8+k}, s{80+2*st}")
            if inv: e(f"v_not_b32 v{8+k}, v{8+k}")
            e(f"buffer_atomic_umax v{8+k}, v4, s[76:79], 0 offen offset:{4*w}")
        return
    srd(e, 76, P_WS, WS_ST, 1 << 20)
    e(f"s_lshl_b32 s75, s2, 3\ns_add_u32 s75, s75, s25\ns_lshl_b32 s75, s75, 6")
    for n in range(16):
        e(f"v_mov_b32 v{8+n}, s{80+n}")
    e("v_mov_b32 v4, 0")
    e("s_mov_b64 exec, 1")
    for n in range(4):
        e(f"buffer_store_dwordx4 v[{8+4*n}:{11+4*n}], v4, s[76:79], s75 offen offset:{16*n}")

def chunk_of_pos(e, spos, scls, sdst, st1, st2, nch, lead, sxor=None):
    if not SKEW:
        e(f"s_mov_b32 {sdst}, {spos}")
        return
    e(f"s_sub_u32 {st1}, {spos}, {scls}")
    e(f"s_and_b32 {st1}, {st1}, 3")
    e(f"s_cmp_le_u32 {st1}, {lead}")
    e(f"s_cselect_b32 {st2}, -1, 0")
    e(f"s_cmp_eq_u32 {st1}, 0")
    e(f"s_cselect_b32 {st2}, {lead}, {st2}")
    e(f"s_cmp_lt_u32 {spos}, {scls}")
    e(f"s_cselect_b32 {st2}, 0, {st2}")
    e(f"s_sub_u32 {st1}, {spos}, {st1}")
    e(f"s_cmp_ge_i32 {st1}, {nch-3}")
    e(f"s_cselect_b32 {st2}, 0, {st2}")
    e(f"s_add_u32 {sdst}, {spos}, {st2}")
    if sxor:
        e(f"s_xor_b32 {sdst}, {sdst}, {sxor}")

def interleave(e, mfmas, others, per=1, lead=0):
    reads = [x for x in others if x.startswith("ds_")]
    salu = [x for x in others if x.startswith("s_")]
    valu = [x for x in others if x.startswith("v_")]
    def ready(x):
        ops = [t.strip(",") for t in x.split()[1:]]
        dst, srcs = ops[0], ops[1:]
        if any(re.search(rf", {dst}( |$)", r) for r in reads): return False
        if any(y.split()[1].strip(",") in srcs for y in salu): return False
        return True
    for _ in range(lead):
        if reads: e(reads.pop(0))
    for k, m in enumerate(mfmas):
        e(m)
        c = 0
        for _ in range(per):
            if reads: e(reads.pop(0)); c += 1
        while c < 2 and valu and ready(valu[0]):
            e(valu.pop(0)); c += 1
        for _ in range(SALU_PER if c else SALU_PER + 1):
            if salu: e(salu.pop(0))
    for x in reads + salu + valu:
        e(x)

def pack_pair(e, dst, c0, c1):
    e(f"v_cvt_pk_bf16_f32 v{dst}, v{c0}, v{c0+1}")
    e(f"v_cvt_pk_bf16_f32 v{dst+1}, v{c0+2}, v{c0+3}")
    e(f"v_cvt_pk_bf16_f32 v{dst+2}, v{c1}, v{c1+1}")
    e(f"v_cvt_pk_bf16_f32 v{dst+3}, v{c1+2}, v{c1+3}")

def next_slot(s="s33"):
    return [f"s_add_u32 {s}, {s}, {SLOT}", f"s_cmp_eq_u32 {s}, {3*SLOT}", f"s_cselect_b32 {s}, 0, {s}"]

class Phase:
    pass

def consumer(e, tag, P, nst, stampn=None, drain=False, flush=True):
    def upd():
        return [f"v_add_u32 v{c}, s33, v{b}" for (c, b) in P.addr]
    for x in upd(): e(x)
    e(f"s_mov_b32 s36, {nst}")
    e("s_barrier")
    if stampn is not None: stamp(e, stampn)
    for r in P.reads(P.F0, 0): e(r)
    e(f"s_branch L_{tag}_mid")
    m1 = P.mfmas(P.F1)
    e(f"L_{tag}_top:")
    for m in m1[:PREB]: e(m)
    e("s_barrier")
    interleave(e, m1[PREB:], P.reads(P.F0, 0), lead=1)
    e(f"L_{tag}_mid:")
    e("s_waitcnt lgkmcnt(0)")
    tail = next_slot() + ["s_sub_u32 s36, s36, 1", "s_cmp_lg_u32 s36, 0"] + upd()
    interleave(e, P.mfmas(P.F0), P.reads(P.F1, 1) + tail)
    e("s_waitcnt vmcnt(0) lgkmcnt(0)" if drain else "s_waitcnt lgkmcnt(0)")
    e(f"s_cbranch_scc1 L_{tag}_top")
    if flush:
        for m in m1: e(m)

def emit(e, groups):
    for g in groups:
        for x in g: e(x)

def snake(na, nb):
    return [(a, (b if a % 2 == 0 else nb - 1 - b)) for a in range(na) for b in range(nb)]

def t_addr(e, kind, swt, dst):
    e("v_lshrrev_b32 v3, 4, v2\nv_and_b32 v4, 15, v2\nv_lshrrev_b32 v5, 2, v4\nv_and_b32 v6, 3, v4")
    e(f"v_lshlrev_b32 v7, {2 if kind == 'F' else 3}, v3\nv_add_u32 v7, v7, v5\nv_lshlrev_b32 v7, 8, v7")
    e("v_lshlrev_b32 v6, 3, v6\nv_add_u32 v7, v7, v6")
    e("v_and_b32 v6, 1, v3\nv_lshlrev_b32 v6, 2, v6\nv_or_b32 v6, v6, v5")
    e(f"s_lshl_b32 s26, {swt}, 2")
    e("v_xor_b32 v6, s26, v6")
    for q in range(4):
        e(f"v_xor_b32 v5, {q}, v6\nv_lshlrev_b32 v5, 5, v5\nv_add_u32 v{dst+q}, v7, v5")

def t_voff(e, kind, trow, scol, dst):
    e("v_lshrrev_b32 v3, 4, v2\nv_and_b32 v4, 15, v2")
    if kind == "F":
        e("s_and_b32 s26, s30, 1\ns_lshl_b32 s26, s26, 2")
    else:
        e("s_and_b32 s26, s30, 2\ns_lshl_b32 s26, s26, 1")
    e("v_or_b32 v5, s26, v3\nv_lshlrev_b32 v5, 1, v5\nv_xor_b32 v5, v5, v4\nv_lshlrev_b32 v5, 4, v5")
    e("s_lshl_b32 s26, s30, 2")
    e(f"v_add_u32 v6, s26, v3\nv_mul_u32_u24 v6, {trow}, v6")
    e(f"v_add_u32 v5, v5, v6")
    if scol: e(f"v_add_u32 v{dst}, {scol}, v5")
    else: e(f"v_mov_b32 v{dst}, v5")

def t_loads(vreg, srdn, soff, unit, trow):
    out = []
    for i in range(4):
        if i == 0:
            g = [f"s_add_u32 s44, s33, s31", f"s_add_u32 m0, s44, {unit*UNIT}", "s_nop 0"]
        else:
            g = [f"s_add_u32 m0, s44, {unit*UNIT + i*4096}", f"s_add_u32 {soff}, {soff}, {16*trow}"]
        g.append(f"buffer_load_dwordx4 v{vreg}, s[{srdn}:{srdn+3}], {soff} offen lds")
        out.append(g)
    return out

def f_loads(vreg, srdn, soff, unit):
    out = []
    for i in range(4):
        g = ["s_add_u32 s43, s33, s32", f"s_add_u32 m0, s43, {unit*UNIT}", "s_nop 0"] if i == 0 else []
        g.append(f"buffer_load_dwordx4 v{vreg}, s[{srdn}:{srdn+3}], {soff} offen offset:{i*1024} lds")
        out.append(g)
    return out

CPF = 0
_ct = [0]
def code_touch(e, halves=(0, 1)):
    _ct[0] += 1
    lab = f"L_ct{_ct[0]}"
    e("s_getpc_b64 s[76:77]")
    e(f"{lab}:")
    e(f"s_sub_u32 s76, s76, {lab}-{NAME}\ns_subb_u32 s77, s77, 0")
    e(f"s_mov_b32 s78, L_code_end-{NAME}\ns_mov_b32 s79, 0x20000")
    e("v_lshlrev_b32 v27, 7, v2")
    for h in halves:
        e(f"s_movk_i32 s3, {h*8192}")
        e("buffer_load_dword v23, v27, s[76:79], s3 offen")

def make_tag(e):
    e("s_waitcnt lgkmcnt(0)")
    e("s_mul_i32 s4, s6, 0x9e3779b1\ns_add_u32 s4, s4, 0x7f4a7c15")
    e("s_mul_i32 s5, s7, 0x85ebca6b\ns_add_u32 s5, s5, 0xc2b2ae35")
def flag_store(e, soff):
    e("v_mov_b32 v10, s4\nv_mov_b32 v11, s5\nv_mov_b32 v12, 0")
    e("s_mov_b64 exec, 1")
    e(f"buffer_store_dwordx2 v[10:11], v12, s[48:51], {soff} offen sc1")
    e("s_mov_b64 exec, -1")
def flag_read(e, vaddr, soff):
    e(f"buffer_load_dwordx2 v[10:11], v{vaddr}, s[48:51], {soff} offen sc1")
def flag_mask(e):
    e("v_cmp_eq_u64 vcc, s[4:5], v[10:11]")
PIPE = 0
def poll_pipe(e, tag, vaddr, soff, check):
    e(f"s_mov_b32 s35, {SPIN}")
    for k in range(PIPE - 1):
        e(f"buffer_load_dwordx2 v[{32+2*k}:{33+2*k}], v{vaddr}, s[48:51], {soff} offen sc1")
        e(f"s_sleep {PSLEEP}")
    e(f"L_{tag}_rd:")
    for k in range(PIPE):
        kk = (k - 1) % PIPE
        e(f"buffer_load_dwordx2 v[{32+2*kk}:{33+2*kk}], v{vaddr}, s[48:51], {soff} offen sc1")
        e(f"s_waitcnt vmcnt({PIPE-1})")
        check(32 + 2*k)
        e(f"s_sleep {PSLEEP}")
    e("s_sub_u32 s35, s35, 1\ns_cmp_lg_u32 s35, 0")
    e(f"s_cbranch_scc1 L_{tag}_rd")
def flag_wait_all(e, tag, vaddr, soff, preloaded=False):
    if PIPE and preloaded:
        def chk(r):
            e(f"v_cmp_ne_u64 vcc, s[4:5], v[{r}:{r+1}]")
            e(f"s_cbranch_vccz L_{tag}_ok")
        chk(10)
        poll_pipe(e, tag, vaddr, soff, chk)
        e(f"L_{tag}_ok:")
        return
    e(f"s_mov_b32 s35, {SPIN}")
    if preloaded: e(f"s_branch L_{tag}_chk")
    e(f"L_{tag}_rd:")
    flag_read(e, vaddr, soff)
    e("s_waitcnt vmcnt(0)")
    e(f"L_{tag}_chk:")
    e("v_cmp_ne_u64 vcc, s[4:5], v[10:11]")
    e(f"s_cbranch_vccz L_{tag}_ok")
    e(f"s_sleep {PSLEEP}")
    e("s_sub_u32 s35, s35, 1\ns_cmp_lg_u32 s35, 0")
    e(f"s_cbranch_scc1 L_{tag}_rd")
    e(f"L_{tag}_ok:")
def lane_flag_addr(e, dst, n):
    e(f"v_min_u32 v{dst}, {n-1}, v2\nv_lshlrev_b32 v{dst}, 7, v{dst}")

def dequant(e):
    srd(e, 8, P_QW, 0, D*F*4)
    srd(e, 12, P_SC, 0, 32*F*2)
    srd(e, 16, P_ZR, 0, 32*F*2)
    e("v_lshrrev_b32 v3, 3, v2\nv_and_b32 v4, 7, v2")
    e(f"v_mul_u32_u24 v5, {F*4}, v3\nv_lshlrev_b32 v6, 4, v4\nv_add_u32 v5, v5, v6")
    e(f"v_add_u32 v8, {8*F*4}, v5")
    e("v_lshlrev_b32 v7, 3, v4")
    e("s_lshl_b32 s26, s22, 3\ns_add_u32 s26, s26, s25")
    e(f"s_mul_i32 s27, s26, {16*F*4}\ns_lshl_b32 s28, s23, 9\ns_add_u32 s27, s27, s28")
    e(f"s_lshr_b32 s28, s26, 1\ns_mul_i32 s28, s28, {F*2}\ns_lshl_b32 s29, s23, 8\ns_add_u32 s28, s28, s29")
    Q, SC, ZR, T = 32, 64, 72, 80
    for j in range(2):
        for o in range(2):
            for t in range(2):
                e(f"buffer_load_dwordx4 {vr(Q+16*j+8*o+4*t,4)}, v{5 if o == 0 else 8}, s[8:11], s27 offen offset:{j*256+t*128} {QAUX}")
        for t in range(2):
            e(f"buffer_load_dwordx2 {vr(SC+4*j+2*t,2)}, v7, s[12:15], s28 offen offset:{j*128+t*64}")
            e(f"buffer_load_dwordx2 {vr(ZR+4*j+2*t,2)}, v7, s[16:19], s28 offen offset:{j*128+t*64}")
    stamp(e, 3, "start")
    e("v_lshrrev_b32 v1, 2, v4\nv_lshlrev_b32 v1, 13, v1\nv_and_b32 v6, 3, v4\nv_lshlrev_b32 v6, 8, v6")
    e("v_lshlrev_b32 v3, 4, v3\nv_add3_u32 v1, v1, v6, v3")
    e("s_mul_i32 s29, s22, 56\ns_lshl_b32 s30, s23, 1\ns_add_u32 s29, s29, s30\ns_lshl_b32 s29, s29, 14")
    e("s_lshl_b32 s30, s25, 10\ns_add_u32 s29, s29, s30")
    e(f"s_add_u32 s30, s30, {UNIT}\nv_add_u32 v9, s30, v1")
    srd(e, 8, P_V, 0, F*F*2)
    srd(e, 12, P_WS, WS_WQ, SZ_WQ)
    srd(e, 16, P_WS, WS_WV, SZ_WQ)
    for j in range(2):
        e(f"s_waitcnt vmcnt({8*(1-j) + 2*j})")
        if j == 0: stamp(e, 5, "start")
        if j == 1: stamp(e, 3, "start2")
        for n in range(4):
            e(f"v_lshlrev_b32 v{T+2*n}, 16, v{SC+4*j+n}\nv_and_b32 v{T+2*n+1}, 0xffff0000, v{SC+4*j+n}")
            e(f"v_lshlrev_b32 v{T+8+2*n}, 16, v{ZR+4*j+n}\nv_and_b32 v{T+8+2*n+1}, 0xffff0000, v{ZR+4*j+n}")
        for o in range(2):
            q = Q + 16*j + 8*o
            for n in range(8): e(f"v_cvt_f32_i32 v{q+n}, v{q+n}")
            for n in range(8): e(f"v_cvt_pk_bf16_f32 v{q+n}, 0, v{q+n}")
            for n in range(8): e(f"v_sub_f32 v{q+n}, v{q+n}, v{T+8+n}")
            for n in range(8): e(f"v_cvt_pk_bf16_f32 v{q+n}, 0, v{q+n}")
            for n in range(8): e(f"v_mul_f32 v{q+n}, v{q+n}, v{T+n}")
            for n in range(4): e(f"v_cvt_pk_bf16_f32 v{q+n}, v{q+2*n}, v{q+2*n+1}")
            e(f"buffer_store_dwordx4 {vr(q,4)}, v1, s[12:15], s29 offen offset:{o*128} {STAUX}")
            e(f"ds_write_b128 v9, {vr(q,4)} offset:{j*SLOT + o*128}")
        e("s_add_u32 s29, s29, 16384")
    stamp(e, 5, "start2")

def main_consumer(e):
    if CPRIO: e(f"s_setprio {CPRIO}")
    P = Phase(); P.F0, P.F1 = ACC + 128, ACC + 176
    e("s_lshr_b32 s30, s25, 1\ns_and_b32 s31, s25, 1")
    t_addr(e, "F", "s31", 16)
    e(f"s_lshl_b32 s26, s30, 12\ns_add_u32 s26, s26, {UNIT}\nv_lshlrev_b32 v5, 4, v2\nv_add_u32 v20, s26, v5")
    P.addr = [(8+q, 16+q) for q in range(4)] + [(12, 20)]
    def reads(Fb, ks):
        out = []
        for a in range(4):
            out.append(f"ds_read_b128 {vr(Fb+4*a,4)}, v12 offset:{ks*8192 + a*1024}")
            for t in range(2):
                out.append(f"ds_read_b64_tr_b16 {vr(Fb+16+4*a+2*t,2)}, v{8+a} offset:{ks*4096 + t*8192}")
        return out
    def mfmas(Fb):
        return [f"v_mfma_f32_16x16x32_bf16 {vr(ACC+16*a+4*b,4)}, {vr(Fb+4*a,4)}, {vr(Fb+16+4*b,4)}, {vr(ACC+16*a+4*b,4)}"
                for a, b in snake(4, 4)]
    P.reads, P.mfmas = reads, mfmas
    e("v_lshrrev_b32 v3, 4, v2\nv_and_b32 v4, 15, v2")
    e(f"s_lshl_b32 s44, s22, 8\ns_lshl_b32 s45, s25, 6\ns_add_u32 s44, s44, s45\ns_mul_i32 s44, s44, {F*2}")
    e("s_lshl_b32 s45, s23, 8\ns_add_u32 s44, s44, s45")
    for b in range(1, 4): e(f"s_add_u32 s{44+b}, s44, {16*b*F*2}")
    e(f"v_and_b32 v5, 7, v4\nv_mul_u32_u24 v5, {F*2}, v5")
    e("v_lshlrev_b32 v6, 4, v3\nv_and_b32 v7, 8, v4\nv_lshlrev_b32 v7, 3, v7\nv_add3_u32 v14, v5, v6, v7")
    e(f"v_add_u32 v15, {8*F*2}, v14")
    for n in range(128): e(f"v_mov_b32 v{ACC+n}, 0")
    e("s_waitcnt vmcnt(0) lgkmcnt(0)\ns_barrier")
    consumer(e, "ga", P, 56, stampn=1)
    stamp(e, 2)
    e("s_lshl_b32 s40, s23, 5\ns_lshl_b32 s41, s22, 2\ns_add_u32 s40, s40, s41\ns_lshl_b32 s41, s30, 1\ns_add_u32 s40, s40, s41")
    e("s_lshl_b32 s40, s40, 13\ns_lshl_b32 s42, s31, 12\ns_add_u32 s40, s40, s42")
    e("s_add_u32 s41, s40, 8192")
    e("s_mov_b32 s43, s33")
    for x in next_slot("s43"): e(x)
    e("s_cmp_eq_u32 s30, 0\ns_cselect_b32 s43, s33, s43\ns_add_u32 s43, s43, s42")
    e("v_and_b32 v3, 0x33, v2\nv_lshrrev_b32 v4, 1, v2\nv_and_b32 v4, 4, v4\nv_or_b32 v3, v3, v4\nv_lshlrev_b32 v3, 4, v3")
    e("v_and_b32 v4, 4, v2\nv_lshlrev_b32 v4, 8, v4\nv_or_b32 v3, v3, v4")
    e("v_add_u32 v4, s43, v3")
    n = 0
    for u in range(2):
        for b in range(4):
            d = P.F0 + 4*n; n += 1
            pack_pair(e, d, ACC + 16*(2*u) + 4*b, ACC + 16*(2*u+1) + 4*b)
            e(f"buffer_store_dwordx4 {vr(d,4)}, v3, s[16:19], s{40+u} offen offset:{(b>>1)*2048 + (b&1)*128} {STAUX}")
            e(f"ds_write_b128 v4, {vr(d,4)} offset:{u*8192 + (b>>1)*2048 + (b&1)*128}")
    for n in range(64): e(f"v_mov_b32 v{ACC+n}, 0")
    srd(e, 16, P_OUT, 0, S*F*2)
    e("v_lshlrev_b32 v16, 4, v2")
    e(f"s_lshl_b32 s26, s25, 12\ns_add_u32 s26, s26, {UNIT}\nv_add_u32 v17, s26, v16")
    P.addr = [(9, 17), (8, 16)]
    def reads(Fb, ks):
        xr = [f"ds_read_b128 {vr(Fb+32+4*b,4)}, v9 offset:{ks*UNIT + b*1024}" for b in range(4)]
        wv = [f"ds_read_b128 {vr(Fb+4*a,4)}, v8 offset:{ks*8192 + a*1024}" for a in range(8)]
        return xr + wv
    def mfmas(Fb):
        return [f"v_mfma_f32_16x16x32_bf16 {vr(ACC+16*a+4*b,4)}, {vr(Fb+4*a,4)}, {vr(Fb+32+4*b,4)}, {vr(ACC+16*a+4*b,4)}"
                for a, b in snake(8, 4)]
    P.reads, P.mfmas = reads, mfmas
    e("s_waitcnt lgkmcnt(0)")
    consumer(e, "gc", P, 16 - TAIL, stampn=3, drain=True, flush=(TAIL == 0))
    def out_ops(Ln, temps):
        ops = []
        for b in range(4):
            d = temps[b % len(temps)]
            for h in range(2):
                u = 2*Ln + h
                c0, c1 = ACC + 16*(2*u) + 4*b, ACC + 16*(2*u+1) + 4*b
                ops += [f"v_cvt_pk_bf16_f32 v{d+4*h}, v{c0}, v{c0+1}", f"v_cvt_pk_bf16_f32 v{d+4*h+1}, v{c0+2}, v{c0+3}",
                        f"v_cvt_pk_bf16_f32 v{d+4*h+2}, v{c1}, v{c1+1}", f"v_cvt_pk_bf16_f32 v{d+4*h+3}, v{c1+2}, v{c1+3}"]
            ops += [f"v_mov_b32 v{d+8+j}, v{d+j}" for j in range(4)]
            ops += [f"v_mov_b32_dpp v{d+j}, v{d+4+j} row_ror:8 row_mask:0xf bank_mask:0xc" for j in range(4)]
            ops += [f"v_mov_b32_dpp v{d+4+j}, v{d+8+j} row_ror:8 row_mask:0xf bank_mask:0x3" for j in range(4)]
            ops += [f"buffer_store_dwordx4 {vr(d,4)}, v14, s[16:19], s{44+b} offen offset:{Ln*128} {OUTAUX}",
                    f"buffer_store_dwordx4 {vr(d+4,4)}, v15, s[16:19], s{44+b} offen offset:{Ln*128} {OUTAUX}"]
        return ops
    if TAIL:
        for t in range(1, TAIL):
            for x in next_slot(): e(x)
            e(f"v_add_u32 v{8+2*t}, s33, v16\nv_add_u32 v{9+2*t}, s33, v17")
        seq = [(g, t, ks) for g in range(2) for t in range(TAIL) for ks in range(2)]
        def hreads(Fb, g, t, ks):
            out = []
            for k in range(4):
                out.append(f"ds_read_b128 {vr(Fb+16+4*k,4)}, v{9+2*t} offset:{ks*UNIT + k*1024}")
                out.append(f"ds_read_b128 {vr(Fb+4*k,4)}, v{8+2*t} offset:{ks*8192 + (4*g+k)*1024}")
            return out
        def hmfmas(Fb, g):
            return [f"v_mfma_f32_16x16x32_bf16 {vr(ACC+16*(4*g+a)+4*b,4)}, {vr(Fb+4*a,4)}, {vr(Fb+16+4*b,4)}, {vr(ACC+16*(4*g+a)+4*b,4)}"
                    for a, b in snake(4, 4)]
        pend = P.mfmas(P.F1)
        fill = out_ops(0, [P.F0 + 32, P.F1 + 32])
        for n, (g, t, ks) in enumerate(seq + [(None, None, None)]):
            Fb = P.F0 if n % 2 == 0 else P.F1
            rd = hreads(Fb, g, t, ks) if g is not None else []
            usefill = n >= 2*TAIL + 1
            k0 = 0
            if g == 0 and ks == 0:
                for m in pend[:PREB]: e(m)
                e("s_barrier")
                k0 = PREB
                e(rd.pop(0))
            for k, m in enumerate(pend[k0:]):
                e(m)
                c = 0
                if rd: e(rd.pop(0)); c += 1
                if usefill and (n > 2*TAIL + 1 or k >= 4):
                    while fill and c < TFILL:
                        e(fill.pop(0)); c += 1
            if g is not None:
                e("s_waitcnt lgkmcnt(0)")
                pend = hmfmas(Fb, g)
        stamp(e, 5)
        for x in fill: e(x)
        e("s_nop 7")
        for x in out_ops(1, [P.F0, P.F0 + 12, P.F1, P.F1 + 12]): e(x)
    else:
        stamp(e, 5)
        e("s_nop 7")
        for Ln in range(2):
            for x in out_ops(Ln, [P.F0 + 48*Ln + 12*k for k in range(4)]): e(x)
    stamp_flush(e, "cons")
    e("s_endpgm")

PPRIO = 0
CPRIO = 0
def main_producer(e):
    if PPRIO: e(f"s_setprio {PPRIO}")
    e("s_sub_u32 s30, s25, 4\ns_lshl_b32 s31, s30, 10\ns_lshl_b32 s32, s30, 12")
    e("s_lshl_b32 s27, s23, 8")
    t_voff(e, "F", F*2, "s27", 8)
    e("v_lshlrev_b32 v5, 4, v2\nv_add_u32 v9, s32, v5")
    e(f"s_mul_i32 s28, s22, {112*8192}")
    e(f"s_and_b32 s29, s20, 1\ns_mul_i32 s29, s29, {XRM}")
    e("s_lshl_b32 s53, s23, 1")
    def prep(own=None):
        if own is None:
            chunk_of_pos(e, "s36", "s24", "s37", "s38", "s39", 54, LEAD)
            e("s_xor_b32 s38, s37, s29\ns_cmp_lt_u32 s37, 48\ns_cselect_b32 s37, s38, s37")
            e("s_cmp_ge_u32 s37, s53\ns_cselect_b32 s38, 2, 0\ns_add_u32 s37, s37, s38")
        else:
            e(f"s_add_u32 s37, s53, {own}")
        e(f"s_mul_i32 s45, s37, {64*F*2}")
        e("s_lshl_b32 s46, s37, 14\ns_add_u32 s46, s46, s28")
    TL, FL = t_loads(8, 8, "s45", 0, F*2), f_loads(9, 12, "s46", 1)
    AL = (TL + FL) if AORD == "VA" else (FL + TL)
    def adv():
        for x in next_slot(): e(x)
        e("s_add_u32 s36, s36, 1")
    make_tag(e)
    for o in range(2):
        prep(o); emit(e, TL)
        for x in next_slot(): e(x)
    e("s_mov_b32 s36, 0")
    prep(); emit(e, TL)
    lane_flag_addr(e, 13, 28)
    e(f"s_mul_i32 s34, s22, {28*128}")
    e("s_lshl_b32 s26, s23, 7\ns_add_u32 s26, s26, s34")
    e("s_waitcnt vmcnt(12)")
    e("s_barrier")
    stamp(e, 2)
    e("s_cmp_lg_u32 s30, 0\ns_cbranch_scc1 L_pa_nf")
    flag_store(e, "s26")
    e("L_pa_nf:")
    e("s_waitcnt vmcnt(8)\ns_barrier")
    flag_read(e, 13, "s34")
    e("s_waitcnt vmcnt(0)\ns_barrier")
    flag_wait_all(e, "fwq", 13, "s34", preloaded=True)
    stamp(e, 1)
    emit(e, FL); adv()
    prep()
    emit(e, AL); adv()
    e(f"v_min_u32 v13, 15, v2\nv_lshlrev_b32 v14, 7, v13")
    e(f"s_lshl_b32 s26, s23, 10\ns_add_u32 s26, s26, {FL_WV}\ns_lshl_b32 s27, s22, 10\ns_add_u32 s27, s27, {FL_XR - 1024}")
    e("v_mov_b32 v3, s26\nv_mov_b32 v4, s27\nv_cmp_gt_u32 vcc, 8, v13\ns_nop 1\nv_cndmask_b32 v3, v4, v3, vcc\nv_add_u32 v13, v14, v3")
    e("s_lshl_b32 s54, s22, 7\ns_add_u32 s54, s54, s26")
    srd(e, 16, P_WS, WS_XR, SZ_XR)
    e("L_ga_ptop:")
    prep()
    e("s_waitcnt vmcnt(8)\ns_barrier")
    emit(e, AL); adv()
    e("s_cmp_lt_u32 s36, 50\ns_cbranch_scc1 L_ga_ptop")
    e("s_lshl_b32 s55, s22, 19\ns_lshl_b32 s58, s23, 18\ns_and_b32 s59, s23, 3\ns_lshl_b32 s27, s22, 1")
    e("s_mov_b32 s52, 0\ns_mov_b32 s34, 0")
    def prepc(own=None, pos="s36"):
        if own is None:
            chunk_of_pos(e, pos, "s59", "s37", "s38", "s39", 14, LEADC)
            if HALF:
                e("s_add_u32 s37, s37, 2\ns_add_u32 s38, s37, s27\ns_and_b32 s38, s38, 7\ns_xor_b32 s37, s37, s27\ns_and_b32 s37, s37, 8\ns_or_b32 s37, s37, s38")
            else:
                e("s_add_u32 s37, s37, s27\ns_add_u32 s37, s37, 2\ns_and_b32 s37, s37, 15")
        else:
            e(f"s_add_u32 s37, s27, {own}")
        e("s_lshl_b32 s45, s37, 14\ns_add_u32 s45, s45, s58")
        e("s_lshl_b32 s46, s37, 15\ns_add_u32 s46, s46, s55\ns_add_u32 s47, s46, 16384")
    WL, X0, X1 = f_loads(9, 12, "s45", 0), f_loads(9, 16, "s46", 1), f_loads(9, 16, "s47", 2)
    def need(tag, xr_only=False):
        e("s_lshr_b32 s38, s37, 1")
        e(f"s_lshl_b32 s38, {0x100 if xr_only else 0x101}, s38")
        e("s_andn2_b32 s39, s38, s52")
        e(f"s_cbranch_scc0 L_{tag}_ok")
        if PIPE:
            def chk(r):
                e(f"v_cmp_eq_u64 vcc, s[4:5], v[{r}:{r+1}]")
                e("s_nop 1\ns_mov_b32 s52, vcc_lo")
                e("s_andn2_b32 s39, s38, s52")
                e(f"s_cbranch_scc0 L_{tag}_ok")
            poll_pipe(e, tag, 13, "s34", chk)
            e(f"L_{tag}_ok:")
            return
        e(f"s_mov_b32 s35, {SPIN}")
        e(f"L_{tag}_rd:")
        flag_read(e, 13, "s34")
        e("s_waitcnt vmcnt(0)")
        flag_mask(e)
        e("s_nop 1\ns_mov_b32 s52, vcc_lo")
        e("s_andn2_b32 s39, s38, s52")
        e(f"s_cbranch_scc0 L_{tag}_ok")
        e(f"s_sleep {PSLEEP}")
        e("s_sub_u32 s35, s35, 1\ns_cmp_lg_u32 s35, 0")
        e(f"s_cbranch_scc1 L_{tag}_rd")
        e(f"L_{tag}_ok:")
    prep()
    e("s_waitcnt vmcnt(8)\ns_barrier")
    flag_read(e, 13, "s34")
    emit(e, AL); adv()
    for k in range(3):
        prep()
        e(f"s_waitcnt vmcnt({8 if k == 0 else 12})\ns_barrier")
        if k == 0:
            flag_mask(e)
            e("s_nop 1\ns_mov_b32 s52, vcc_lo")
        emit(e, AL)
        if k < 2: prepc(k)
        else: prepc(None, "s34")
        need(f"fx{k}", True)
        emit(e, X1); adv()
    srd(e, 12, P_WS, WS_WV, SZ_WQ)
    stamp(e, 3)
    prepc(0)
    e("s_waitcnt vmcnt(12)\ns_barrier")
    emit(e, X0)
    for x in next_slot(): e(x)
    prepc(1)
    e("s_waitcnt vmcnt(4)\ns_barrier")
    emit(e, X0)
    for x in next_slot(): e(x)
    e("s_mov_b32 s36, 0")
    prepc()
    e("s_waitcnt vmcnt(4)\ns_barrier")
    emit(e, X0)
    e("s_waitcnt vmcnt(4)\ns_barrier")
    e("s_cmp_lg_u32 s30, 0\ns_cbranch_scc1 L_pc_nf")
    flag_store(e, "s54")
    e("L_pc_nf:")
    need("fw0")
    stamp(e, 5)
    emit(e, WL); adv()
    prepc()
    need("fw1")
    emit(e, WL + X0 + X1); adv()
    e("L_gc_ptop:")
    prepc()
    e("s_waitcnt vmcnt(12)\ns_barrier")
    need("fw2")
    if CPF & 4:
        e("s_xor_b32 s26, s36, 11\ns_or_b32 s26, s26, s30\ns_cmp_lg_u32 s26, 0\ns_cbranch_scc1 L_nct3")
        code_touch(e, (0,))
        e("L_nct3:")
    emit(e, WL + X0 + X1); adv()
    e("s_cmp_lt_u32 s36, 14\ns_cbranch_scc1 L_gc_ptop")
    e("s_waitcnt vmcnt(12)\ns_barrier\ns_waitcnt vmcnt(0)\ns_barrier")
    e("s_or_b32 s26, s2, s30\ns_cmp_lg_u32 s26, 0\ns_cbranch_scc1 L_pc_end")
    lane_flag_addr(e, 13, 64)
    e(f"s_mov_b32 s34, {FL_XR}")
    flag_wait_all(e, "fall", 13, "s34")
    e(f"s_mov_b32 s26, {FL_E}")
    flag_store(e, "s26")
    e("L_pc_end:")
    stamp_flush(e, "prod")
    e("s_endpgm")

FAKEB = 0
PFDELAY = 0
def spare(e):
    srd(e, 8, P_U, 0, D*D*2)
    srd(e, 12, P_X, 0, S*D*2)
    srd(e, 16, P_WS, WS_XR, SZ_XR)
    if HALF:
        e("s_mov_b32 s22, s20\ns_sub_u32 s24, s21, 28\ns_and_b32 s23, s22, 4\ns_or_b32 s23, s23, s24")
    else:
        e("s_mov_b32 s22, s20\ns_sub_u32 s24, s21, 28\ns_add_u32 s23, s22, s24\ns_and_b32 s23, s23, 7")
    e("s_mov_b32 s53, 0")
    e("s_cmp_ge_u32 s25, 4\ns_cbranch_scc1 L_pb")
    if CPF & 1:
        e("s_cmp_lg_u32 s25, 0\ns_cbranch_scc1 L_nct1")
        code_touch(e)
        e("L_nct1:")
    e("s_lshr_b32 s30, s25, 1\ns_and_b32 s31, s25, 1")
    t_addr(e, "R", "s31", 16)
    e("v_lshrrev_b32 v5, 1, v4\nv_xor_b32 v5, v5, v3\nv_lshlrev_b32 v5, 4, v5")
    e(f"s_lshl_b32 s26, s30, 14\ns_add_u32 s26, s26, {UNIT}")
    e("v_lshlrev_b32 v6, 7, v4\nv_add3_u32 v20, v5, v6, s26\nv_xor_b32 v21, 64, v20")
    P = Phase(); P.F0, P.F1 = ACC + 128, ACC + 176
    P.addr = [(8+q, 16+q) for q in range(4)] + [(12, 20), (13, 21)]
    def reads(Fb, ks):
        out = []
        for a in range(4):
            for t in range(2):
                out.append(f"ds_read_b64_tr_b16 {vr(Fb+32+4*a+2*t,2)}, v{8+a} offset:{ks*8192 + t*1024}")
            for h in range(2):
                out.append(f"ds_read_b128 {vr(Fb+4*(2*a+h),4)}, v{12+ks} offset:{(2*a+h)*2048}")
        return out
    def mfmas(Fb):
        return [f"v_mfma_f32_16x16x32_bf16 {vr(ACC+16*a+4*b,4)}, {vr(Fb+32+4*b,4)}, {vr(Fb+4*a,4)}, {vr(ACC+16*a+4*b,4)}"
                for a, b in snake(8, 4)]
    P.reads, P.mfmas = reads, mfmas
    stamp(e, 1)
    e("L_bl:")
    for n in range(128): e(f"v_mov_b32 v{ACC+n}, 0")
    consumer(e, "gb", P, 16, drain=True)
    e("s_lshl_b32 s40, s22, 5\ns_lshl_b32 s41, s23, 2\ns_add_u32 s40, s40, s41\ns_lshl_b32 s41, s31, 1\ns_add_u32 s40, s40, s41")
    e("s_lshl_b32 s40, s40, 14\ns_lshl_b32 s41, s30, 13\ns_add_u32 s40, s40, s41")
    e("s_add_u32 s41, s40, 4096\ns_add_u32 s42, s40, 16384\ns_add_u32 s43, s40, 20480")
    e("v_lshlrev_b32 v3, 4, v2")
    n = 0
    for u in range(2):
        for a in range(8):
            d = P.F0 + 4*n; n += 1
            pack_pair(e, d, ACC + 16*a + 4*(2*u), ACC + 16*a + 4*(2*u+1))
            e(f"buffer_store_dwordx4 {vr(d,4)}, v3, s[16:19], s{40+2*u+(a>>2)} offen offset:{(a&3)*1024} {STAUX}")
    e("s_xor_b32 s23, s23, 4\ns_add_u32 s53, s53, 1\ns_cmp_lt_u32 s53, 2\ns_cbranch_scc1 L_bl")
    stamp(e, 2)
    e("s_waitcnt vmcnt(0)\ns_barrier")
    stamp_flush(e, "bcons")
    e("s_endpgm")
    e("L_pb:")
    if PPRIO: e(f"s_setprio {PPRIO}")
    e("s_sub_u32 s30, s25, 4\ns_lshl_b32 s31, s30, 10\ns_lshl_b32 s32, s30, 12")
    t_voff(e, "R", 2048, None, 8)
    e("s_and_b32 s26, s30, 1\ns_lshl_b32 s26, s26, 2")
    e("v_or_b32 v5, s26, v3\nv_and_b32 v6, 7, v2\nv_xor_b32 v5, v5, v6\nv_lshlrev_b32 v5, 4, v5")
    e("s_lshl_b32 s26, s30, 3")
    e("v_lshrrev_b32 v6, 3, v2\nv_add_u32 v6, s26, v6\nv_lshlrev_b32 v6, 11, v6")
    e("v_add_u32 v9, v5, v6")
    def prep():
        e("s_and_b32 s34, s36, 15")
        chunk_of_pos(e, "s34", "s24", "s37", "s38", "s39", 16, LEAD)
        if BROT: e("s_lshl_b32 s38, s20, 2\ns_add_u32 s37, s37, s38\ns_and_b32 s37, s37, 15")
        e(f"s_lshr_b32 s38, s36, 4\ns_lshl_b32 s38, s38, 2\ns_xor_b32 s38, s38, s23\ns_lshl_b32 s38, s38, 8\ns_lshl_b32 s45, s37, 17\ns_add_u32 s45, s45, s38")
        e(f"s_lshl_b32 s38, s22, 19\ns_lshl_b32 s46, s37, 7\ns_add_u32 s46, s46, s38")
    xl = []
    for u in range(2):
        for i in range(4):
            g = [f"s_add_u32 m0, s44, {(1+u)*UNIT + i*4096}"]
            g += [f"s_add_u32 s46, s46, {32*2048}" if (u or i) else "s_nop 0"]
            g.append("buffer_load_dwordx4 v9, s[12:15], s46 offen lds")
            xl.append(g)
    LD = t_loads(8, 8, "s45", 0, 2048) + xl
    def adv():
        for x in next_slot(): e(x)
        e("s_add_u32 s36, s36, 1")
    e(f"s_lshl_b32 s27, s22, 10\ns_lshl_b32 s26, s23, 7\ns_add_u32 s27, s27, s26\ns_add_u32 s27, s27, {FL_XR}")
    e("s_mov_b32 s36, 0")
    for _ in range(2):
        prep(); emit(e, LD); adv()
    make_tag(e)
    e("L_gb_ptop:")
    prep()
    e("s_waitcnt vmcnt(12)\ns_barrier")
    e("s_xor_b32 s26, s36, 19\ns_or_b32 s26, s26, s30\ns_cmp_lg_u32 s26, 0\ns_cbranch_scc1 L_pb_nf")
    flag_store(e, "s27")
    e("L_pb_nf:")
    if CPF & 2:
        e("s_xor_b32 s26, s36, 26\ns_or_b32 s26, s26, s30\ns_cmp_lg_u32 s26, 0\ns_cbranch_scc1 L_nct2")
        code_touch(e)
        e("L_nct2:")
    emit(e, LD); adv()
    e("s_cmp_lt_u32 s36, 32\ns_cbranch_scc1 L_gb_ptop")
    e("s_waitcnt vmcnt(12)\ns_barrier\ns_waitcnt vmcnt(0)\ns_barrier")
    e("s_barrier")
    e("s_cmp_lg_u32 s30, 0\ns_cbranch_scc1 L_pb_end")
    e("s_xor_b32 s27, s27, 512")
    flag_store(e, "s27")
    e("L_pb_end:")
    stamp_flush(e)
    e("s_endpgm")

def kernel(e):
    e(f".globl {NAME}\n.p2align 8\n.type {NAME},@function\n{NAME}:")
    if STAMP:
        for n in range(1, 8): e(f"s_mov_b64 s[{80+2*n}:{81+2*n}], 0")
    stamp(e, 0)
    e("s_load_dwordx16 s[60:75], s[0:1], 0")
    e("s_load_dwordx2 s[56:57], s[0:1], 64")
    e("s_cmp_ge_u32 s2, 256\ns_cbranch_scc1 L_end")
    e("s_and_b32 s20, s2, 7\ns_lshr_b32 s21, s2, 3")
    e("v_lshrrev_b32 v1, 6, v0\nv_and_b32 v2, 63, v0\ns_nop 0\nv_readfirstlane_b32 s25, v1")
    e("s_and_b32 s22, s20, 1\ns_lshl_b32 s22, s22, 2\ns_and_b32 s23, s21, 3\ns_add_u32 s22, s22, s23")
    e("s_lshr_b32 s23, s20, 1\ns_mul_i32 s23, s23, 7\ns_lshr_b32 s24, s21, 2\ns_add_u32 s23, s23, s24")
    e("s_add_u32 s24, s22, s23\ns_and_b32 s24, s24, 3")
    e("s_mov_b32 s33, 0")
    e(f"s_mov_b32 s26, {WS_FL + FL_E}")
    e("s_waitcnt lgkmcnt(0)")
    e("s_load_dwordx2 s[6:7], s[56:57], s26")
    srd(e, 48, P_WS, WS_FL, FL_BYTES)
    if CPF & 8:
        e("s_cmp_lg_u32 s25, 7\ns_cbranch_scc1 L_nct4")
        code_touch(e)
        e("L_nct4:")
    e("s_cmp_ge_u32 s21, 28\ns_cbranch_scc1 L_spare")
    dequant(e)
    e("s_cmp_ge_u32 s25, 4\ns_cbranch_scc1 L_mainp")
    main_consumer(e)
    e("L_mainp:")
    main_producer(e)
    e("L_spare:")
    spare(e)
    e("L_end:")
    e("s_endpgm")
    e("L_code_end:")
    e(f'.section .rodata,"a"\n.p2align 6\n.amdhsa_kernel {NAME}')
    e(f".amdhsa_next_free_vgpr 256\n.amdhsa_next_free_sgpr 96\n.amdhsa_accum_offset 256")
    e(".amdhsa_group_segment_fixed_size 0\n.amdhsa_kernarg_size 72\n.amdhsa_user_sgpr_count 2")
    e(".amdhsa_user_sgpr_kernarg_segment_ptr 1\n.amdhsa_system_sgpr_workgroup_id_x 1")
    e(".amdhsa_float_denorm_mode_32 3")
    e(".end_amdhsa_kernel")

HEADER = open("standalone__weight_only_int_quip__prompt.s.ref").read().split("; Override")[0]
ASLIST = False
def generate():
    e = Asm()
    out = HEADER
    if ASLIST:
        out += f"; @launch kernel={NAME} grid=(256,1,1) block=(512,1,1) lds={LDS_BYTES}\n"
    else:
        out += f"; @launch grid=(256,1,1) block=(512,1,1) lds={LDS_BYTES}\n"
    e('.amdgcn_target "amdgcn-amd-amdhsa--gfx950"\n.text')
    kernel(e)
    return out + e.text()

if __name__ == "__main__":
    args = [a for a in sys.argv[1:] if not a.startswith("-")]
    for a in sys.argv[1:]:
        if a.startswith("-"):
            k, v = a[1:].split("=", 1)
            globals()[k] = eval(v)
    path = args[0] if args else "standalone__weight_only_int_quip__prompt.s"
    open(path, "w").write(generate())
    print("wrote", path)
```

```python
import sys, re

S, D, F = 2048, 1024, 3584
WS_WQ, WS_WV, WS_XR, WS_FL, WS_ST = 0, 8 << 20, 16 << 20, 24 << 20, 64 << 20
SZ_WQ, SZ_XR = D * F * 2, S * D * 2
FL_WQ, FL_WV, FL_XR, FL_E = 0, 224 * 128, 448 * 128, 512 * 128
FL_BYTES = 513 * 128
NAME = "standalone__weight_only_int_quip__prompt_kernel"

NOMFMA = NOREAD = NOLOAD = False
STAMP = False
STAUX = "sc1"
OUTAUX = "sc1"
QAUX = ""
SKEW = True
LEAD = 2
NTOUCH = 0
XUT = 0
UNIT = 16384
SLOT = 3 * UNIT
LDS_BYTES = 3 * SLOT
PREB = 2
SALU_PER = 1
SPIN = 1 << 17
PSLEEP = 2
ACC = 28
TAIL = 3
DQAT = 4
CHK2 = 19
BROT = True
HALF = True
LEADC = 2
TFILL = 2
XRM = 4
AORD = "AV"

class Asm:
    def __init__(self):
        self.L = []
    def __call__(self, s):
        for line in s.split("\n"):
            line = line.strip()
            if NOMFMA and line.startswith("v_mfma"): continue
            if NOREAD and line.startswith("ds_read"): continue
            if NOLOAD and line.startswith("buffer_load") and line.endswith("lds"): continue
            if line:
                self.L.append(("    " if not line.endswith(":") and not line.startswith(".") else "") + line)
    def text(self):
        return "\n".join(self.L) + "\n"

def vr(b, n=1):
    return f"v{b}" if n == 1 else f"v[{b}:{b+n-1}]"

P_X, P_QW, P_SC, P_ZR, P_U, P_V, P_OUT, P_WS = 60, 62, 64, 66, 68, 70, 72, 56
def srd(e, d, base, add, nbytes):
    if add:
        e(f"s_add_u32 s{d}, s{base}, {add}\ns_addc_u32 s{d+1}, s{base+1}, 0")
    else:
        e(f"s_mov_b32 s{d}, s{base}\ns_mov_b32 s{d+1}, s{base+1}")
    e(f"s_mov_b32 s{d+2}, {nbytes}\ns_mov_b32 s{d+3}, 0x20000")

DIAG = ""
def stamp(e, n, diag=""):
    if n in (3, 5) and diag != DIAG: return
    if STAMP:
        e(f"s_memrealtime s[{80+2*n}:{81+2*n}]")
        if n in (1, 2):
            e(f"s_memtime s[{90+2*n}:{91+2*n}]")
DBGSTAMP = False
ECHO = None
def stamp_flush(e, role=""):
    if not STAMP:
        return
    e("s_waitcnt lgkmcnt(0) vmcnt(0)")
    stamp(e, 4)
    e("s_waitcnt lgkmcnt(0)")
    if ECHO:
        if role == "cons":
            a_, b_, mult = ECHO
            e("s_or_b32 s26, s2, s25\ns_cmp_lg_u32 s26, 0\ns_cbranch_scc1 L_echo_end")
            e(f"s_sub_u32 s26, s{80+2*b_}, s{80+2*a_}\ns_mul_i32 s26, s26, {mult}\ns_add_u32 s26, s26, 6000")
            e("L_echo:")
            e("s_memrealtime s[28:29]\ns_waitcnt lgkmcnt(0)")
            e("s_sub_u32 s27, s28, s80\ns_cmp_lt_u32 s27, s26\ns_cbranch_scc1 L_echo")
            e("L_echo_end:")
        return
    if DBGSTAMP:
        srd(e, 76, 74, 0, 256)
        e("v_mov_b32 v4, 0\ns_mov_b64 exec, 1")
        sel = {"cons": [(0, 0, 1), (1, 1, 1), (1, 2, 0), (2, 3, 1), (2, 4, 0), (3, 5, 1), (3, 6, 0), (5, 7, 1), (5, 8, 0), (4, 9, 0), (0, 15, 0)],
               "prod": [(2, 10, 0), (1, 11, 0), (3, 12, 0)], "bcons": [(2, 13, 1), (2, 14, 0)]}.get(role, [])
        for k, (st, w, inv) in enumerate(sel):
            e(f"v_mov_b32 v{8+k}, s{80+2*st}")
            if inv: e(f"v_not_b32 v{8+k}, v{8+k}")
            e(f"buffer_atomic_umax v{8+k}, v4, s[76:79], 0 offen offset:{4*w}")
        return
    srd(e, 76, P_WS, WS_ST, 1 << 20)
    e(f"s_lshl_b32 s75, s2, 3\ns_add_u32 s75, s75, s25\ns_lshl_b32 s75, s75, 6")
    for n in range(16):
        e(f"v_mov_b32 v{8+n}, s{80+n}")
    e("v_mov_b32 v4, 0")
    e("s_mov_b64 exec, 1")
    for n in range(4):
        e(f"buffer_store_dwordx4 v[{8+4*n}:{11+4*n}], v4, s[76:79], s75 offen offset:{16*n}")

def chunk_of_pos(e, spos, scls, sdst, st1, st2, nch, lead, sxor=None):
    if not SKEW:
        e(f"s_mov_b32 {sdst}, {spos}")
        return
    e(f"s_sub_u32 {st1}, {spos}, {scls}")
    e(f"s_and_b32 {st1}, {st1}, 3")
    e(f"s_cmp_le_u32 {st1}, {lead}")
    e(f"s_cselect_b32 {st2}, -1, 0")
    e(f"s_cmp_eq_u32 {st1}, 0")
    e(f"s_cselect_b32 {st2}, {lead}, {st2}")
    e(f"s_cmp_lt_u32 {spos}, {scls}")
    e(f"s_cselect_b32 {st2}, 0, {st2}")
    e(f"s_sub_u32 {st1}, {spos}, {st1}")
    e(f"s_cmp_ge_i32 {st1}, {nch-3}")
    e(f"s_cselect_b32 {st2}, 0, {st2}")
    e(f"s_add_u32 {sdst}, {spos}, {st2}")
    if sxor:
        e(f"s_xor_b32 {sdst}, {sdst}, {sxor}")

def interleave(e, mfmas, others, per=1, lead=0):
    reads = [x for x in others if x.startswith("ds_")]
    salu = [x for x in others if x.startswith("s_")]
    valu = [x for x in others if x.startswith("v_")]
    def ready(x):
        ops = [t.strip(",") for t in x.split()[1:]]
        dst, srcs = ops[0], ops[1:]
        if any(re.search(rf", {dst}( |$)", r) for r in reads): return False
        if any(y.split()[1].strip(",") in srcs for y in salu): return False
        return True
    for _ in range(lead):
        if reads: e(reads.pop(0))
    for k, m in enumerate(mfmas):
        e(m)
        c = 0
        for _ in range(per):
            if reads: e(reads.pop(0)); c += 1
        while c < 2 and valu and ready(valu[0]):
            e(valu.pop(0)); c += 1
        for _ in range(SALU_PER if c else SALU_PER + 1):
            if salu: e(salu.pop(0))
    for x in reads + salu + valu:
        e(x)

def pack_pair(e, dst, c0, c1):
    e(f"v_cvt_pk_bf16_f32 v{dst}, v{c0}, v{c0+1}")
    e(f"v_cvt_pk_bf16_f32 v{dst+1}, v{c0+2}, v{c0+3}")
    e(f"v_cvt_pk_bf16_f32 v{dst+2}, v{c1}, v{c1+1}")
    e(f"v_cvt_pk_bf16_f32 v{dst+3}, v{c1+2}, v{c1+3}")

def next_slot(s="s33"):
    return [f"s_add_u32 {s}, {s}, {SLOT}", f"s_cmp_eq_u32 {s}, {3*SLOT}", f"s_cselect_b32 {s}, 0, {s}"]

class Phase:
    pass

def consumer(e, tag, P, nst, stampn=None, drain=False, flush=True):
    def upd():
        return [f"v_add_u32 v{c}, s33, v{b}" for (c, b) in P.addr]
    for x in upd(): e(x)
    e(f"s_mov_b32 s36, {nst}")
    e("s_barrier")
    if stampn is not None: stamp(e, stampn)
    for r in P.reads(P.F0, 0): e(r)
    e(f"s_branch L_{tag}_mid")
    m1 = P.mfmas(P.F1)
    e(f"L_{tag}_top:")
    for m in m1[:PREB]: e(m)
    e("s_barrier")
    interleave(e, m1[PREB:], P.reads(P.F0, 0), lead=1)
    e(f"L_{tag}_mid:")
    e("s_waitcnt lgkmcnt(0)")
    tail = next_slot() + ["s_sub_u32 s36, s36, 1", "s_cmp_lg_u32 s36, 0"] + upd()
    interleave(e, P.mfmas(P.F0), P.reads(P.F1, 1) + tail)
    e("s_waitcnt vmcnt(0) lgkmcnt(0)" if drain else "s_waitcnt lgkmcnt(0)")
    e(f"s_cbranch_scc1 L_{tag}_top")
    if flush:
        for m in m1: e(m)

def emit(e, groups):
    for g in groups:
        for x in g: e(x)

def snake(na, nb):
    return [(a, (b if a % 2 == 0 else nb - 1 - b)) for a in range(na) for b in range(nb)]

def t_addr(e, kind, swt, dst):
    e("v_lshrrev_b32 v3, 4, v2\nv_and_b32 v4, 15, v2\nv_lshrrev_b32 v5, 2, v4\nv_and_b32 v6, 3, v4")
    e(f"v_lshlrev_b32 v7, {2 if kind == 'F' else 3}, v3\nv_add_u32 v7, v7, v5\nv_lshlrev_b32 v7, 8, v7")
    e("v_lshlrev_b32 v6, 3, v6\nv_add_u32 v7, v7, v6")
    e("v_and_b32 v6, 1, v3\nv_lshlrev_b32 v6, 2, v6\nv_or_b32 v6, v6, v5")
    e(f"s_lshl_b32 s26, {swt}, 2")
    e("v_xor_b32 v6, s26, v6")
    for q in range(4):
        e(f"v_xor_b32 v5, {q}, v6\nv_lshlrev_b32 v5, 5, v5\nv_add_u32 v{dst+q}, v7, v5")

def t_voff(e, kind, trow, scol, dst):
    e("v_lshrrev_b32 v3, 4, v2\nv_and_b32 v4, 15, v2")
    if kind == "F":
        e("s_and_b32 s26, s30, 1\ns_lshl_b32 s26, s26, 2")
    else:
        e("s_and_b32 s26, s30, 2\ns_lshl_b32 s26, s26, 1")
    e("v_or_b32 v5, s26, v3\nv_lshlrev_b32 v5, 1, v5\nv_xor_b32 v5, v5, v4\nv_lshlrev_b32 v5, 4, v5")
    e("s_lshl_b32 s26, s30, 2")
    e(f"v_add_u32 v6, s26, v3\nv_mul_u32_u24 v6, {trow}, v6")
    e(f"v_add_u32 v5, v5, v6")
    if scol: e(f"v_add_u32 v{dst}, {scol}, v5")
    else: e(f"v_mov_b32 v{dst}, v5")

def t_loads(vreg, srdn, soff, unit, trow):
    out = []
    for i in range(4):
        if i == 0:
            g = [f"s_add_u32 s44, s33, s31", f"s_add_u32 m0, s44, {unit*UNIT}", "s_nop 0"]
        else:
            g = [f"s_add_u32 m0, s44, {unit*UNIT + i*4096}", f"s_add_u32 {soff}, {soff}, {16*trow}"]
        g.append(f"buffer_load_dwordx4 v{vreg}, s[{srdn}:{srdn+3}], {soff} offen lds")
        out.append(g)
    return out

def f_loads(vreg, srdn, soff, unit):
    out = []
    for i in range(4):
        g = ["s_add_u32 s3, s33, s32", f"s_add_u32 m0, s3, {unit*UNIT}", "s_nop 0"] if i == 0 else []
        g.append(f"buffer_load_dwordx4 v{vreg}, s[{srdn}:{srdn+3}], {soff} offen offset:{i*1024} lds")
        out.append(g)
    return out

CPF = 0
_ct = [0]
def code_touch(e, halves=(0, 1)):
    _ct[0] += 1
    lab = f"L_ct{_ct[0]}"
    e("s_getpc_b64 s[76:77]")
    e(f"{lab}:")
    e(f"s_sub_u32 s76, s76, {lab}-{NAME}\ns_subb_u32 s77, s77, 0")
    e(f"s_mov_b32 s78, L_code_end-{NAME}\ns_mov_b32 s79, 0x20000")
    e("v_lshlrev_b32 v27, 7, v2")
    for h in halves:
        e(f"s_movk_i32 s3, {h*8192}")
        e("buffer_load_dword v23, v27, s[76:79], s3 offen")

def make_tag(e):
    e("s_waitcnt lgkmcnt(0)")
    e("s_mul_i32 s4, s6, 0x9e3779b1\ns_add_u32 s4, s4, 0x7f4a7c15")
    e("s_mul_i32 s5, s7, 0x85ebca6b\ns_add_u32 s5, s5, 0xc2b2ae35")
def flag_store(e, soff, off=0):
    e("v_mov_b32 v24, s4\nv_mov_b32 v25, s5\nv_mov_b32 v26, 0")
    e("s_mov_b64 exec, 1")
    e(f"buffer_store_dwordx2 v[24:25], v26, s[48:51], {soff} offen offset:{off} sc1")
    e("s_mov_b64 exec, -1")
def flag_read(e, vaddr, soff):
    e(f"buffer_load_dwordx2 v[10:11], v{vaddr}, s[48:51], {soff} offen sc1")
def flag_mask(e):
    e("v_cmp_eq_u64 vcc, s[4:5], v[10:11]")
PIPE = 0
def poll_pipe(e, tag, vaddr, soff, check):
    e(f"s_mov_b32 s35, {SPIN}")
    for k in range(PIPE - 1):
        e(f"buffer_load_dwordx2 v[{32+2*k}:{33+2*k}], v{vaddr}, s[48:51], {soff} offen sc1")
        e(f"s_sleep {PSLEEP}")
    e(f"L_{tag}_rd:")
    for k in range(PIPE):
        kk = (k - 1) % PIPE
        e(f"buffer_load_dwordx2 v[{32+2*kk}:{33+2*kk}], v{vaddr}, s[48:51], {soff} offen sc1")
        e(f"s_waitcnt vmcnt({PIPE-1})")
        check(32 + 2*k)
        e(f"s_sleep {PSLEEP}")
    e("s_sub_u32 s35, s35, 1\ns_cmp_lg_u32 s35, 0")
    e(f"s_cbranch_scc1 L_{tag}_rd")
def flag_wait_all(e, tag, vaddr, soff, preloaded=False):
    if PIPE and preloaded:
        def chk(r):
            e(f"v_cmp_ne_u64 vcc, s[4:5], v[{r}:{r+1}]")
            e(f"s_cbranch_vccz L_{tag}_ok")
        chk(10)
        poll_pipe(e, tag, vaddr, soff, chk)
        e(f"L_{tag}_ok:")
        return
    e(f"s_mov_b32 s35, {SPIN}")
    if preloaded: e(f"s_branch L_{tag}_chk")
    e(f"L_{tag}_rd:")
    flag_read(e, vaddr, soff)
    e("s_waitcnt vmcnt(0)")
    e(f"L_{tag}_chk:")
    e("v_cmp_ne_u64 vcc, s[4:5], v[10:11]")
    e(f"s_cbranch_vccz L_{tag}_ok")
    e(f"s_sleep {PSLEEP}")
    e("s_sub_u32 s35, s35, 1\ns_cmp_lg_u32 s35, 0")
    e(f"s_cbranch_scc1 L_{tag}_rd")
    e(f"L_{tag}_ok:")
def lane_flag_addr(e, dst, n):
    e(f"v_min_u32 v{dst}, {n-1}, v2\nv_lshlrev_b32 v{dst}, 7, v{dst}")

DQ_Q, DQ_SC, DQ_ZR, DQ_T = 160, 192, 196, 200
def dq_lanes(e):
    srd(e, 40, P_QW, 0, D*F*4)
    srd(e, 76, P_SC, 0, 32*F*2)
    srd(e, 16, P_ZR, 0, 32*F*2)
    e("v_lshrrev_b32 v3, 3, v2\nv_and_b32 v4, 7, v2")
    e(f"v_mul_u32_u24 v5, {F*4}, v3\nv_lshlrev_b32 v6, 4, v4\nv_add_u32 v21, v5, v6")
    e("v_lshlrev_b32 v22, 3, v4")
def dq_lanes2(e):
    e("v_lshrrev_b32 v1, 2, v4\nv_lshlrev_b32 v1, 13, v1\nv_and_b32 v6, 3, v4\nv_lshlrev_b32 v6, 8, v6")
    e("v_lshlrev_b32 v3, 4, v3\nv_add3_u32 v1, v1, v6, v3")
    srd(e, 12, P_WS, WS_WQ, SZ_WQ)
def dq_loads(e, part):
    no = 2 if part == 0 else 4
    if part == 0: e("s_mov_b32 s39, s25\ns_mov_b32 s38, s23")
    else: e("s_lshl_b32 s39, s30, 1\ns_add_u32 s38, s23, 28")
    e("s_lshl_b32 s26, s22, 3\ns_add_u32 s26, s26, s39")
    e(f"s_mul_i32 s27, s26, {16*F*4}\ns_lshl_b32 s35, s38, 8\ns_add_u32 s27, s27, s35")
    e(f"s_lshr_b32 s26, s26, 1\ns_mul_i32 s26, s26, {F*2}\ns_lshl_b32 s35, s38, 7\ns_add_u32 s26, s26, s35")
    for o in range(no):
        for t in range(2):
            e(f"buffer_load_dwordx4 {vr(DQ_Q+8*o+4*t,4)}, v21, s[40:43], s27 offen offset:{t*128} {QAUX}")
        if o == 0:
            for t in range(2):
                e(f"buffer_load_dwordx2 {vr(DQ_SC+2*t,2)}, v22, s[76:79], s26 offen offset:{t*64}")
                e(f"buffer_load_dwordx2 {vr(DQ_ZR+2*t,2)}, v22, s[16:19], s26 offen offset:{t*64}")
        if o < no - 1: e(f"s_add_u32 s27, s27, {8*F*4}")
    e("s_mul_i32 s47, s22, 56\ns_add_u32 s47, s47, s38\ns_lshl_b32 s47, s47, 14\ns_lshl_b32 s39, s39, 10\ns_add_u32 s47, s47, s39")
    e(f"s_add_u32 s59, s39, {UNIT + part*SLOT}")
def dq_math(e, part, extra=0, octs=None):
    no = 2 if part == 0 else 4
    Q, SC, ZR, T = DQ_Q, DQ_SC, DQ_ZR, DQ_T
    if part == 0: e("v_add_u32 v23, s59, v1")
    for o in (octs if octs is not None else range(no)):
        if octs is None: e(f"s_waitcnt vmcnt({2*(no-1-o) + o + extra})")
        if o == 0:
            for n in range(4):
                e(f"v_lshlrev_b32 v{T+2*n}, 16, v{SC+n}\nv_and_b32 v{T+2*n+1}, 0xffff0000, v{SC+n}")
                e(f"v_lshlrev_b32 v{T+8+2*n}, 16, v{ZR+n}\nv_and_b32 v{T+8+2*n+1}, 0xffff0000, v{ZR+n}")
        q = Q + 8*o
        for n in range(8): e(f"v_cvt_f32_i32 v{q+n}, v{q+n}")
        for n in range(8): e(f"v_cvt_pk_bf16_f32 v{q+n}, 0, v{q+n}")
        for n in range(8): e(f"v_sub_f32 v{q+n}, v{q+n}, v{T+8+n}")
        for n in range(8): e(f"v_cvt_pk_bf16_f32 v{q+n}, 0, v{q+n}")
        for n in range(8): e(f"v_mul_f32 v{q+n}, v{q+n}, v{T+n}")
        for n in range(4): e(f"v_cvt_pk_bf16_f32 v{q+n}, v{q+2*n}, v{q+2*n+1}")
        e(f"buffer_store_dwordx4 {vr(q,4)}, v1, s[12:15], s47 offen offset:{(o>>1)*1024 + (o&1)*128} {STAUX}")
        if part == 0: e(f"ds_write_b128 v23, {vr(q,4)} offset:{(o>>1)*1024 + (o&1)*128}")

def main_consumer(e):
    if CPRIO: e(f"s_setprio {CPRIO}")
    P = Phase(); P.F0, P.F1 = ACC + 128, ACC + 176
    e("s_lshr_b32 s30, s25, 1\ns_and_b32 s31, s25, 1")
    t_addr(e, "F", "s31", 16)
    e(f"s_lshl_b32 s26, s30, 12\ns_add_u32 s26, s26, {UNIT}\nv_lshlrev_b32 v5, 4, v2\nv_add_u32 v20, s26, v5")
    P.addr = [(8+q, 16+q) for q in range(4)] + [(12, 20)]
    def reads(Fb, ks):
        out = []
        for a in range(4):
            out.append(f"ds_read_b128 {vr(Fb+4*a,4)}, v12 offset:{ks*8192 + a*1024}")
            for t in range(2):
                out.append(f"ds_read_b64_tr_b16 {vr(Fb+16+4*a+2*t,2)}, v{8+a} offset:{ks*4096 + t*8192}")
        return out
    def mfmas(Fb):
        return [f"v_mfma_f32_16x16x32_bf16 {vr(ACC+16*a+4*b,4)}, {vr(Fb+4*a,4)}, {vr(Fb+16+4*b,4)}, {vr(ACC+16*a+4*b,4)}"
                for a, b in snake(4, 4)]
    P.reads, P.mfmas = reads, mfmas
    for n in range(128): e(f"v_mov_b32 v{ACC+n}, 0")
    dq_math(e, 0)
    srd(e, 16, P_WS, WS_WV, SZ_WQ)
    e("v_lshrrev_b32 v3, 4, v2\nv_and_b32 v4, 15, v2")
    e(f"s_lshl_b32 s44, s22, 8\ns_lshl_b32 s45, s25, 6\ns_add_u32 s44, s44, s45\ns_mul_i32 s44, s44, {F*2}")
    e("s_lshl_b32 s45, s23, 8\ns_add_u32 s44, s44, s45")
    for b in range(1, 4): e(f"s_add_u32 s{44+b}, s44, {16*b*F*2}")
    e(f"v_and_b32 v5, 7, v4\nv_mul_u32_u24 v5, {F*2}, v5")
    e("v_lshlrev_b32 v6, 4, v3\nv_and_b32 v7, 8, v4\nv_lshlrev_b32 v7, 3, v7\nv_add3_u32 v14, v5, v6, v7")
    e(f"v_add_u32 v15, {8*F*2}, v14")
    e("s_waitcnt vmcnt(0) lgkmcnt(0)\ns_barrier")
    consumer(e, "ga", P, 56, stampn=1)
    stamp(e, 2)
    e("s_lshl_b32 s40, s23, 5\ns_lshl_b32 s41, s22, 2\ns_add_u32 s40, s40, s41\ns_lshl_b32 s41, s30, 1\ns_add_u32 s40, s40, s41")
    e("s_lshl_b32 s40, s40, 13\ns_lshl_b32 s42, s31, 12\ns_add_u32 s40, s40, s42")
    e("s_add_u32 s41, s40, 8192")
    e("s_mov_b32 s43, s33")
    for x in next_slot("s43"): e(x)
    e("s_cmp_eq_u32 s30, 0\ns_cselect_b32 s43, s33, s43\ns_add_u32 s43, s43, s42")
    e("v_and_b32 v3, 0x33, v2\nv_lshrrev_b32 v4, 1, v2\nv_and_b32 v4, 4, v4\nv_or_b32 v3, v3, v4\nv_lshlrev_b32 v3, 4, v3")
    e("v_and_b32 v4, 4, v2\nv_lshlrev_b32 v4, 8, v4\nv_or_b32 v3, v3, v4")
    e("v_add_u32 v4, s43, v3")
    n = 0
    for u in range(2):
        for b in range(4):
            d = P.F0 + 4*n; n += 1
            pack_pair(e, d, ACC + 16*(2*u) + 4*b, ACC + 16*(2*u+1) + 4*b)
            e(f"buffer_store_dwordx4 {vr(d,4)}, v3, s[16:19], s{40+u} offen offset:{(b>>1)*2048 + (b&1)*128} {STAUX}")
            e(f"ds_write_b128 v4, {vr(d,4)} offset:{u*8192 + (b>>1)*2048 + (b&1)*128}")
    for n in range(64): e(f"v_mov_b32 v{ACC+n}, 0")
    srd(e, 16, P_OUT, 0, S*F*2)
    e("v_lshlrev_b32 v16, 4, v2")
    e(f"s_lshl_b32 s26, s25, 12\ns_add_u32 s26, s26, {UNIT}\nv_add_u32 v17, s26, v16")
    P.addr = [(9, 17), (8, 16)]
    def reads(Fb, ks):
        xr = [f"ds_read_b128 {vr(Fb+32+4*b,4)}, v9 offset:{ks*UNIT + b*1024}" for b in range(4)]
        wv = [f"ds_read_b128 {vr(Fb+4*a,4)}, v8 offset:{ks*8192 + a*1024}" for a in range(8)]
        return xr + wv
    def mfmas(Fb):
        return [f"v_mfma_f32_16x16x32_bf16 {vr(ACC+16*a+4*b,4)}, {vr(Fb+4*a,4)}, {vr(Fb+32+4*b,4)}, {vr(ACC+16*a+4*b,4)}"
                for a, b in snake(8, 4)]
    P.reads, P.mfmas = reads, mfmas
    e("s_waitcnt lgkmcnt(0)")
    consumer(e, "gc", P, 16 - TAIL, stampn=3, drain=True, flush=(TAIL == 0))
    def out_ops(Ln, temps):
        ops = []
        for b in range(4):
            d = temps[b % len(temps)]
            for h in range(2):
                u = 2*Ln + h
                c0, c1 = ACC + 16*(2*u) + 4*b, ACC + 16*(2*u+1) + 4*b
                ops += [f"v_cvt_pk_bf16_f32 v{d+4*h}, v{c0}, v{c0+1}", f"v_cvt_pk_bf16_f32 v{d+4*h+1}, v{c0+2}, v{c0+3}",
                        f"v_cvt_pk_bf16_f32 v{d+4*h+2}, v{c1}, v{c1+1}", f"v_cvt_pk_bf16_f32 v{d+4*h+3}, v{c1+2}, v{c1+3}"]
            ops += [f"v_mov_b32 v{d+8+j}, v{d+j}" for j in range(4)]
            ops += [f"v_mov_b32_dpp v{d+j}, v{d+4+j} row_ror:8 row_mask:0xf bank_mask:0xc" for j in range(4)]
            ops += [f"v_mov_b32_dpp v{d+4+j}, v{d+8+j} row_ror:8 row_mask:0xf bank_mask:0x3" for j in range(4)]
            ops += [f"buffer_store_dwordx4 {vr(d,4)}, v14, s[16:19], s{44+b} offen offset:{Ln*128} {OUTAUX}",
                    f"buffer_store_dwordx4 {vr(d+4,4)}, v15, s[16:19], s{44+b} offen offset:{Ln*128} {OUTAUX}"]
        return ops
    if TAIL:
        for t in range(1, TAIL):
            for x in next_slot(): e(x)
            e(f"v_add_u32 v{8+2*t}, s33, v16\nv_add_u32 v{9+2*t}, s33, v17")
        seq = [(g, t, ks) for g in range(2) for t in range(TAIL) for ks in range(2)]
        def hreads(Fb, g, t, ks):
            out = []
            for k in range(4):
                out.append(f"ds_read_b128 {vr(Fb+16+4*k,4)}, v{9+2*t} offset:{ks*UNIT + k*1024}")
                out.append(f"ds_read_b128 {vr(Fb+4*k,4)}, v{8+2*t} offset:{ks*8192 + (4*g+k)*1024}")
            return out
        def hmfmas(Fb, g):
            return [f"v_mfma_f32_16x16x32_bf16 {vr(ACC+16*(4*g+a)+4*b,4)}, {vr(Fb+4*a,4)}, {vr(Fb+16+4*b,4)}, {vr(ACC+16*(4*g+a)+4*b,4)}"
                    for a, b in snake(4, 4)]
        pend = P.mfmas(P.F1)
        fill = out_ops(0, [P.F0 + 32, P.F1 + 32])
        for n, (g, t, ks) in enumerate(seq + [(None, None, None)]):
            Fb = P.F0 if n % 2 == 0 else P.F1
            rd = hreads(Fb, g, t, ks) if g is not None else []
            usefill = n >= 2*TAIL + 1
            k0 = 0
            if g == 0 and ks == 0:
                for m in pend[:PREB]: e(m)
                e("s_barrier")
                k0 = PREB
                e(rd.pop(0))
            for k, m in enumerate(pend[k0:]):
                e(m)
                c = 0
                if rd: e(rd.pop(0)); c += 1
                if usefill and (n > 2*TAIL + 1 or k >= 4):
                    while fill and c < TFILL:
                        e(fill.pop(0)); c += 1
            if g is not None:
                e("s_waitcnt lgkmcnt(0)")
                pend = hmfmas(Fb, g)
        stamp(e, 5)
        for x in fill: e(x)
        e("s_nop 7")
        for x in out_ops(1, [P.F0, P.F0 + 12, P.F1, P.F1 + 12]): e(x)
    else:
        stamp(e, 5)
        e("s_nop 7")
        for Ln in range(2):
            for x in out_ops(Ln, [P.F0 + 48*Ln + 12*k for k in range(4)]): e(x)
    stamp_flush(e, "cons")
    e("s_endpgm")

PPRIO = 0
CPRIO = 0
def main_producer(e):
    if PPRIO: e(f"s_setprio {PPRIO}")
    e("s_sub_u32 s30, s25, 4\ns_lshl_b32 s31, s30, 10\ns_lshl_b32 s32, s30, 12")
    srd(e, 8, P_V, 0, F*F*2)
    e("s_lshl_b32 s27, s23, 8")
    t_voff(e, "F", F*2, "s27", 8)
    e("v_lshlrev_b32 v5, 4, v2\nv_add_u32 v9, s32, v5")
    e(f"s_mul_i32 s28, s22, {112*8192}")
    e(f"s_and_b32 s29, s20, 1\ns_mul_i32 s29, s29, {XRM}")
    e(f"s_add_u32 s53, s24, {DQAT}")
    def prep(own=None):
        if own is None:
            chunk_of_pos(e, "s36", "s24", "s37", "s38", "s39", 55, LEAD)
            e("s_xor_b32 s38, s37, s29\ns_cmp_lt_u32 s37, 48\ns_cselect_b32 s37, s38, s37")
            e("s_cmp_ge_u32 s37, s23\ns_addc_u32 s37, s37, 0")
        else:
            e(f"s_mov_b32 s37, s23")
        e(f"s_mul_i32 s45, s37, {64*F*2}")
        e("s_lshl_b32 s46, s37, 14\ns_add_u32 s46, s46, s28")
    TL, FL = t_loads(8, 8, "s45", 0, F*2), f_loads(9, 12, "s46", 1)
    AL = (TL + FL) if AORD == "VA" else (FL + TL)
    def adv():
        for x in next_slot(): e(x)
        e("s_add_u32 s36, s36, 1")
    prep(0); emit(e, TL)
    for x in next_slot(): e(x)
    lane_flag_addr(e, 13, 28)
    e(f"s_mul_i32 s34, s22, {28*128}")
    e("s_lshl_b32 s54, s23, 7\ns_add_u32 s54, s54, s34")
    dq_math(e, 0, extra=4)
    make_tag(e)
    e("s_waitcnt vmcnt(0)")
    e("s_barrier")
    stamp(e, 2)
    e("s_cmp_lg_u32 s30, 0\ns_cbranch_scc1 L_pa_nf")
    flag_store(e, "s54")
    e("L_pa_nf:")
    e("s_barrier")
    e("s_mov_b32 s36, 0")
    for _ in range(2):
        prep(); emit(e, TL); adv()
    flag_read(e, 13, "s34")
    e(f"s_mov_b32 s36, 0\ns_mov_b32 s33, {SLOT}")
    prep()
    e("s_waitcnt vmcnt(0)")
    flag_wait_all(e, "fwq", 13, "s34", preloaded=True)
    stamp(e, 1)
    emit(e, FL); adv()
    prep(); emit(e, FL); adv()
    prep()
    e("s_waitcnt vmcnt(4)\ns_barrier")
    emit(e, AL); adv()
    e("s_add_u32 s34, s34, 64")
    e("L_ga_ptop0:")
    prep()
    e("s_waitcnt vmcnt(8)\ns_barrier")
    emit(e, AL); adv()
    e("s_cmp_lt_u32 s36, s53\ns_cbranch_scc1 L_ga_ptop0")
    fl = ["st"] * 8
    fl = [-1] * 8
    for it in range(8):
        prep()
        keep = len(fl) - max([k + 1 for k, t in enumerate(fl) if t == it - 2] + [0]) if it >= 1 else 8
        e(f"s_waitcnt vmcnt({keep})\ns_barrier")
        if it == 7:
            e("s_cmp_lg_u32 s30, 0\ns_cbranch_scc1 L_pa_nf2")
            flag_store(e, "s54", 64)
            e("L_pa_nf2:")
        emit(e, AL); adv(); fl += [it] * 8
        if it == 0:
            dq_loads(e, 1); fl += ["q"] * 12
        if it in (3, 4):
            dq_math(e, 1, octs=(0, 1) if it == 3 else (2, 3)); fl += ["w"] * 2
    e("L_ga_ptop1:")
    prep()
    e("s_waitcnt vmcnt(8)\ns_barrier")
    emit(e, AL); adv()
    e(f"s_cmp_lt_u32 s36, {CHK2}\ns_cbranch_scc1 L_ga_ptop1")
    prep()
    e("s_waitcnt vmcnt(8)\ns_barrier")
    flag_read(e, 13, "s34")
    emit(e, AL); adv()
    prep()
    e("s_waitcnt vmcnt(8)\ns_barrier")
    flag_wait_all(e, "fwq2", 13, "s34", preloaded=True)
    emit(e, AL); adv()
    e(f"v_min_u32 v13, 15, v2\nv_lshlrev_b32 v14, 7, v13")
    e(f"s_lshl_b32 s26, s23, 10\ns_add_u32 s26, s26, {FL_WV}\ns_lshl_b32 s27, s22, 10\ns_add_u32 s27, s27, {FL_XR - 1024}")
    e("v_mov_b32 v3, s26\nv_mov_b32 v4, s27\nv_cmp_gt_u32 vcc, 8, v13\ns_nop 1\nv_cndmask_b32 v3, v4, v3, vcc\nv_add_u32 v13, v14, v3")
    e("s_lshl_b32 s54, s22, 7\ns_add_u32 s54, s54, s26")
    srd(e, 16, P_WS, WS_XR, SZ_XR)
    e("L_ga_ptop:")
    prep()
    e("s_waitcnt vmcnt(8)\ns_barrier")
    emit(e, AL); adv()
    e("s_cmp_lt_u32 s36, 51\ns_cbranch_scc1 L_ga_ptop")
    e("s_lshl_b32 s55, s22, 19\ns_lshl_b32 s58, s23, 18\ns_and_b32 s59, s23, 3\ns_lshl_b32 s27, s22, 1")
    e("s_mov_b32 s52, 0\ns_mov_b32 s34, 0")
    def prepc(own=None, pos="s36"):
        if own is None:
            chunk_of_pos(e, pos, "s59", "s37", "s38", "s39", 14, LEADC)
            if HALF:
                e("s_add_u32 s37, s37, 2\ns_add_u32 s38, s37, s27\ns_and_b32 s38, s38, 7\ns_xor_b32 s37, s37, s27\ns_and_b32 s37, s37, 8\ns_or_b32 s37, s37, s38")
            else:
                e("s_add_u32 s37, s37, s27\ns_add_u32 s37, s37, 2\ns_and_b32 s37, s37, 15")
        else:
            e(f"s_add_u32 s37, s27, {own}")
        e("s_lshl_b32 s45, s37, 14\ns_add_u32 s45, s45, s58")
        e("s_lshl_b32 s46, s37, 15\ns_add_u32 s46, s46, s55\ns_add_u32 s47, s46, 16384")
    WL, X0, X1 = f_loads(9, 12, "s45", 0), f_loads(9, 16, "s46", 1), f_loads(9, 16, "s47", 2)
    def need(tag, xr_only=False):
        e("s_lshr_b32 s38, s37, 1")
        e(f"s_lshl_b32 s38, {0x100 if xr_only else 0x101}, s38")
        e("s_andn2_b32 s39, s38, s52")
        e(f"s_cbranch_scc0 L_{tag}_ok")
        if PIPE:
            def chk(r):
                e(f"v_cmp_eq_u64 vcc, s[4:5], v[{r}:{r+1}]")
                e("s_nop 1\ns_mov_b32 s52, vcc_lo")
                e("s_andn2_b32 s39, s38, s52")
                e(f"s_cbranch_scc0 L_{tag}_ok")
            poll_pipe(e, tag, 13, "s34", chk)
            e(f"L_{tag}_ok:")
            return
        e(f"s_mov_b32 s35, {SPIN}")
        e(f"L_{tag}_rd:")
        flag_read(e, 13, "s34")
        e("s_waitcnt vmcnt(0)")
        flag_mask(e)
        e("s_nop 1\ns_mov_b32 s52, vcc_lo")
        e("s_andn2_b32 s39, s38, s52")
        e(f"s_cbranch_scc0 L_{tag}_ok")
        e(f"s_sleep {PSLEEP}")
        e("s_sub_u32 s35, s35, 1\ns_cmp_lg_u32 s35, 0")
        e(f"s_cbranch_scc1 L_{tag}_rd")
        e(f"L_{tag}_ok:")
    prep()
    e("s_waitcnt vmcnt(8)\ns_barrier")
    flag_read(e, 13, "s34")
    emit(e, AL); adv()
    for k in range(3):
        prep()
        e(f"s_waitcnt vmcnt({8 if k == 0 else 12})\ns_barrier")
        if k == 0:
            flag_mask(e)
            e("s_nop 1\ns_mov_b32 s52, vcc_lo")
        emit(e, AL)
        if k < 2: prepc(k)
        else: prepc(None, "s34")
        need(f"fx{k}", True)
        emit(e, X1); adv()
    srd(e, 12, P_WS, WS_WV, SZ_WQ)
    stamp(e, 3)
    prepc(0)
    e("s_waitcnt vmcnt(12)\ns_barrier")
    emit(e, X0)
    for x in next_slot(): e(x)
    prepc(1)
    e("s_waitcnt vmcnt(4)\ns_barrier")
    emit(e, X0)
    for x in next_slot(): e(x)
    e("s_mov_b32 s36, 0")
    prepc()
    e("s_waitcnt vmcnt(4)\ns_barrier")
    emit(e, X0)
    e("s_waitcnt vmcnt(4)\ns_barrier")
    e("s_cmp_lg_u32 s30, 0\ns_cbranch_scc1 L_pc_nf")
    flag_store(e, "s54")
    e("L_pc_nf:")
    need("fw0")
    stamp(e, 5)
    emit(e, WL); adv()
    prepc()
    need("fw1")
    emit(e, WL + X0 + X1); adv()
    e("L_gc_ptop:")
    prepc()
    e("s_waitcnt vmcnt(12)\ns_barrier")
    need("fw2")
    if CPF & 4:
        e("s_xor_b32 s26, s36, 11\ns_or_b32 s26, s26, s30\ns_cmp_lg_u32 s26, 0\ns_cbranch_scc1 L_nct3")
        code_touch(e, (0,))
        e("L_nct3:")
    emit(e, WL + X0 + X1); adv()
    e("s_cmp_lt_u32 s36, 14\ns_cbranch_scc1 L_gc_ptop")
    e("s_waitcnt vmcnt(12)\ns_barrier\ns_waitcnt vmcnt(0)\ns_barrier")
    e("s_or_b32 s26, s2, s30\ns_cmp_lg_u32 s26, 0\ns_cbranch_scc1 L_pc_end")
    lane_flag_addr(e, 13, 64)
    e(f"s_mov_b32 s34, {FL_XR}")
    flag_wait_all(e, "fall", 13, "s34")
    e(f"s_mov_b32 s26, {FL_E}")
    flag_store(e, "s26")
    e("L_pc_end:")
    stamp_flush(e, "prod")
    e("s_endpgm")

FAKEB = 0
PFDELAY = 0
def spare(e):
    srd(e, 8, P_U, 0, D*D*2)
    srd(e, 12, P_X, 0, S*D*2)
    srd(e, 16, P_WS, WS_XR, SZ_XR)
    if HALF:
        e("s_mov_b32 s22, s20\ns_sub_u32 s24, s21, 28\ns_and_b32 s23, s22, 4\ns_or_b32 s23, s23, s24")
    else:
        e("s_mov_b32 s22, s20\ns_sub_u32 s24, s21, 28\ns_add_u32 s23, s22, s24\ns_and_b32 s23, s23, 7")
    e("s_mov_b32 s53, 0")
    e("s_cmp_ge_u32 s25, 4\ns_cbranch_scc1 L_pb")
    if CPF & 1:
        e("s_cmp_lg_u32 s25, 0\ns_cbranch_scc1 L_nct1")
        code_touch(e)
        e("L_nct1:")
    e("s_lshr_b32 s30, s25, 1\ns_and_b32 s31, s25, 1")
    t_addr(e, "R", "s31", 16)
    e("v_lshrrev_b32 v5, 1, v4\nv_xor_b32 v5, v5, v3\nv_lshlrev_b32 v5, 4, v5")
    e(f"s_lshl_b32 s26, s30, 14\ns_add_u32 s26, s26, {UNIT}")
    e("v_lshlrev_b32 v6, 7, v4\nv_add3_u32 v20, v5, v6, s26\nv_xor_b32 v21, 64, v20")
    P = Phase(); P.F0, P.F1 = ACC + 128, ACC + 176
    P.addr = [(8+q, 16+q) for q in range(4)] + [(12, 20), (13, 21)]
    def reads(Fb, ks):
        out = []
        for a in range(4):
            for t in range(2):
                out.append(f"ds_read_b64_tr_b16 {vr(Fb+32+4*a+2*t,2)}, v{8+a} offset:{ks*8192 + t*1024}")
            for h in range(2):
                out.append(f"ds_read_b128 {vr(Fb+4*(2*a+h),4)}, v{12+ks} offset:{(2*a+h)*2048}")
        return out
    def mfmas(Fb):
        return [f"v_mfma_f32_16x16x32_bf16 {vr(ACC+16*a+4*b,4)}, {vr(Fb+32+4*b,4)}, {vr(Fb+4*a,4)}, {vr(ACC+16*a+4*b,4)}"
                for a, b in snake(8, 4)]
    P.reads, P.mfmas = reads, mfmas
    stamp(e, 1)
    e("L_bl:")
    for n in range(128): e(f"v_mov_b32 v{ACC+n}, 0")
    consumer(e, "gb", P, 16, drain=True)
    e("s_lshl_b32 s40, s22, 5\ns_lshl_b32 s41, s23, 2\ns_add_u32 s40, s40, s41\ns_lshl_b32 s41, s31, 1\ns_add_u32 s40, s40, s41")
    e("s_lshl_b32 s40, s40, 14\ns_lshl_b32 s41, s30, 13\ns_add_u32 s40, s40, s41")
    e("s_add_u32 s41, s40, 4096\ns_add_u32 s42, s40, 16384\ns_add_u32 s43, s40, 20480")
    e("v_lshlrev_b32 v3, 4, v2")
    n = 0
    for u in range(2):
        for a in range(8):
            d = P.F0 + 4*n; n += 1
            pack_pair(e, d, ACC + 16*a + 4*(2*u), ACC + 16*a + 4*(2*u+1))
            e(f"buffer_store_dwordx4 {vr(d,4)}, v3, s[16:19], s{40+2*u+(a>>2)} offen offset:{(a&3)*1024} {STAUX}")
    e("s_xor_b32 s23, s23, 4\ns_add_u32 s53, s53, 1\ns_cmp_lt_u32 s53, 2\ns_cbranch_scc1 L_bl")
    stamp(e, 2)
    e("s_waitcnt vmcnt(0)\ns_barrier")
    stamp_flush(e, "bcons")
    e("s_endpgm")
    e("L_pb:")
    if PPRIO: e(f"s_setprio {PPRIO}")
    e("s_sub_u32 s30, s25, 4\ns_lshl_b32 s31, s30, 10\ns_lshl_b32 s32, s30, 12")
    t_voff(e, "R", 2048, None, 8)
    e("s_and_b32 s26, s30, 1\ns_lshl_b32 s26, s26, 2")
    e("v_or_b32 v5, s26, v3\nv_and_b32 v6, 7, v2\nv_xor_b32 v5, v5, v6\nv_lshlrev_b32 v5, 4, v5")
    e("s_lshl_b32 s26, s30, 3")
    e("v_lshrrev_b32 v6, 3, v2\nv_add_u32 v6, s26, v6\nv_lshlrev_b32 v6, 11, v6")
    e("v_add_u32 v9, v5, v6")
    def prep():
        e("s_and_b32 s34, s36, 15")
        chunk_of_pos(e, "s34", "s24", "s37", "s38", "s39", 16, LEAD)
        if BROT: e("s_lshl_b32 s38, s20, 2\ns_add_u32 s37, s37, s38\ns_and_b32 s37, s37, 15")
        e(f"s_lshr_b32 s38, s36, 4\ns_lshl_b32 s38, s38, 2\ns_xor_b32 s38, s38, s23\ns_lshl_b32 s38, s38, 8\ns_lshl_b32 s45, s37, 17\ns_add_u32 s45, s45, s38")
        e(f"s_lshl_b32 s38, s22, 19\ns_lshl_b32 s46, s37, 7\ns_add_u32 s46, s46, s38")
    xl = []
    for u in range(2):
        for i in range(4):
            g = [f"s_add_u32 m0, s44, {(1+u)*UNIT + i*4096}"]
            g += [f"s_add_u32 s46, s46, {32*2048}" if (u or i) else "s_nop 0"]
            g.append("buffer_load_dwordx4 v9, s[12:15], s46 offen lds")
            xl.append(g)
    LD = t_loads(8, 8, "s45", 0, 2048) + xl
    def adv():
        for x in next_slot(): e(x)
        e("s_add_u32 s36, s36, 1")
    e(f"s_lshl_b32 s27, s22, 10\ns_lshl_b32 s26, s23, 7\ns_add_u32 s27, s27, s26\ns_add_u32 s27, s27, {FL_XR}")
    e("s_mov_b32 s36, 0")
    for _ in range(2):
        prep(); emit(e, LD); adv()
    make_tag(e)
    e("L_gb_ptop:")
    prep()
    e("s_waitcnt vmcnt(12)\ns_barrier")
    e("s_xor_b32 s26, s36, 19\ns_or_b32 s26, s26, s30\ns_cmp_lg_u32 s26, 0\ns_cbranch_scc1 L_pb_nf")
    flag_store(e, "s27")
    e("L_pb_nf:")
    if CPF & 2:
        e("s_xor_b32 s26, s36, 26\ns_or_b32 s26, s26, s30\ns_cmp_lg_u32 s26, 0\ns_cbranch_scc1 L_nct2")
        code_touch(e)
        e("L_nct2:")
    emit(e, LD); adv()
    e("s_cmp_lt_u32 s36, 32\ns_cbranch_scc1 L_gb_ptop")
    e("s_waitcnt vmcnt(12)\ns_barrier\ns_waitcnt vmcnt(0)\ns_barrier")
    e("s_barrier")
    e("s_cmp_lg_u32 s30, 0\ns_cbranch_scc1 L_pb_end")
    e("s_xor_b32 s27, s27, 512")
    flag_store(e, "s27")
    e("L_pb_end:")
    stamp_flush(e)
    e("s_endpgm")

def kernel(e):
    e(f".globl {NAME}\n.p2align 8\n.type {NAME},@function\n{NAME}:")
    if STAMP:
        for n in range(1, 8): e(f"s_mov_b64 s[{80+2*n}:{81+2*n}], 0")
    stamp(e, 0)
    e("s_load_dwordx16 s[60:75], s[0:1], 0")
    e("s_load_dwordx2 s[56:57], s[0:1], 64")
    e("s_cmp_ge_u32 s2, 256\ns_cbranch_scc1 L_end")
    e("s_and_b32 s20, s2, 7\ns_lshr_b32 s21, s2, 3")
    e("v_lshrrev_b32 v1, 6, v0\nv_and_b32 v2, 63, v0\ns_nop 0\nv_readfirstlane_b32 s25, v1")
    e("s_and_b32 s22, s20, 1\ns_lshl_b32 s22, s22, 2\ns_and_b32 s23, s21, 3\ns_add_u32 s22, s22, s23")
    e("s_lshr_b32 s23, s20, 1\ns_mul_i32 s23, s23, 7\ns_lshr_b32 s24, s21, 2\ns_add_u32 s23, s23, s24")
    e("s_add_u32 s24, s22, s23\ns_and_b32 s24, s24, 3")
    e("s_mov_b32 s33, 0")
    e(f"s_mov_b32 s26, {WS_FL + FL_E}")
    e("s_waitcnt lgkmcnt(0)")
    e("s_load_dwordx2 s[6:7], s[56:57], s26")
    srd(e, 48, P_WS, WS_FL, FL_BYTES)
    if CPF & 8:
        e("s_cmp_lg_u32 s25, 7\ns_cbranch_scc1 L_nct4")
        code_touch(e)
        e("L_nct4:")
    e("s_cmp_ge_u32 s21, 28\ns_cbranch_scc1 L_spare")
    dq_lanes(e)
    dq_loads(e, 0)
    dq_lanes2(e)
    e("s_cmp_ge_u32 s25, 4\ns_cbranch_scc1 L_mainp")
    main_consumer(e)
    e("L_mainp:")
    main_producer(e)
    e("L_spare:")
    spare(e)
    e("L_end:")
    e("s_endpgm")
    e("L_code_end:")
    e(f'.section .rodata,"a"\n.p2align 6\n.amdhsa_kernel {NAME}')
    e(f".amdhsa_next_free_vgpr 256\n.amdhsa_next_free_sgpr 96\n.amdhsa_accum_offset 256")
    e(".amdhsa_group_segment_fixed_size 0\n.amdhsa_kernarg_size 72\n.amdhsa_user_sgpr_count 2")
    e(".amdhsa_user_sgpr_kernarg_segment_ptr 1\n.amdhsa_system_sgpr_workgroup_id_x 1")
    e(".amdhsa_float_denorm_mode_32 3")
    e(".end_amdhsa_kernel")

HEADER = open("standalone__weight_only_int_quip__prompt.s.ref").read().split("; Override")[0]
ASLIST = False
def generate():
    e = Asm()
    out = HEADER
    if ASLIST:
        out += f"; @launch kernel={NAME} grid=(256,1,1) block=(512,1,1) lds={LDS_BYTES}\n"
    else:
        out += f"; @launch grid=(256,1,1) block=(512,1,1) lds={LDS_BYTES}\n"
    e('.amdgcn_target "amdgcn-amd-amdhsa--gfx950"\n.text')
    kernel(e)
    return out + e.text()

if __name__ == "__main__":
    args = [a for a in sys.argv[1:] if not a.startswith("-")]
    for a in sys.argv[1:]:
        if a.startswith("-"):
            k, v = a[1:].split("=", 1)
            globals()[k] = eval(v)
    path = args[0] if args else "standalone__weight_only_int_quip__prompt.s"
    open(path, "w").write(generate())
    print("wrote", path)
```

```python
import sys, re

S, D, F = 2048, 1024, 3584
WS_WQ, WS_WV, WS_XR, WS_FL, WS_ST = 0, 8 << 20, 16 << 20, 24 << 20, 64 << 20
SZ_WQ, SZ_XR = D * F * 2, S * D * 2
FL_WQ, FL_WV, FL_XR, FL_E = 0, 224 * 128, 448 * 128, 512 * 128
FL_BYTES = 513 * 128
NAME = "standalone__weight_only_int_quip__prompt_kernel"

NOMFMA = NOREAD = NOLOAD = False
STAMP = False
STAUX = "sc1"
OUTAUX = "sc1"
QAUX = ""
SKEW = True
LEAD = 2
NTOUCH = 0
XUT = 0
UNIT = 16384
SLOT = 3 * UNIT
LDS_BYTES = 3 * SLOT
PREB = 2
SALU_PER = 1
SPIN = 1 << 17
PSLEEP = 2
ACC = 28
TAIL = 3
DQAT = 4
DQSPREAD = 4
DQFIRST = False
DQCLS = True
CHK2 = 20
BROT = True
HALF = True
LEADC = 2
TFILL = 2
XRM = 4
AORD = "AV"

class Asm:
    def __init__(self):
        self.L = []
    def __call__(self, s):
        for line in s.split("\n"):
            line = line.strip()
            if NOMFMA and line.startswith("v_mfma"): continue
            if NOREAD and line.startswith("ds_read"): continue
            if NOLOAD and line.startswith("buffer_load") and line.endswith("lds"): continue
            if line:
                self.L.append(("    " if not line.endswith(":") and not line.startswith(".") else "") + line)
    def text(self):
        return "\n".join(self.L) + "\n"

def vr(b, n=1):
    return f"v{b}" if n == 1 else f"v[{b}:{b+n-1}]"

P_X, P_QW, P_SC, P_ZR, P_U, P_V, P_OUT, P_WS = 60, 62, 64, 66, 68, 70, 72, 56
def srd(e, d, base, add, nbytes):
    if add:
        e(f"s_add_u32 s{d}, s{base}, {add}\ns_addc_u32 s{d+1}, s{base+1}, 0")
    else:
        e(f"s_mov_b32 s{d}, s{base}\ns_mov_b32 s{d+1}, s{base+1}")
    e(f"s_mov_b32 s{d+2}, {nbytes}\ns_mov_b32 s{d+3}, 0x20000")

DIAG = ""
def stamp(e, n, diag=""):
    if n in (3, 5) and diag != DIAG: return
    if STAMP:
        e(f"s_memrealtime s[{80+2*n}:{81+2*n}]")
        if n in (1, 2):
            e(f"s_memtime s[{90+2*n}:{91+2*n}]")
DBGSTAMP = False
ECHO = None
def stamp_flush(e, role=""):
    if not STAMP:
        return
    e("s_waitcnt lgkmcnt(0) vmcnt(0)")
    stamp(e, 4)
    e("s_waitcnt lgkmcnt(0)")
    if ECHO:
        if role == "cons":
            a_, b_, mult = ECHO
            e("s_or_b32 s26, s2, s25\ns_cmp_lg_u32 s26, 0\ns_cbranch_scc1 L_echo_end")
            e(f"s_sub_u32 s26, s{80+2*b_}, s{80+2*a_}\ns_mul_i32 s26, s26, {mult}\ns_add_u32 s26, s26, 6000")
            e("L_echo:")
            e("s_memrealtime s[28:29]\ns_waitcnt lgkmcnt(0)")
            e("s_sub_u32 s27, s28, s80\ns_cmp_lt_u32 s27, s26\ns_cbranch_scc1 L_echo")
            e("L_echo_end:")
        return
    if DBGSTAMP:
        srd(e, 76, 74, 0, 256)
        e("v_mov_b32 v4, 0\ns_mov_b64 exec, 1")
        sel = {"cons": [(0, 0, 1), (1, 1, 1), (1, 2, 0), (2, 3, 1), (2, 4, 0), (3, 5, 1), (3, 6, 0), (5, 7, 1), (5, 8, 0), (4, 9, 0), (0, 15, 0)],
               "prod": [(2, 10, 0), (1, 11, 0), (3, 12, 0)], "bcons": [(2, 13, 1), (2, 14, 0)]}.get(role, [])
        for k, (st, w, inv) in enumerate(sel):
            e(f"v_mov_b32 v{8+k}, s{80+2*st}")
            if inv: e(f"v_not_b32 v{8+k}, v{8+k}")
            e(f"buffer_atomic_umax v{8+k}, v4, s[76:79], 0 offen offset:{4*w}")
        return
    srd(e, 76, P_WS, WS_ST, 1 << 20)
    e(f"s_lshl_b32 s75, s2, 3\ns_add_u32 s75, s75, s25\ns_lshl_b32 s75, s75, 6")
    for n in range(16):
        e(f"v_mov_b32 v{8+n}, s{80+n}")
    e("v_mov_b32 v4, 0")
    e("s_mov_b64 exec, 1")
    for n in range(4):
        e(f"buffer_store_dwordx4 v[{8+4*n}:{11+4*n}], v4, s[76:79], s75 offen offset:{16*n}")

def chunk_of_pos(e, spos, scls, sdst, st1, st2, nch, lead, sxor=None):
    if not SKEW:
        e(f"s_mov_b32 {sdst}, {spos}")
        return
    e(f"s_sub_u32 {st1}, {spos}, {scls}")
    e(f"s_and_b32 {st1}, {st1}, 3")
    e(f"s_cmp_le_u32 {st1}, {lead}")
    e(f"s_cselect_b32 {st2}, -1, 0")
    e(f"s_cmp_eq_u32 {st1}, 0")
    e(f"s_cselect_b32 {st2}, {lead}, {st2}")
    e(f"s_cmp_lt_u32 {spos}, {scls}")
    e(f"s_cselect_b32 {st2}, 0, {st2}")
    e(f"s_sub_u32 {st1}, {spos}, {st1}")
    e(f"s_cmp_ge_i32 {st1}, {nch-3}")
    e(f"s_cselect_b32 {st2}, 0, {st2}")
    e(f"s_add_u32 {sdst}, {spos}, {st2}")
    if sxor:
        e(f"s_xor_b32 {sdst}, {sdst}, {sxor}")

def interleave(e, mfmas, others, per=1, lead=0):
    reads = [x for x in others if x.startswith("ds_")]
    salu = [x for x in others if x.startswith("s_")]
    valu = [x for x in others if x.startswith("v_")]
    def ready(x):
        ops = [t.strip(",") for t in x.split()[1:]]
        dst, srcs = ops[0], ops[1:]
        if any(re.search(rf", {dst}( |$)", r) for r in reads): return False
        if any(y.split()[1].strip(",") in srcs for y in salu): return False
        return True
    for _ in range(lead):
        if reads: e(reads.pop(0))
    for k, m in enumerate(mfmas):
        e(m)
        c = 0
        for _ in range(per):
            if reads: e(reads.pop(0)); c += 1
        while c < 2 and valu and ready(valu[0]):
            e(valu.pop(0)); c += 1
        for _ in range(SALU_PER if c else SALU_PER + 1):
            if salu: e(salu.pop(0))
    for x in reads + salu + valu:
        e(x)

def pack_pair(e, dst, c0, c1):
    e(f"v_cvt_pk_bf16_f32 v{dst}, v{c0}, v{c0+1}")
    e(f"v_cvt_pk_bf16_f32 v{dst+1}, v{c0+2}, v{c0+3}")
    e(f"v_cvt_pk_bf16_f32 v{dst+2}, v{c1}, v{c1+1}")
    e(f"v_cvt_pk_bf16_f32 v{dst+3}, v{c1+2}, v{c1+3}")

def next_slot(s="s33"):
    return [f"s_add_u32 {s}, {s}, {SLOT}", f"s_cmp_eq_u32 {s}, {3*SLOT}", f"s_cselect_b32 {s}, 0, {s}"]

class Phase:
    pass

def consumer(e, tag, P, nst, stampn=None, drain=False, flush=True):
    def upd():
        return [f"v_add_u32 v{c}, s33, v{b}" for (c, b) in P.addr]
    for x in upd(): e(x)
    e(f"s_mov_b32 s36, {nst}")
    e("s_barrier")
    if stampn is not None: stamp(e, stampn)
    for r in P.reads(P.F0, 0): e(r)
    e(f"s_branch L_{tag}_mid")
    m1 = P.mfmas(P.F1)
    e(f"L_{tag}_top:")
    for m in m1[:PREB]: e(m)
    e("s_barrier")
    interleave(e, m1[PREB:], P.reads(P.F0, 0), lead=1)
    e(f"L_{tag}_mid:")
    e("s_waitcnt lgkmcnt(0)")
    tail = next_slot() + ["s_sub_u32 s36, s36, 1", "s_cmp_lg_u32 s36, 0"] + upd()
    interleave(e, P.mfmas(P.F0), P.reads(P.F1, 1) + tail)
    e("s_waitcnt vmcnt(0) lgkmcnt(0)" if drain else "s_waitcnt lgkmcnt(0)")
    e(f"s_cbranch_scc1 L_{tag}_top")
    if flush:
        for m in m1: e(m)

def emit(e, groups):
    for g in groups:
        for x in g: e(x)

def snake(na, nb):
    return [(a, (b if a % 2 == 0 else nb - 1 - b)) for a in range(na) for b in range(nb)]

def t_addr(e, kind, swt, dst):
    e("v_lshrrev_b32 v3, 4, v2\nv_and_b32 v4, 15, v2\nv_lshrrev_b32 v5, 2, v4\nv_and_b32 v6, 3, v4")
    e(f"v_lshlrev_b32 v7, {2 if kind == 'F' else 3}, v3\nv_add_u32 v7, v7, v5\nv_lshlrev_b32 v7, 8, v7")
    e("v_lshlrev_b32 v6, 3, v6\nv_add_u32 v7, v7, v6")
    e("v_and_b32 v6, 1, v3\nv_lshlrev_b32 v6, 2, v6\nv_or_b32 v6, v6, v5")
    e(f"s_lshl_b32 s26, {swt}, 2")
    e("v_xor_b32 v6, s26, v6")
    for q in range(4):
        e(f"v_xor_b32 v5, {q}, v6\nv_lshlrev_b32 v5, 5, v5\nv_add_u32 v{dst+q}, v7, v5")

def t_voff(e, kind, trow, scol, dst):
    e("v_lshrrev_b32 v3, 4, v2\nv_and_b32 v4, 15, v2")
    if kind == "F":
        e("s_and_b32 s26, s30, 1\ns_lshl_b32 s26, s26, 2")
    else:
        e("s_and_b32 s26, s30, 2\ns_lshl_b32 s26, s26, 1")
    e("v_or_b32 v5, s26, v3\nv_lshlrev_b32 v5, 1, v5\nv_xor_b32 v5, v5, v4\nv_lshlrev_b32 v5, 4, v5")
    e("s_lshl_b32 s26, s30, 2")
    e(f"v_add_u32 v6, s26, v3\nv_mul_u32_u24 v6, {trow}, v6")
    e(f"v_add_u32 v5, v5, v6")
    if scol: e(f"v_add_u32 v{dst}, {scol}, v5")
    else: e(f"v_mov_b32 v{dst}, v5")

def t_loads(vreg, srdn, soff, unit, trow):
    out = []
    for i in range(4):
        if i == 0:
            g = [f"s_add_u32 s44, s33, s31", f"s_add_u32 m0, s44, {unit*UNIT}", "s_nop 0"]
        else:
            g = [f"s_add_u32 m0, s44, {unit*UNIT + i*4096}", f"s_add_u32 {soff}, {soff}, {16*trow}"]
        g.append(f"buffer_load_dwordx4 v{vreg}, s[{srdn}:{srdn+3}], {soff} offen lds")
        out.append(g)
    return out

def f_loads(vreg, srdn, soff, unit):
    out = []
    for i in range(4):
        g = ["s_add_u32 s3, s33, s32", f"s_add_u32 m0, s3, {unit*UNIT}", "s_nop 0"] if i == 0 else []
        g.append(f"buffer_load_dwordx4 v{vreg}, s[{srdn}:{srdn+3}], {soff} offen offset:{i*1024} lds")
        out.append(g)
    return out

CPF = 0
_ct = [0]
def code_touch(e, halves=(0, 1)):
    _ct[0] += 1
    lab = f"L_ct{_ct[0]}"
    e("s_getpc_b64 s[76:77]")
    e(f"{lab}:")
    e(f"s_sub_u32 s76, s76, {lab}-{NAME}\ns_subb_u32 s77, s77, 0")
    e(f"s_mov_b32 s78, L_code_end-{NAME}\ns_mov_b32 s79, 0x20000")
    e("v_lshlrev_b32 v27, 7, v2")
    for h in halves:
        e(f"s_movk_i32 s3, {h*8192}")
        e("buffer_load_dword v23, v27, s[76:79], s3 offen")

def make_tag(e):
    e("s_waitcnt lgkmcnt(0)")
    e("s_mul_i32 s4, s6, 0x9e3779b1\ns_add_u32 s4, s4, 0x7f4a7c15")
    e("s_mul_i32 s5, s7, 0x85ebca6b\ns_add_u32 s5, s5, 0xc2b2ae35")
def flag_store(e, soff, off=0):
    e("v_mov_b32 v24, s4\nv_mov_b32 v25, s5\nv_mov_b32 v26, 0")
    e("s_mov_b64 exec, 1")
    e(f"buffer_store_dwordx2 v[24:25], v26, s[48:51], {soff} offen offset:{off} sc1")
    e("s_mov_b64 exec, -1")
def flag_read(e, vaddr, soff):
    e(f"buffer_load_dwordx2 v[10:11], v{vaddr}, s[48:51], {soff} offen sc1")
def flag_mask(e):
    e("v_cmp_eq_u64 vcc, s[4:5], v[10:11]")
PIPE = 0
def poll_pipe(e, tag, vaddr, soff, check):
    e(f"s_mov_b32 s35, {SPIN}")
    for k in range(PIPE - 1):
        e(f"buffer_load_dwordx2 v[{32+2*k}:{33+2*k}], v{vaddr}, s[48:51], {soff} offen sc1")
        e(f"s_sleep {PSLEEP}")
    e(f"L_{tag}_rd:")
    for k in range(PIPE):
        kk = (k - 1) % PIPE
        e(f"buffer_load_dwordx2 v[{32+2*kk}:{33+2*kk}], v{vaddr}, s[48:51], {soff} offen sc1")
        e(f"s_waitcnt vmcnt({PIPE-1})")
        check(32 + 2*k)
        e(f"s_sleep {PSLEEP}")
    e("s_sub_u32 s35, s35, 1\ns_cmp_lg_u32 s35, 0")
    e(f"s_cbranch_scc1 L_{tag}_rd")
def flag_wait_all(e, tag, vaddr, soff, preloaded=False):
    if PIPE and preloaded:
        def chk(r):
            e(f"v_cmp_ne_u64 vcc, s[4:5], v[{r}:{r+1}]")
            e(f"s_cbranch_vccz L_{tag}_ok")
        chk(10)
        poll_pipe(e, tag, vaddr, soff, chk)
        e(f"L_{tag}_ok:")
        return
    e(f"s_mov_b32 s35, {SPIN}")
    if preloaded: e(f"s_branch L_{tag}_chk")
    e(f"L_{tag}_rd:")
    flag_read(e, vaddr, soff)
    e("s_waitcnt vmcnt(0)")
    e(f"L_{tag}_chk:")
    e("v_cmp_ne_u64 vcc, s[4:5], v[10:11]")
    e(f"s_cbranch_vccz L_{tag}_ok")
    e(f"s_sleep {PSLEEP}")
    e("s_sub_u32 s35, s35, 1\ns_cmp_lg_u32 s35, 0")
    e(f"s_cbranch_scc1 L_{tag}_rd")
    e(f"L_{tag}_ok:")
def lane_flag_addr(e, dst, n):
    e(f"v_min_u32 v{dst}, {n-1}, v2\nv_lshlrev_b32 v{dst}, 7, v{dst}")

DQ_Q, DQ_SC, DQ_ZR, DQ_T = 160, 192, 196, 200
def dq_lanes(e):
    srd(e, 40, P_QW, 0, D*F*4)
    srd(e, 76, P_SC, 0, 32*F*2)
    srd(e, 16, P_ZR, 0, 32*F*2)
    e("v_lshrrev_b32 v3, 3, v2\nv_and_b32 v4, 7, v2")
    e(f"v_mul_u32_u24 v5, {F*4}, v3\nv_lshlrev_b32 v6, 4, v4\nv_add_u32 v21, v5, v6")
    e("v_lshlrev_b32 v22, 3, v4")
def dq_lanes2(e):
    e("v_lshrrev_b32 v1, 2, v4\nv_lshlrev_b32 v1, 13, v1\nv_and_b32 v6, 3, v4\nv_lshlrev_b32 v6, 8, v6")
    e("v_lshlrev_b32 v3, 4, v3\nv_add3_u32 v1, v1, v6, v3")
    srd(e, 12, P_WS, WS_WQ, SZ_WQ)
def dq_loads(e, part):
    no = 2 if part == 0 else 4
    if part == 0: e("s_mov_b32 s39, s25\ns_mov_b32 s38, s23")
    else: e("s_lshl_b32 s39, s30, 1\ns_add_u32 s38, s23, 28")
    e("s_lshl_b32 s26, s22, 3\ns_add_u32 s26, s26, s39")
    e(f"s_mul_i32 s27, s26, {16*F*4}\ns_lshl_b32 s35, s38, 8\ns_add_u32 s27, s27, s35")
    e(f"s_lshr_b32 s26, s26, 1\ns_mul_i32 s26, s26, {F*2}\ns_lshl_b32 s35, s38, 7\ns_add_u32 s26, s26, s35")
    for o in range(no):
        for t in range(2):
            e(f"buffer_load_dwordx4 {vr(DQ_Q+8*o+4*t,4)}, v21, s[40:43], s27 offen offset:{t*128} {QAUX}")
        if o == 0:
            for t in range(2):
                e(f"buffer_load_dwordx2 {vr(DQ_SC+2*t,2)}, v22, s[76:79], s26 offen offset:{t*64}")
                e(f"buffer_load_dwordx2 {vr(DQ_ZR+2*t,2)}, v22, s[16:19], s26 offen offset:{t*64}")
        if o < no - 1: e(f"s_add_u32 s27, s27, {8*F*4}")
    e("s_mul_i32 s47, s22, 56\ns_add_u32 s47, s47, s38\ns_lshl_b32 s47, s47, 14\ns_lshl_b32 s39, s39, 10\ns_add_u32 s47, s47, s39")
    e(f"s_add_u32 s59, s39, {UNIT + part*SLOT}")
def dq_math(e, part, extra=0, octs=None):
    no = 2 if part == 0 else 4
    Q, SC, ZR, T = DQ_Q, DQ_SC, DQ_ZR, DQ_T
    if part == 0: e("v_add_u32 v23, s59, v1")
    for o in (octs if octs is not None else range(no)):
        if octs is None: e(f"s_waitcnt vmcnt({2*(no-1-o) + o + extra})")
        if o == 0:
            for n in range(4):
                e(f"v_lshlrev_b32 v{T+2*n}, 16, v{SC+n}\nv_and_b32 v{T+2*n+1}, 0xffff0000, v{SC+n}")
                e(f"v_lshlrev_b32 v{T+8+2*n}, 16, v{ZR+n}\nv_and_b32 v{T+8+2*n+1}, 0xffff0000, v{ZR+n}")
        q = Q + 8*o
        for n in range(8): e(f"v_cvt_f32_i32 v{q+n}, v{q+n}")
        for n in range(8): e(f"v_cvt_pk_bf16_f32 v{q+n}, 0, v{q+n}")
        for n in range(8): e(f"v_sub_f32 v{q+n}, v{q+n}, v{T+8+n}")
        for n in range(8): e(f"v_cvt_pk_bf16_f32 v{q+n}, 0, v{q+n}")
        for n in range(8): e(f"v_mul_f32 v{q+n}, v{q+n}, v{T+n}")
        for n in range(4): e(f"v_cvt_pk_bf16_f32 v{q+n}, v{q+2*n}, v{q+2*n+1}")
        e(f"buffer_store_dwordx4 {vr(q,4)}, v1, s[12:15], s47 offen offset:{(o>>1)*1024 + (o&1)*128} {STAUX}")
        if part == 0: e(f"ds_write_b128 v23, {vr(q,4)} offset:{(o>>1)*1024 + (o&1)*128}")

def main_consumer(e):
    if CPRIO: e(f"s_setprio {CPRIO}")
    P = Phase(); P.F0, P.F1 = ACC + 128, ACC + 176
    e("s_lshr_b32 s30, s25, 1\ns_and_b32 s31, s25, 1")
    t_addr(e, "F", "s31", 16)
    e(f"s_lshl_b32 s26, s30, 12\ns_add_u32 s26, s26, {UNIT}\nv_lshlrev_b32 v5, 4, v2\nv_add_u32 v20, s26, v5")
    P.addr = [(8+q, 16+q) for q in range(4)] + [(12, 20)]
    def reads(Fb, ks):
        out = []
        for a in range(4):
            out.append(f"ds_read_b128 {vr(Fb+4*a,4)}, v12 offset:{ks*8192 + a*1024}")
            for t in range(2):
                out.append(f"ds_read_b64_tr_b16 {vr(Fb+16+4*a+2*t,2)}, v{8+a} offset:{ks*4096 + t*8192}")
        return out
    def mfmas(Fb):
        return [f"v_mfma_f32_16x16x32_bf16 {vr(ACC+16*a+4*b,4)}, {vr(Fb+4*a,4)}, {vr(Fb+16+4*b,4)}, {vr(ACC+16*a+4*b,4)}"
                for a, b in snake(4, 4)]
    P.reads, P.mfmas = reads, mfmas
    for n in range(128): e(f"v_mov_b32 v{ACC+n}, 0")
    dq_math(e, 0)
    srd(e, 16, P_WS, WS_WV, SZ_WQ)
    e("v_lshrrev_b32 v3, 4, v2\nv_and_b32 v4, 15, v2")
    e(f"s_lshl_b32 s44, s22, 8\ns_lshl_b32 s45, s25, 6\ns_add_u32 s44, s44, s45\ns_mul_i32 s44, s44, {F*2}")
    e("s_lshl_b32 s45, s23, 8\ns_add_u32 s44, s44, s45")
    for b in range(1, 4): e(f"s_add_u32 s{44+b}, s44, {16*b*F*2}")
    e(f"v_and_b32 v5, 7, v4\nv_mul_u32_u24 v5, {F*2}, v5")
    e("v_lshlrev_b32 v6, 4, v3\nv_and_b32 v7, 8, v4\nv_lshlrev_b32 v7, 3, v7\nv_add3_u32 v14, v5, v6, v7")
    e(f"v_add_u32 v15, {8*F*2}, v14")
    e("s_waitcnt vmcnt(0) lgkmcnt(0)\ns_barrier")
    consumer(e, "ga", P, 56, stampn=1)
    stamp(e, 2)
    e("s_lshl_b32 s40, s23, 5\ns_lshl_b32 s41, s22, 2\ns_add_u32 s40, s40, s41\ns_lshl_b32 s41, s30, 1\ns_add_u32 s40, s40, s41")
    e("s_lshl_b32 s40, s40, 13\ns_lshl_b32 s42, s31, 12\ns_add_u32 s40, s40, s42")
    e("s_add_u32 s41, s40, 8192")
    e("s_mov_b32 s43, s33")
    for x in next_slot("s43"): e(x)
    e("s_cmp_eq_u32 s30, 0\ns_cselect_b32 s43, s33, s43\ns_add_u32 s43, s43, s42")
    e("v_and_b32 v3, 0x33, v2\nv_lshrrev_b32 v4, 1, v2\nv_and_b32 v4, 4, v4\nv_or_b32 v3, v3, v4\nv_lshlrev_b32 v3, 4, v3")
    e("v_and_b32 v4, 4, v2\nv_lshlrev_b32 v4, 8, v4\nv_or_b32 v3, v3, v4")
    e("v_add_u32 v4, s43, v3")
    n = 0
    for u in range(2):
        for b in range(4):
            d = P.F0 + 4*n; n += 1
            pack_pair(e, d, ACC + 16*(2*u) + 4*b, ACC + 16*(2*u+1) + 4*b)
            e(f"buffer_store_dwordx4 {vr(d,4)}, v3, s[16:19], s{40+u} offen offset:{(b>>1)*2048 + (b&1)*128} {STAUX}")
            e(f"ds_write_b128 v4, {vr(d,4)} offset:{u*8192 + (b>>1)*2048 + (b&1)*128}")
    for n in range(64): e(f"v_mov_b32 v{ACC+n}, 0")
    srd(e, 16, P_OUT, 0, S*F*2)
    e("v_lshlrev_b32 v16, 4, v2")
    e(f"s_lshl_b32 s26, s25, 12\ns_add_u32 s26, s26, {UNIT}\nv_add_u32 v17, s26, v16")
    P.addr = [(9, 17), (8, 16)]
    def reads(Fb, ks):
        xr = [f"ds_read_b128 {vr(Fb+32+4*b,4)}, v9 offset:{ks*UNIT + b*1024}" for b in range(4)]
        wv = [f"ds_read_b128 {vr(Fb+4*a,4)}, v8 offset:{ks*8192 + a*1024}" for a in range(8)]
        return xr + wv
    def mfmas(Fb):
        return [f"v_mfma_f32_16x16x32_bf16 {vr(ACC+16*a+4*b,4)}, {vr(Fb+4*a,4)}, {vr(Fb+32+4*b,4)}, {vr(ACC+16*a+4*b,4)}"
                for a, b in snake(8, 4)]
    P.reads, P.mfmas = reads, mfmas
    e("s_waitcnt lgkmcnt(0)")
    consumer(e, "gc", P, 16 - TAIL, stampn=3, drain=True, flush=(TAIL == 0))
    def out_ops(Ln, temps):
        ops = []
        for b in range(4):
            d = temps[b % len(temps)]
            for h in range(2):
                u = 2*Ln + h
                c0, c1 = ACC + 16*(2*u) + 4*b, ACC + 16*(2*u+1) + 4*b
                ops += [f"v_cvt_pk_bf16_f32 v{d+4*h}, v{c0}, v{c0+1}", f"v_cvt_pk_bf16_f32 v{d+4*h+1}, v{c0+2}, v{c0+3}",
                        f"v_cvt_pk_bf16_f32 v{d+4*h+2}, v{c1}, v{c1+1}", f"v_cvt_pk_bf16_f32 v{d+4*h+3}, v{c1+2}, v{c1+3}"]
            ops += [f"v_mov_b32 v{d+8+j}, v{d+j}" for j in range(4)]
            ops += [f"v_mov_b32_dpp v{d+j}, v{d+4+j} row_ror:8 row_mask:0xf bank_mask:0xc" for j in range(4)]
            ops += [f"v_mov_b32_dpp v{d+4+j}, v{d+8+j} row_ror:8 row_mask:0xf bank_mask:0x3" for j in range(4)]
            ops += [f"buffer_store_dwordx4 {vr(d,4)}, v14, s[16:19], s{44+b} offen offset:{Ln*128} {OUTAUX}",
                    f"buffer_store_dwordx4 {vr(d+4,4)}, v15, s[16:19], s{44+b} offen offset:{Ln*128} {OUTAUX}"]
        return ops
    if TAIL:
        for t in range(1, TAIL):
            for x in next_slot(): e(x)
            e(f"v_add_u32 v{8+2*t}, s33, v16\nv_add_u32 v{9+2*t}, s33, v17")
        seq = [(g, t, ks) for g in range(2) for t in range(TAIL) for ks in range(2)]
        def hreads(Fb, g, t, ks):
            out = []
            for k in range(4):
                out.append(f"ds_read_b128 {vr(Fb+16+4*k,4)}, v{9+2*t} offset:{ks*UNIT + k*1024}")
                out.append(f"ds_read_b128 {vr(Fb+4*k,4)}, v{8+2*t} offset:{ks*8192 + (4*g+k)*1024}")
            return out
        def hmfmas(Fb, g):
            return [f"v_mfma_f32_16x16x32_bf16 {vr(ACC+16*(4*g+a)+4*b,4)}, {vr(Fb+4*a,4)}, {vr(Fb+16+4*b,4)}, {vr(ACC+16*(4*g+a)+4*b,4)}"
                    for a, b in snake(4, 4)]
        pend = P.mfmas(P.F1)
        fill = out_ops(0, [P.F0 + 32, P.F1 + 32])
        for n, (g, t, ks) in enumerate(seq + [(None, None, None)]):
            Fb = P.F0 if n % 2 == 0 else P.F1
            rd = hreads(Fb, g, t, ks) if g is not None else []
            usefill = n >= 2*TAIL + 1
            k0 = 0
            if g == 0 and ks == 0:
                for m in pend[:PREB]: e(m)
                e("s_barrier")
                k0 = PREB
                e(rd.pop(0))
            for k, m in enumerate(pend[k0:]):
                e(m)
                c = 0
                if rd: e(rd.pop(0)); c += 1
                if usefill and (n > 2*TAIL + 1 or k >= 4):
                    while fill and c < TFILL:
                        e(fill.pop(0)); c += 1
            if g is not None:
                e("s_waitcnt lgkmcnt(0)")
                pend = hmfmas(Fb, g)
        stamp(e, 5)
        for x in fill: e(x)
        e("s_nop 7")
        for x in out_ops(1, [P.F0, P.F0 + 12, P.F1, P.F1 + 12]): e(x)
    else:
        stamp(e, 5)
        e("s_nop 7")
        for Ln in range(2):
            for x in out_ops(Ln, [P.F0 + 48*Ln + 12*k for k in range(4)]): e(x)
    stamp_flush(e, "cons")
    e("s_endpgm")

PPRIO = 3
CPRIO = 0
def main_producer(e):
    if PPRIO: e(f"s_setprio {PPRIO}")
    e("s_sub_u32 s30, s25, 4\ns_lshl_b32 s31, s30, 10\ns_lshl_b32 s32, s30, 12")
    srd(e, 8, P_V, 0, F*F*2)
    e("s_lshl_b32 s27, s23, 8")
    t_voff(e, "F", F*2, "s27", 8)
    e("v_lshlrev_b32 v5, 4, v2\nv_add_u32 v9, s32, v5")
    e(f"s_mul_i32 s28, s22, {112*8192}")
    e(f"s_and_b32 s29, s20, 1\ns_mul_i32 s29, s29, {XRM}")
    e(f"s_add_u32 s53, s24, {DQAT}" if DQCLS else f"s_mov_b32 s53, {DQAT}")
    def prep(own=None):
        if own is None:
            chunk_of_pos(e, "s36", "s24", "s37", "s38", "s39", 55, LEAD)
            e("s_xor_b32 s38, s37, s29\ns_cmp_lt_u32 s37, 48\ns_cselect_b32 s37, s38, s37")
            e("s_cmp_ge_u32 s37, s23\ns_addc_u32 s37, s37, 0")
        else:
            e(f"s_mov_b32 s37, s23")
        e(f"s_mul_i32 s45, s37, {64*F*2}")
        e("s_lshl_b32 s46, s37, 14\ns_add_u32 s46, s46, s28")
    TL, FL = t_loads(8, 8, "s45", 0, F*2), f_loads(9, 12, "s46", 1)
    AL = (TL + FL) if AORD == "VA" else (FL + TL)
    def adv():
        for x in next_slot(): e(x)
        e("s_add_u32 s36, s36, 1")
    prep(0); emit(e, TL)
    for x in next_slot(): e(x)
    lane_flag_addr(e, 13, 28)
    e(f"s_mul_i32 s34, s22, {28*128}")
    e("s_lshl_b32 s54, s23, 7\ns_add_u32 s54, s54, s34")
    dq_math(e, 0, extra=4)
    make_tag(e)
    e("s_waitcnt vmcnt(0)")
    e("s_barrier")
    stamp(e, 2)
    e("s_cmp_lg_u32 s30, 0\ns_cbranch_scc1 L_pa_nf")
    flag_store(e, "s54")
    e("L_pa_nf:")
    e("s_barrier")
    e("s_mov_b32 s36, 0")
    for _ in range(2):
        prep(); emit(e, TL); adv()
    flag_read(e, 13, "s34")
    e(f"s_mov_b32 s36, 0\ns_mov_b32 s33, {SLOT}")
    prep()
    e("s_waitcnt vmcnt(0)")
    flag_wait_all(e, "fwq", 13, "s34", preloaded=True)
    stamp(e, 1)
    emit(e, FL); adv()
    prep(); emit(e, FL); adv()
    prep()
    e("s_waitcnt vmcnt(4)\ns_barrier")
    emit(e, AL); adv()
    e("s_add_u32 s34, s34, 64")
    e("L_ga_ptop0:")
    prep()
    e("s_waitcnt vmcnt(8)\ns_barrier")
    emit(e, AL); adv()
    e("s_cmp_lt_u32 s36, s53\ns_cbranch_scc1 L_ga_ptop0")
    fl = [-1] * 8
    plan = {3: (0, 1), 4: (2, 3)} if DQSPREAD == 2 else {3: (0,), 4: (1,), 5: (2,), 6: (3,)}
    nit = max(plan) + 4
    for it in range(nit):
        prep()
        keep = len(fl) - max([k + 1 for k, t in enumerate(fl) if t == it - 2] + [0]) if it >= 1 else 8
        e(f"s_waitcnt vmcnt({keep})\ns_barrier")
        if it == nit - 1:
            e("s_cmp_lg_u32 s30, 0\ns_cbranch_scc1 L_pa_nf2")
            flag_store(e, "s54", 64)
            e("L_pa_nf2:")
        if it == 0 and DQFIRST:
            e("s_mov_b32 s58, s37")
            dq_loads(e, 1); fl += ["q"] * 12
        emit(e, AL); adv(); fl += [it] * 8
        if it == 0 and not DQFIRST:
            dq_loads(e, 1); fl += ["q"] * 12
        if it in plan:
            dq_math(e, 1, octs=plan[it]); fl += ["w"] * len(plan[it])
    e("L_ga_ptop1:")
    prep()
    e("s_waitcnt vmcnt(8)\ns_barrier")
    emit(e, AL); adv()
    e(f"s_cmp_lt_u32 s36, {CHK2}\ns_cbranch_scc1 L_ga_ptop1")
    prep()
    e("s_waitcnt vmcnt(8)\ns_barrier")
    flag_read(e, 13, "s34")
    emit(e, AL); adv()
    prep()
    e("s_waitcnt vmcnt(8)\ns_barrier")
    flag_wait_all(e, "fwq2", 13, "s34", preloaded=True)
    emit(e, AL); adv()
    e(f"v_min_u32 v13, 15, v2\nv_lshlrev_b32 v14, 7, v13")
    e(f"s_lshl_b32 s26, s23, 10\ns_add_u32 s26, s26, {FL_WV}\ns_lshl_b32 s27, s22, 10\ns_add_u32 s27, s27, {FL_XR - 1024}")
    e("v_mov_b32 v3, s26\nv_mov_b32 v4, s27\nv_cmp_gt_u32 vcc, 8, v13\ns_nop 1\nv_cndmask_b32 v3, v4, v3, vcc\nv_add_u32 v13, v14, v3")
    e("s_lshl_b32 s54, s22, 7\ns_add_u32 s54, s54, s26")
    srd(e, 16, P_WS, WS_XR, SZ_XR)
    e("L_ga_ptop:")
    prep()
    e("s_waitcnt vmcnt(8)\ns_barrier")
    emit(e, AL); adv()
    e("s_cmp_lt_u32 s36, 51\ns_cbranch_scc1 L_ga_ptop")
    e("s_lshl_b32 s55, s22, 19\ns_lshl_b32 s58, s23, 18\ns_and_b32 s59, s23, 3\ns_lshl_b32 s27, s22, 1")
    e("s_mov_b32 s52, 0\ns_mov_b32 s34, 0")
    def prepc(own=None, pos="s36"):
        if own is None:
            chunk_of_pos(e, pos, "s59", "s37", "s38", "s39", 14, LEADC)
            if HALF:
                e("s_add_u32 s37, s37, 2\ns_add_u32 s38, s37, s27\ns_and_b32 s38, s38, 7\ns_xor_b32 s37, s37, s27\ns_and_b32 s37, s37, 8\ns_or_b32 s37, s37, s38")
            else:
                e("s_add_u32 s37, s37, s27\ns_add_u32 s37, s37, 2\ns_and_b32 s37, s37, 15")
        else:
            e(f"s_add_u32 s37, s27, {own}")
        e("s_lshl_b32 s45, s37, 14\ns_add_u32 s45, s45, s58")
        e("s_lshl_b32 s46, s37, 15\ns_add_u32 s46, s46, s55\ns_add_u32 s47, s46, 16384")
    WL, X0, X1 = f_loads(9, 12, "s45", 0), f_loads(9, 16, "s46", 1), f_loads(9, 16, "s47", 2)
    def need(tag, xr_only=False):
        e("s_lshr_b32 s38, s37, 1")
        e(f"s_lshl_b32 s38, {0x100 if xr_only else 0x101}, s38")
        e("s_andn2_b32 s39, s38, s52")
        e(f"s_cbranch_scc0 L_{tag}_ok")
        if PIPE:
            def chk(r):
                e(f"v_cmp_eq_u64 vcc, s[4:5], v[{r}:{r+1}]")
                e("s_nop 1\ns_mov_b32 s52, vcc_lo")
                e("s_andn2_b32 s39, s38, s52")
                e(f"s_cbranch_scc0 L_{tag}_ok")
            poll_pipe(e, tag, 13, "s34", chk)
            e(f"L_{tag}_ok:")
            return
        e(f"s_mov_b32 s35, {SPIN}")
        e(f"L_{tag}_rd:")
        flag_read(e, 13, "s34")
        e("s_waitcnt vmcnt(0)")
        flag_mask(e)
        e("s_nop 1\ns_mov_b32 s52, vcc_lo")
        e("s_andn2_b32 s39, s38, s52")
        e(f"s_cbranch_scc0 L_{tag}_ok")
        e(f"s_sleep {PSLEEP}")
        e("s_sub_u32 s35, s35, 1\ns_cmp_lg_u32 s35, 0")
        e(f"s_cbranch_scc1 L_{tag}_rd")
        e(f"L_{tag}_ok:")
    prep()
    e("s_waitcnt vmcnt(8)\ns_barrier")
    flag_read(e, 13, "s34")
    emit(e, AL); adv()
    for k in range(3):
        prep()
        e(f"s_waitcnt vmcnt({8 if k == 0 else 12})\ns_barrier")
        if k == 0:
            flag_mask(e)
            e("s_nop 1\ns_mov_b32 s52, vcc_lo")
        emit(e, AL)
        if k < 2: prepc(k)
        else: prepc(None, "s34")
        need(f"fx{k}", True)
        emit(e, X1); adv()
    srd(e, 12, P_WS, WS_WV, SZ_WQ)
    stamp(e, 3)
    prepc(0)
    e("s_waitcnt vmcnt(12)\ns_barrier")
    emit(e, X0)
    for x in next_slot(): e(x)
    prepc(1)
    e("s_waitcnt vmcnt(4)\ns_barrier")
    emit(e, X0)
    for x in next_slot(): e(x)
    e("s_mov_b32 s36, 0")
    prepc()
    e("s_waitcnt vmcnt(4)\ns_barrier")
    emit(e, X0)
    e("s_waitcnt vmcnt(4)\ns_barrier")
    e("s_cmp_lg_u32 s30, 0\ns_cbranch_scc1 L_pc_nf")
    flag_store(e, "s54")
    e("L_pc_nf:")
    need("fw0")
    stamp(e, 5)
    emit(e, WL); adv()
    prepc()
    need("fw1")
    emit(e, WL + X0 + X1); adv()
    e("L_gc_ptop:")
    prepc()
    e("s_waitcnt vmcnt(12)\ns_barrier")
    need("fw2")
    if CPF & 4:
        e("s_xor_b32 s26, s36, 11\ns_or_b32 s26, s26, s30\ns_cmp_lg_u32 s26, 0\ns_cbranch_scc1 L_nct3")
        code_touch(e, (0,))
        e("L_nct3:")
    emit(e, WL + X0 + X1); adv()
    e("s_cmp_lt_u32 s36, 14\ns_cbranch_scc1 L_gc_ptop")
    e("s_waitcnt vmcnt(12)\ns_barrier\ns_waitcnt vmcnt(0)\ns_barrier")
    e("s_or_b32 s26, s2, s30\ns_cmp_lg_u32 s26, 0\ns_cbranch_scc1 L_pc_end")
    lane_flag_addr(e, 13, 64)
    e(f"s_mov_b32 s34, {FL_XR}")
    flag_wait_all(e, "fall", 13, "s34")
    e(f"s_mov_b32 s26, {FL_E}")
    flag_store(e, "s26")
    e("L_pc_end:")
    stamp_flush(e, "prod")
    e("s_endpgm")

FAKEB = 0
PFDELAY = 0
def spare(e):
    srd(e, 8, P_U, 0, D*D*2)
    srd(e, 12, P_X, 0, S*D*2)
    srd(e, 16, P_WS, WS_XR, SZ_XR)
    if HALF:
        e("s_mov_b32 s22, s20\ns_sub_u32 s24, s21, 28\ns_and_b32 s23, s22, 4\ns_or_b32 s23, s23, s24")
    else:
        e("s_mov_b32 s22, s20\ns_sub_u32 s24, s21, 28\ns_add_u32 s23, s22, s24\ns_and_b32 s23, s23, 7")
    e("s_mov_b32 s53, 0")
    e("s_cmp_ge_u32 s25, 4\ns_cbranch_scc1 L_pb")
    if CPF & 1:
        e("s_cmp_lg_u32 s25, 0\ns_cbranch_scc1 L_nct1")
        code_touch(e)
        e("L_nct1:")
    e("s_lshr_b32 s30, s25, 1\ns_and_b32 s31, s25, 1")
    t_addr(e, "R", "s31", 16)
    e("v_lshrrev_b32 v5, 1, v4\nv_xor_b32 v5, v5, v3\nv_lshlrev_b32 v5, 4, v5")
    e(f"s_lshl_b32 s26, s30, 14\ns_add_u32 s26, s26, {UNIT}")
    e("v_lshlrev_b32 v6, 7, v4\nv_add3_u32 v20, v5, v6, s26\nv_xor_b32 v21, 64, v20")
    P = Phase(); P.F0, P.F1 = ACC + 128, ACC + 176
    P.addr = [(8+q, 16+q) for q in range(4)] + [(12, 20), (13, 21)]
    def reads(Fb, ks):
        out = []
        for a in range(4):
            for t in range(2):
                out.append(f"ds_read_b64_tr_b16 {vr(Fb+32+4*a+2*t,2)}, v{8+a} offset:{ks*8192 + t*1024}")
            for h in range(2):
                out.append(f"ds_read_b128 {vr(Fb+4*(2*a+h),4)}, v{12+ks} offset:{(2*a+h)*2048}")
        return out
    def mfmas(Fb):
        return [f"v_mfma_f32_16x16x32_bf16 {vr(ACC+16*a+4*b,4)}, {vr(Fb+32+4*b,4)}, {vr(Fb+4*a,4)}, {vr(ACC+16*a+4*b,4)}"
                for a, b in snake(8, 4)]
    P.reads, P.mfmas = reads, mfmas
    stamp(e, 1)
    e("L_bl:")
    for n in range(128): e(f"v_mov_b32 v{ACC+n}, 0")
    consumer(e, "gb", P, 16, drain=True)
    e("s_lshl_b32 s40, s22, 5\ns_lshl_b32 s41, s23, 2\ns_add_u32 s40, s40, s41\ns_lshl_b32 s41, s31, 1\ns_add_u32 s40, s40, s41")
    e("s_lshl_b32 s40, s40, 14\ns_lshl_b32 s41, s30, 13\ns_add_u32 s40, s40, s41")
    e("s_add_u32 s41, s40, 4096\ns_add_u32 s42, s40, 16384\ns_add_u32 s43, s40, 20480")
    e("v_lshlrev_b32 v3, 4, v2")
    n = 0
    for u in range(2):
        for a in range(8):
            d = P.F0 + 4*n; n += 1
            pack_pair(e, d, ACC + 16*a + 4*(2*u), ACC + 16*a + 4*(2*u+1))
            e(f"buffer_store_dwordx4 {vr(d,4)}, v3, s[16:19], s{40+2*u+(a>>2)} offen offset:{(a&3)*1024} {STAUX}")
    e("s_xor_b32 s23, s23, 4\ns_add_u32 s53, s53, 1\ns_cmp_lt_u32 s53, 2\ns_cbranch_scc1 L_bl")
    stamp(e, 2)
    e("s_waitcnt vmcnt(0)\ns_barrier")
    stamp_flush(e, "bcons")
    e("s_endpgm")
    e("L_pb:")
    if PPRIO: e(f"s_setprio {PPRIO}")
    e("s_sub_u32 s30, s25, 4\ns_lshl_b32 s31, s30, 10\ns_lshl_b32 s32, s30, 12")
    t_voff(e, "R", 2048, None, 8)
    e("s_and_b32 s26, s30, 1\ns_lshl_b32 s26, s26, 2")
    e("v_or_b32 v5, s26, v3\nv_and_b32 v6, 7, v2\nv_xor_b32 v5, v5, v6\nv_lshlrev_b32 v5, 4, v5")
    e("s_lshl_b32 s26, s30, 3")
    e("v_lshrrev_b32 v6, 3, v2\nv_add_u32 v6, s26, v6\nv_lshlrev_b32 v6, 11, v6")
    e("v_add_u32 v9, v5, v6")
    def prep():
        e("s_and_b32 s34, s36, 15")
        chunk_of_pos(e, "s34", "s24", "s37", "s38", "s39", 16, LEAD)
        if BROT: e("s_lshl_b32 s38, s20, 2\ns_add_u32 s37, s37, s38\ns_and_b32 s37, s37, 15")
        e(f"s_lshr_b32 s38, s36, 4\ns_lshl_b32 s38, s38, 2\ns_xor_b32 s38, s38, s23\ns_lshl_b32 s38, s38, 8\ns_lshl_b32 s45, s37, 17\ns_add_u32 s45, s45, s38")
        e(f"s_lshl_b32 s38, s22, 19\ns_lshl_b32 s46, s37, 7\ns_add_u32 s46, s46, s38")
    xl = []
    for u in range(2):
        for i in range(4):
            g = [f"s_add_u32 m0, s44, {(1+u)*UNIT + i*4096}"]
            g += [f"s_add_u32 s46, s46, {32*2048}" if (u or i) else "s_nop 0"]
            g.append("buffer_load_dwordx4 v9, s[12:15], s46 offen lds")
            xl.append(g)
    LD = t_loads(8, 8, "s45", 0, 2048) + xl
    def adv():
        for x in next_slot(): e(x)
        e("s_add_u32 s36, s36, 1")
    e(f"s_lshl_b32 s27, s22, 10\ns_lshl_b32 s26, s23, 7\ns_add_u32 s27, s27, s26\ns_add_u32 s27, s27, {FL_XR}")
    e("s_mov_b32 s36, 0")
    for _ in range(2):
        prep(); emit(e, LD); adv()
    make_tag(e)
    e("L_gb_ptop:")
    prep()
    e("s_waitcnt vmcnt(12)\ns_barrier")
    e("s_xor_b32 s26, s36, 19\ns_or_b32 s26, s26, s30\ns_cmp_lg_u32 s26, 0\ns_cbranch_scc1 L_pb_nf")
    flag_store(e, "s27")
    e("L_pb_nf:")
    if CPF & 2:
        e("s_xor_b32 s26, s36, 26\ns_or_b32 s26, s26, s30\ns_cmp_lg_u32 s26, 0\ns_cbranch_scc1 L_nct2")
        code_touch(e)
        e("L_nct2:")
    emit(e, LD); adv()
    e("s_cmp_lt_u32 s36, 32\ns_cbranch_scc1 L_gb_ptop")
    e("s_waitcnt vmcnt(12)\ns_barrier\ns_waitcnt vmcnt(0)\ns_barrier")
    e("s_barrier")
    e("s_cmp_lg_u32 s30, 0\ns_cbranch_scc1 L_pb_end")
    e("s_xor_b32 s27, s27, 512")
    flag_store(e, "s27")
    e("L_pb_end:")
    stamp_flush(e)
    e("s_endpgm")

def kernel(e):
    e(f".globl {NAME}\n.p2align 8\n.type {NAME},@function\n{NAME}:")
    if STAMP:
        for n in range(1, 8): e(f"s_mov_b64 s[{80+2*n}:{81+2*n}], 0")
    stamp(e, 0)
    e("s_load_dwordx16 s[60:75], s[0:1], 0")
    e("s_load_dwordx2 s[56:57], s[0:1], 64")
    e("s_cmp_ge_u32 s2, 256\ns_cbranch_scc1 L_end")
    e("s_and_b32 s20, s2, 7\ns_lshr_b32 s21, s2, 3")
    e("v_lshrrev_b32 v1, 6, v0\nv_and_b32 v2, 63, v0\ns_nop 0\nv_readfirstlane_b32 s25, v1")
    e("s_and_b32 s22, s20, 1\ns_lshl_b32 s22, s22, 2\ns_and_b32 s23, s21, 3\ns_add_u32 s22, s22, s23")
    e("s_lshr_b32 s23, s20, 1\ns_mul_i32 s23, s23, 7\ns_lshr_b32 s24, s21, 2\ns_add_u32 s23, s23, s24")
    e("s_add_u32 s24, s22, s23\ns_and_b32 s24, s24, 3")
    e("s_mov_b32 s33, 0")
    e(f"s_mov_b32 s26, {WS_FL + FL_E}")
    e("s_waitcnt lgkmcnt(0)")
    e("s_load_dwordx2 s[6:7], s[56:57], s26")
    srd(e, 48, P_WS, WS_FL, FL_BYTES)
    if CPF & 8:
        e("s_cmp_lg_u32 s25, 7\ns_cbranch_scc1 L_nct4")
        code_touch(e)
        e("L_nct4:")
    e("s_cmp_ge_u32 s21, 28\ns_cbranch_scc1 L_spare")
    dq_lanes(e)
    dq_loads(e, 0)
    dq_lanes2(e)
    e("s_cmp_ge_u32 s25, 4\ns_cbranch_scc1 L_mainp")
    main_consumer(e)
    e("L_mainp:")
    main_producer(e)
    e("L_spare:")
    spare(e)
    e("L_end:")
    e("s_endpgm")
    e("L_code_end:")
    e(f'.section .rodata,"a"\n.p2align 6\n.amdhsa_kernel {NAME}')
    e(f".amdhsa_next_free_vgpr 256\n.amdhsa_next_free_sgpr 96\n.amdhsa_accum_offset 256")
    e(".amdhsa_group_segment_fixed_size 0\n.amdhsa_kernarg_size 72\n.amdhsa_user_sgpr_count 2")
    e(".amdhsa_user_sgpr_kernarg_segment_ptr 1\n.amdhsa_system_sgpr_workgroup_id_x 1")
    e(".amdhsa_float_denorm_mode_32 3")
    e(".end_amdhsa_kernel")

HEADER = open("standalone__weight_only_int_quip__prompt.s.ref").read().split("; Override")[0]
ASLIST = False
def generate():
    e = Asm()
    out = HEADER
    if ASLIST:
        out += f"; @launch kernel={NAME} grid=(256,1,1) block=(512,1,1) lds={LDS_BYTES}\n"
    else:
        out += f"; @launch grid=(256,1,1) block=(512,1,1) lds={LDS_BYTES}\n"
    e('.amdgcn_target "amdgcn-amd-amdhsa--gfx950"\n.text')
    kernel(e)
    return out + e.text()

if __name__ == "__main__":
    args = [a for a in sys.argv[1:] if not a.startswith("-")]
    for a in sys.argv[1:]:
        if a.startswith("-"):
            k, v = a[1:].split("=", 1)
            globals()[k] = eval(v)
    path = args[0] if args else "standalone__weight_only_int_quip__prompt.s"
    open(path, "w").write(generate())
    print("wrote", path)
```

```python
import sys, re

S, D, F = 2048, 1024, 3584
WS_WQ, WS_WV, WS_XR, WS_FL, WS_ST = 0, 8 << 20, 16 << 20, 24 << 20, 64 << 20
SZ_WQ, SZ_XR = D * F * 2, S * D * 2
FL_WQ, FL_WV, FL_XR, FL_E = 0, 224 * 128, 448 * 128, 512 * 128
FL_BYTES = 513 * 128
NAME = "standalone__weight_only_int_quip__prompt_kernel"

NOMFMA = NOREAD = NOLOAD = False
STAMP = False
STAUX = "sc1"
OUTAUX = "sc1"
QAUX = ""
SKEW = True
LEAD = 2
NTOUCH = 0
XUT = 0
UNIT = 16384
SLOT = 3 * UNIT
LDS_BYTES = 10 * UNIT
ASLOT = 2 * UNIT
PREB = 2
SALU_PER = 1
SPIN = 1 << 17
PSLEEP = 2
ACC = 28
TAIL = 3
DQAT = 4
DQSPREAD = 4
DQFIRST = False
DQCLS = True
CHK2 = 22
BROT = True
HALF = True
LEADC = 2
TFILL = 2
XRM = 4
AORD = "AV"

class Asm:
    def __init__(self):
        self.L = []
    def __call__(self, s):
        for line in s.split("\n"):
            line = line.strip()
            if NOMFMA and line.startswith("v_mfma"): continue
            if NOREAD and line.startswith("ds_read"): continue
            if NOLOAD and line.startswith("buffer_load") and line.endswith("lds"): continue
            if line:
                self.L.append(("    " if not line.endswith(":") and not line.startswith(".") else "") + line)
    def text(self):
        return "\n".join(self.L) + "\n"

def vr(b, n=1):
    return f"v{b}" if n == 1 else f"v[{b}:{b+n-1}]"

P_X, P_QW, P_SC, P_ZR, P_U, P_V, P_OUT, P_WS = 60, 62, 64, 66, 68, 70, 72, 56
def srd(e, d, base, add, nbytes):
    if add:
        e(f"s_add_u32 s{d}, s{base}, {add}\ns_addc_u32 s{d+1}, s{base+1}, 0")
    else:
        e(f"s_mov_b32 s{d}, s{base}\ns_mov_b32 s{d+1}, s{base+1}")
    e(f"s_mov_b32 s{d+2}, {nbytes}\ns_mov_b32 s{d+3}, 0x20000")

DIAG = ""
def stamp(e, n, diag=""):
    if n in (3, 5) and diag != DIAG: return
    if STAMP:
        e(f"s_memrealtime s[{80+2*n}:{81+2*n}]")
        if n in (1, 2):
            e(f"s_memtime s[{90+2*n}:{91+2*n}]")
DBGSTAMP = False
ECHO = None
def stamp_flush(e, role=""):
    if not STAMP:
        return
    e("s_waitcnt lgkmcnt(0) vmcnt(0)")
    stamp(e, 4)
    e("s_waitcnt lgkmcnt(0)")
    if ECHO:
        if role == "cons":
            a_, b_, mult = ECHO
            e("s_or_b32 s26, s2, s25\ns_cmp_lg_u32 s26, 0\ns_cbranch_scc1 L_echo_end")
            e(f"s_sub_u32 s26, s{80+2*b_}, s{80+2*a_}\ns_mul_i32 s26, s26, {mult}\ns_add_u32 s26, s26, 6000")
            e("L_echo:")
            e("s_memrealtime s[28:29]\ns_waitcnt lgkmcnt(0)")
            e("s_sub_u32 s27, s28, s80\ns_cmp_lt_u32 s27, s26\ns_cbranch_scc1 L_echo")
            e("L_echo_end:")
        return
    if DBGSTAMP:
        srd(e, 76, 74, 0, 256)
        e("v_mov_b32 v4, 0\ns_mov_b64 exec, 1")
        sel = {"cons": [(0, 0, 1), (1, 1, 1), (1, 2, 0), (2, 3, 1), (2, 4, 0), (3, 5, 1), (3, 6, 0), (5, 7, 1), (5, 8, 0), (4, 9, 0), (0, 15, 0)],
               "prod": [(2, 10, 0), (1, 11, 0), (3, 12, 0)], "bcons": [(2, 13, 1), (2, 14, 0)]}.get(role, [])
        for k, (st, w, inv) in enumerate(sel):
            e(f"v_mov_b32 v{8+k}, s{80+2*st}")
            if inv: e(f"v_not_b32 v{8+k}, v{8+k}")
            e(f"buffer_atomic_umax v{8+k}, v4, s[76:79], 0 offen offset:{4*w}")
        return
    srd(e, 76, P_WS, WS_ST, 1 << 20)
    e(f"s_lshl_b32 s75, s2, 3\ns_add_u32 s75, s75, s25\ns_lshl_b32 s75, s75, 6")
    for n in range(16):
        e(f"v_mov_b32 v{8+n}, s{80+n}")
    e("v_mov_b32 v4, 0")
    e("s_mov_b64 exec, 1")
    for n in range(4):
        e(f"buffer_store_dwordx4 v[{8+4*n}:{11+4*n}], v4, s[76:79], s75 offen offset:{16*n}")

def chunk_of_pos(e, spos, scls, sdst, st1, st2, nch, lead, sxor=None):
    if not SKEW:
        e(f"s_mov_b32 {sdst}, {spos}")
        return
    e(f"s_sub_u32 {st1}, {spos}, {scls}")
    e(f"s_and_b32 {st1}, {st1}, 3")
    e(f"s_cmp_le_u32 {st1}, {lead}")
    e(f"s_cselect_b32 {st2}, -1, 0")
    e(f"s_cmp_eq_u32 {st1}, 0")
    e(f"s_cselect_b32 {st2}, {lead}, {st2}")
    e(f"s_cmp_lt_u32 {spos}, {scls}")
    e(f"s_cselect_b32 {st2}, 0, {st2}")
    e(f"s_sub_u32 {st1}, {spos}, {st1}")
    e(f"s_cmp_ge_i32 {st1}, {nch-3}")
    e(f"s_cselect_b32 {st2}, 0, {st2}")
    e(f"s_add_u32 {sdst}, {spos}, {st2}")
    if sxor:
        e(f"s_xor_b32 {sdst}, {sdst}, {sxor}")

def interleave(e, mfmas, others, per=1, lead=0):
    reads = [x for x in others if x.startswith("ds_")]
    salu = [x for x in others if x.startswith("s_")]
    valu = [x for x in others if x.startswith("v_")]
    def ready(x):
        ops = [t.strip(",") for t in x.split()[1:]]
        dst, srcs = ops[0], ops[1:]
        if any(re.search(rf", {dst}( |$)", r) for r in reads): return False
        if any(y.split()[1].strip(",") in srcs for y in salu): return False
        return True
    for _ in range(lead):
        if reads: e(reads.pop(0))
    for k, m in enumerate(mfmas):
        e(m)
        c = 0
        for _ in range(per):
            if reads: e(reads.pop(0)); c += 1
        while c < 2 and valu and ready(valu[0]):
            e(valu.pop(0)); c += 1
        for _ in range(SALU_PER if c else SALU_PER + 1):
            if salu: e(salu.pop(0))
    for x in reads + salu + valu:
        e(x)

def pack_pair(e, dst, c0, c1):
    e(f"v_cvt_pk_bf16_f32 v{dst}, v{c0}, v{c0+1}")
    e(f"v_cvt_pk_bf16_f32 v{dst+1}, v{c0+2}, v{c0+3}")
    e(f"v_cvt_pk_bf16_f32 v{dst+2}, v{c1}, v{c1+1}")
    e(f"v_cvt_pk_bf16_f32 v{dst+3}, v{c1+2}, v{c1+3}")

def next_slot(s="s33"):
    return [f"s_add_u32 {s}, {s}, {SLOT}", f"s_cmp_eq_u32 {s}, {3*SLOT}", f"s_cselect_b32 {s}, 0, {s}"]

def next_a():
    return [f"s_add_u32 s33, s33, {ASLOT}", f"s_and_b32 s33, s33, {4*ASLOT - 1}"]
def next_c(sx):
    return [f"s_add_u32 s33, s33, {UNIT}", f"s_cmp_eq_u32 s33, {7*UNIT}", f"s_cselect_b32 s33, {4*UNIT}, s33"] + next_x(sx)
def next_x(sx):
    return [f"s_add_u32 {sx}, {sx}, {2*UNIT}", f"s_cmp_eq_u32 {sx}, {10*UNIT}", f"s_cselect_b32 {sx}, 0, {sx}",
            f"s_cmp_eq_u32 {sx}, {4*UNIT}", f"s_cselect_b32 {sx}, {8*UNIT}, {sx}"]

class Phase:
    pass

def consumer(e, tag, P, nst, stampn=None, drain=False, flush=True):
    def upd():
        return [f"v_add_u32 v{t[0]}, {t[2] if len(t) > 2 else 's33'}, v{t[1]}" for t in P.addr]
    for x in upd(): e(x)
    e(f"s_mov_b32 s36, {nst}")
    e("s_barrier")
    if stampn is not None: stamp(e, stampn)
    for r in P.reads(P.F0, 0): e(r)
    e(f"s_branch L_{tag}_mid")
    m1 = P.mfmas(P.F1)
    e(f"L_{tag}_top:")
    for m in m1[:PREB]: e(m)
    e("s_barrier")
    interleave(e, m1[PREB:], P.reads(P.F0, 0), lead=1)
    e(f"L_{tag}_mid:")
    e("s_waitcnt lgkmcnt(0)")
    tail = getattr(P, "nxt", next_slot)() + ["s_sub_u32 s36, s36, 1", "s_cmp_lg_u32 s36, 0"] + upd()
    interleave(e, P.mfmas(P.F0), P.reads(P.F1, 1) + tail)
    e("s_waitcnt vmcnt(0) lgkmcnt(0)" if drain else "s_waitcnt lgkmcnt(0)")
    e(f"s_cbranch_scc1 L_{tag}_top")
    if flush:
        for m in m1: e(m)

def emit(e, groups):
    for g in groups:
        for x in g: e(x)

def snake(na, nb):
    return [(a, (b if a % 2 == 0 else nb - 1 - b)) for a in range(na) for b in range(nb)]

def t_addr(e, kind, swt, dst):
    e("v_lshrrev_b32 v3, 4, v2\nv_and_b32 v4, 15, v2\nv_lshrrev_b32 v5, 2, v4\nv_and_b32 v6, 3, v4")
    e(f"v_lshlrev_b32 v7, {2 if kind == 'F' else 3}, v3\nv_add_u32 v7, v7, v5\nv_lshlrev_b32 v7, 8, v7")
    e("v_lshlrev_b32 v6, 3, v6\nv_add_u32 v7, v7, v6")
    e("v_and_b32 v6, 1, v3\nv_lshlrev_b32 v6, 2, v6\nv_or_b32 v6, v6, v5")
    e(f"s_lshl_b32 s26, {swt}, 2")
    e("v_xor_b32 v6, s26, v6")
    for q in range(4):
        e(f"v_xor_b32 v5, {q}, v6\nv_lshlrev_b32 v5, 5, v5\nv_add_u32 v{dst+q}, v7, v5")

def t_voff(e, kind, trow, scol, dst):
    e("v_lshrrev_b32 v3, 4, v2\nv_and_b32 v4, 15, v2")
    if kind == "F":
        e("s_and_b32 s26, s30, 1\ns_lshl_b32 s26, s26, 2")
    else:
        e("s_and_b32 s26, s30, 2\ns_lshl_b32 s26, s26, 1")
    e("v_or_b32 v5, s26, v3\nv_lshlrev_b32 v5, 1, v5\nv_xor_b32 v5, v5, v4\nv_lshlrev_b32 v5, 4, v5")
    e("s_lshl_b32 s26, s30, 2")
    e(f"v_add_u32 v6, s26, v3\nv_mul_u32_u24 v6, {trow}, v6")
    e(f"v_add_u32 v5, v5, v6")
    if scol: e(f"v_add_u32 v{dst}, {scol}, v5")
    else: e(f"v_mov_b32 v{dst}, v5")

def t_loads(vreg, srdn, soff, unit, trow):
    out = []
    for i in range(4):
        if i == 0:
            g = [f"s_add_u32 s44, s33, s31", f"s_add_u32 m0, s44, {unit*UNIT}", "s_nop 0"]
        else:
            g = [f"s_add_u32 m0, s44, {unit*UNIT + i*4096}", f"s_add_u32 {soff}, {soff}, {16*trow}"]
        g.append(f"buffer_load_dwordx4 v{vreg}, s[{srdn}:{srdn+3}], {soff} offen lds")
        out.append(g)
    return out

def f_loads(vreg, srdn, soff, unit, base="s33"):
    out = []
    for i in range(4):
        g = [f"s_add_u32 s3, {base}, s32", f"s_add_u32 m0, s3, {unit*UNIT}", "s_nop 0"] if i == 0 else []
        g.append(f"buffer_load_dwordx4 v{vreg}, s[{srdn}:{srdn+3}], {soff} offen offset:{i*1024} lds")
        out.append(g)
    return out

CPF = 0
_ct = [0]
def code_touch(e, halves=(0, 1)):
    _ct[0] += 1
    lab = f"L_ct{_ct[0]}"
    e("s_getpc_b64 s[76:77]")
    e(f"{lab}:")
    e(f"s_sub_u32 s76, s76, {lab}-{NAME}\ns_subb_u32 s77, s77, 0")
    e(f"s_mov_b32 s78, L_code_end-{NAME}\ns_mov_b32 s79, 0x20000")
    e("v_lshlrev_b32 v27, 7, v2")
    for h in halves:
        e(f"s_movk_i32 s3, {h*8192}")
        e("buffer_load_dword v23, v27, s[76:79], s3 offen")

def make_tag(e):
    e("s_waitcnt lgkmcnt(0)")
    e("s_mul_i32 s4, s6, 0x9e3779b1\ns_add_u32 s4, s4, 0x7f4a7c15")
    e("s_mul_i32 s5, s7, 0x85ebca6b\ns_add_u32 s5, s5, 0xc2b2ae35")
def flag_store(e, soff, off=0):
    e("v_mov_b32 v24, s4\nv_mov_b32 v25, s5\nv_mov_b32 v26, 0")
    e("s_mov_b64 exec, 1")
    e(f"buffer_store_dwordx2 v[24:25], v26, s[48:51], {soff} offen offset:{off} sc1")
    e("s_mov_b64 exec, -1")
def flag_read(e, vaddr, soff):
    e(f"buffer_load_dwordx2 v[10:11], v{vaddr}, s[48:51], {soff} offen sc1")
def flag_mask(e):
    e("v_cmp_eq_u64 vcc, s[4:5], v[10:11]")
PIPE = 0
def poll_pipe(e, tag, vaddr, soff, check):
    e(f"s_mov_b32 s35, {SPIN}")
    for k in range(PIPE - 1):
        e(f"buffer_load_dwordx2 v[{32+2*k}:{33+2*k}], v{vaddr}, s[48:51], {soff} offen sc1")
        e(f"s_sleep {PSLEEP}")
    e(f"L_{tag}_rd:")
    for k in range(PIPE):
        kk = (k - 1) % PIPE
        e(f"buffer_load_dwordx2 v[{32+2*kk}:{33+2*kk}], v{vaddr}, s[48:51], {soff} offen sc1")
        e(f"s_waitcnt vmcnt({PIPE-1})")
        check(32 + 2*k)
        e(f"s_sleep {PSLEEP}")
    e("s_sub_u32 s35, s35, 1\ns_cmp_lg_u32 s35, 0")
    e(f"s_cbranch_scc1 L_{tag}_rd")
def flag_wait_all(e, tag, vaddr, soff, preloaded=False):
    if PIPE and preloaded:
        def chk(r):
            e(f"v_cmp_ne_u64 vcc, s[4:5], v[{r}:{r+1}]")
            e(f"s_cbranch_vccz L_{tag}_ok")
        chk(10)
        poll_pipe(e, tag, vaddr, soff, chk)
        e(f"L_{tag}_ok:")
        return
    e(f"s_mov_b32 s35, {SPIN}")
    if preloaded: e(f"s_branch L_{tag}_chk")
    e(f"L_{tag}_rd:")
    flag_read(e, vaddr, soff)
    e("s_waitcnt vmcnt(0)")
    e(f"L_{tag}_chk:")
    e("v_cmp_ne_u64 vcc, s[4:5], v[10:11]")
    e(f"s_cbranch_vccz L_{tag}_ok")
    e(f"s_sleep {PSLEEP}")
    e("s_sub_u32 s35, s35, 1\ns_cmp_lg_u32 s35, 0")
    e(f"s_cbranch_scc1 L_{tag}_rd")
    e(f"L_{tag}_ok:")
def lane_flag_addr(e, dst, n):
    e(f"v_min_u32 v{dst}, {n-1}, v2\nv_lshlrev_b32 v{dst}, 7, v{dst}")

DQ_Q, DQ_SC, DQ_ZR, DQ_T = 160, 192, 196, 200
def dq_lanes(e):
    srd(e, 40, P_QW, 0, D*F*4)
    srd(e, 76, P_SC, 0, 32*F*2)
    srd(e, 16, P_ZR, 0, 32*F*2)
    e("v_lshrrev_b32 v3, 3, v2\nv_and_b32 v4, 7, v2")
    e(f"v_mul_u32_u24 v5, {F*4}, v3\nv_lshlrev_b32 v6, 4, v4\nv_add_u32 v21, v5, v6")
    e("v_lshlrev_b32 v22, 3, v4")
def dq_lanes2(e):
    e("v_lshrrev_b32 v1, 2, v4\nv_lshlrev_b32 v1, 13, v1\nv_and_b32 v6, 3, v4\nv_lshlrev_b32 v6, 8, v6")
    e("v_lshlrev_b32 v3, 4, v3\nv_add3_u32 v1, v1, v6, v3")
    srd(e, 12, P_WS, WS_WQ, SZ_WQ)
def dq_loads(e, part):
    no = 2 if part == 0 else 4
    if part == 0: e("s_mov_b32 s39, s25\ns_mov_b32 s38, s23")
    else: e("s_lshl_b32 s39, s30, 1\ns_add_u32 s38, s23, 28")
    e("s_lshl_b32 s26, s22, 3\ns_add_u32 s26, s26, s39")
    e(f"s_mul_i32 s27, s26, {16*F*4}\ns_lshl_b32 s35, s38, 8\ns_add_u32 s27, s27, s35")
    e(f"s_lshr_b32 s26, s26, 1\ns_mul_i32 s26, s26, {F*2}\ns_lshl_b32 s35, s38, 7\ns_add_u32 s26, s26, s35")
    for o in range(no):
        for t in range(2):
            e(f"buffer_load_dwordx4 {vr(DQ_Q+8*o+4*t,4)}, v21, s[40:43], s27 offen offset:{t*128} {QAUX}")
        if o == 0:
            for t in range(2):
                e(f"buffer_load_dwordx2 {vr(DQ_SC+2*t,2)}, v22, s[76:79], s26 offen offset:{t*64}")
                e(f"buffer_load_dwordx2 {vr(DQ_ZR+2*t,2)}, v22, s[16:19], s26 offen offset:{t*64}")
        if o < no - 1: e(f"s_add_u32 s27, s27, {8*F*4}")
    e("s_mul_i32 s47, s22, 56\ns_add_u32 s47, s47, s38\ns_lshl_b32 s47, s47, 14\ns_lshl_b32 s39, s39, 10\ns_add_u32 s47, s47, s39")
    e(f"s_add_u32 s59, s39, {UNIT + part*SLOT}")
def dq_math(e, part, extra=0, octs=None):
    no = 2 if part == 0 else 4
    Q, SC, ZR, T = DQ_Q, DQ_SC, DQ_ZR, DQ_T
    if part == 0: e("v_add_u32 v23, s59, v1")
    for o in (octs if octs is not None else range(no)):
        if octs is None: e(f"s_waitcnt vmcnt({2*(no-1-o) + o + extra})")
        if o == 0:
            for n in range(4):
                e(f"v_lshlrev_b32 v{T+2*n}, 16, v{SC+n}\nv_and_b32 v{T+2*n+1}, 0xffff0000, v{SC+n}")
                e(f"v_lshlrev_b32 v{T+8+2*n}, 16, v{ZR+n}\nv_and_b32 v{T+8+2*n+1}, 0xffff0000, v{ZR+n}")
        q = Q + 8*o
        for n in range(8): e(f"v_cvt_f32_i32 v{q+n}, v{q+n}")
        for n in range(8): e(f"v_cvt_pk_bf16_f32 v{q+n}, 0, v{q+n}")
        for n in range(8): e(f"v_sub_f32 v{q+n}, v{q+n}, v{T+8+n}")
        for n in range(8): e(f"v_cvt_pk_bf16_f32 v{q+n}, 0, v{q+n}")
        for n in range(8): e(f"v_mul_f32 v{q+n}, v{q+n}, v{T+n}")
        for n in range(4): e(f"v_cvt_pk_bf16_f32 v{q+n}, v{q+2*n}, v{q+2*n+1}")
        e(f"buffer_store_dwordx4 {vr(q,4)}, v1, s[12:15], s47 offen offset:{(o>>1)*1024 + (o&1)*128} {STAUX}")
        if part == 0: e(f"ds_write_b128 v23, {vr(q,4)} offset:{(o>>1)*1024 + (o&1)*128}")

def main_consumer(e):
    if CPRIO: e(f"s_setprio {CPRIO}")
    P = Phase(); P.F0, P.F1 = ACC + 128, ACC + 176
    e("s_lshr_b32 s30, s25, 1\ns_and_b32 s31, s25, 1")
    t_addr(e, "F", "s31", 16)
    e(f"s_lshl_b32 s26, s30, 12\ns_add_u32 s26, s26, {UNIT}\nv_lshlrev_b32 v5, 4, v2\nv_add_u32 v20, s26, v5")
    P.addr = [(8+q, 16+q) for q in range(4)] + [(12, 20)]
    P.nxt = next_a
    def reads(Fb, ks):
        out = []
        for a in range(4):
            out.append(f"ds_read_b128 {vr(Fb+4*a,4)}, v12 offset:{ks*8192 + a*1024}")
            for t in range(2):
                out.append(f"ds_read_b64_tr_b16 {vr(Fb+16+4*a+2*t,2)}, v{8+a} offset:{ks*4096 + t*8192}")
        return out
    def mfmas(Fb):
        return [f"v_mfma_f32_16x16x32_bf16 {vr(ACC+16*a+4*b,4)}, {vr(Fb+4*a,4)}, {vr(Fb+16+4*b,4)}, {vr(ACC+16*a+4*b,4)}"
                for a, b in snake(4, 4)]
    P.reads, P.mfmas = reads, mfmas
    for n in range(128): e(f"v_mov_b32 v{ACC+n}, 0")
    dq_math(e, 0)
    srd(e, 16, P_WS, WS_WV, SZ_WQ)
    e("v_lshrrev_b32 v3, 4, v2\nv_and_b32 v4, 15, v2")
    e(f"s_lshl_b32 s44, s22, 8\ns_lshl_b32 s45, s25, 6\ns_add_u32 s44, s44, s45\ns_mul_i32 s44, s44, {F*2}")
    e("s_lshl_b32 s45, s23, 8\ns_add_u32 s44, s44, s45")
    for b in range(1, 4): e(f"s_add_u32 s{44+b}, s44, {16*b*F*2}")
    e(f"v_and_b32 v5, 7, v4\nv_mul_u32_u24 v5, {F*2}, v5")
    e("v_lshlrev_b32 v6, 4, v3\nv_and_b32 v7, 8, v4\nv_lshlrev_b32 v7, 3, v7\nv_add3_u32 v14, v5, v6, v7")
    e(f"v_add_u32 v15, {8*F*2}, v14")
    e("s_waitcnt vmcnt(0) lgkmcnt(0)\ns_barrier")
    consumer(e, "ga", P, 56, stampn=1)
    stamp(e, 2)
    e("s_lshl_b32 s40, s23, 5\ns_lshl_b32 s41, s22, 2\ns_add_u32 s40, s40, s41\ns_lshl_b32 s41, s30, 1\ns_add_u32 s40, s40, s41")
    e("s_lshl_b32 s40, s40, 13\ns_lshl_b32 s42, s31, 12\ns_add_u32 s40, s40, s42")
    e("s_add_u32 s41, s40, 8192")
    e(f"s_lshl_b32 s43, s30, 14\ns_add_u32 s43, s43, {4*UNIT}\ns_add_u32 s43, s43, s42")
    e(f"s_mov_b32 s33, {4*UNIT}\ns_mov_b32 s34, {8*UNIT}")
    e("v_and_b32 v3, 0x33, v2\nv_lshrrev_b32 v4, 1, v2\nv_and_b32 v4, 4, v4\nv_or_b32 v3, v3, v4\nv_lshlrev_b32 v3, 4, v3")
    e("v_and_b32 v4, 4, v2\nv_lshlrev_b32 v4, 8, v4\nv_or_b32 v3, v3, v4")
    e("v_add_u32 v4, s43, v3")
    n = 0
    for u in range(2):
        for b in range(4):
            d = P.F0 + 4*n; n += 1
            pack_pair(e, d, ACC + 16*(2*u) + 4*b, ACC + 16*(2*u+1) + 4*b)
            e(f"buffer_store_dwordx4 {vr(d,4)}, v3, s[16:19], s{40+u} offen offset:{(b>>1)*2048 + (b&1)*128} {STAUX}")
            e(f"ds_write_b128 v4, {vr(d,4)} offset:{u*8192 + (b>>1)*2048 + (b&1)*128}")
    for n in range(64): e(f"v_mov_b32 v{ACC+n}, 0")
    srd(e, 16, P_OUT, 0, S*F*2)
    e("v_lshlrev_b32 v16, 4, v2")
    e(f"s_lshl_b32 s26, s25, 12\nv_add_u32 v17, s26, v16")
    P.addr = [(9, 17, "s34"), (8, 16)]
    P.nxt = lambda: next_c("s34")
    def reads(Fb, ks):
        xr = [f"ds_read_b128 {vr(Fb+32+4*b,4)}, v9 offset:{ks*UNIT + b*1024}" for b in range(4)]
        wv = [f"ds_read_b128 {vr(Fb+4*a,4)}, v8 offset:{ks*8192 + a*1024}" for a in range(8)]
        return xr + wv
    def mfmas(Fb):
        return [f"v_mfma_f32_16x16x32_bf16 {vr(ACC+16*a+4*b,4)}, {vr(Fb+4*a,4)}, {vr(Fb+32+4*b,4)}, {vr(ACC+16*a+4*b,4)}"
                for a, b in snake(8, 4)]
    P.reads, P.mfmas = reads, mfmas
    e("s_waitcnt lgkmcnt(0)")
    consumer(e, "gc", P, 16 - TAIL, stampn=3, drain=True, flush=(TAIL == 0))
    def out_ops(Ln, temps):
        ops = []
        for b in range(4):
            d = temps[b % len(temps)]
            for h in range(2):
                u = 2*Ln + h
                c0, c1 = ACC + 16*(2*u) + 4*b, ACC + 16*(2*u+1) + 4*b
                ops += [f"v_cvt_pk_bf16_f32 v{d+4*h}, v{c0}, v{c0+1}", f"v_cvt_pk_bf16_f32 v{d+4*h+1}, v{c0+2}, v{c0+3}",
                        f"v_cvt_pk_bf16_f32 v{d+4*h+2}, v{c1}, v{c1+1}", f"v_cvt_pk_bf16_f32 v{d+4*h+3}, v{c1+2}, v{c1+3}"]
            ops += [f"v_mov_b32 v{d+8+j}, v{d+j}" for j in range(4)]
            ops += [f"v_mov_b32_dpp v{d+j}, v{d+4+j} row_ror:8 row_mask:0xf bank_mask:0xc" for j in range(4)]
            ops += [f"v_mov_b32_dpp v{d+4+j}, v{d+8+j} row_ror:8 row_mask:0xf bank_mask:0x3" for j in range(4)]
            ops += [f"buffer_store_dwordx4 {vr(d,4)}, v14, s[16:19], s{44+b} offen offset:{Ln*128} {OUTAUX}",
                    f"buffer_store_dwordx4 {vr(d+4,4)}, v15, s[16:19], s{44+b} offen offset:{Ln*128} {OUTAUX}"]
        return ops
    if TAIL:
        for t in range(1, TAIL):
            for x in next_c("s34"): e(x)
            e(f"v_add_u32 v{8+2*t}, s33, v16\nv_add_u32 v{9+2*t}, s34, v17")
        seq = [(g, t, ks) for g in range(2) for t in range(TAIL) for ks in range(2)]
        def hreads(Fb, g, t, ks):
            out = []
            for k in range(4):
                out.append(f"ds_read_b128 {vr(Fb+16+4*k,4)}, v{9+2*t} offset:{ks*UNIT + k*1024}")
                out.append(f"ds_read_b128 {vr(Fb+4*k,4)}, v{8+2*t} offset:{ks*8192 + (4*g+k)*1024}")
            return out
        def hmfmas(Fb, g):
            return [f"v_mfma_f32_16x16x32_bf16 {vr(ACC+16*(4*g+a)+4*b,4)}, {vr(Fb+4*a,4)}, {vr(Fb+16+4*b,4)}, {vr(ACC+16*(4*g+a)+4*b,4)}"
                    for a, b in snake(4, 4)]
        pend = P.mfmas(P.F1)
        fill = out_ops(0, [P.F0 + 32, P.F1 + 32])
        for n, (g, t, ks) in enumerate(seq + [(None, None, None)]):
            Fb = P.F0 if n % 2 == 0 else P.F1
            rd = hreads(Fb, g, t, ks) if g is not None else []
            usefill = n >= 2*TAIL + 1
            k0 = 0
            if g == 0 and ks == 0:
                for m in pend[:PREB]: e(m)
                e("s_barrier")
                k0 = PREB
                e(rd.pop(0))
            for k, m in enumerate(pend[k0:]):
                e(m)
                c = 0
                if rd: e(rd.pop(0)); c += 1
                if usefill and (n > 2*TAIL + 1 or k >= 4):
                    while fill and c < TFILL:
                        e(fill.pop(0)); c += 1
            if g is not None:
                e("s_waitcnt lgkmcnt(0)")
                pend = hmfmas(Fb, g)
        stamp(e, 5)
        for x in fill: e(x)
        e("s_nop 7")
        for x in out_ops(1, [P.F0, P.F0 + 12, P.F1, P.F1 + 12]): e(x)
    else:
        stamp(e, 5)
        e("s_nop 7")
        for Ln in range(2):
            for x in out_ops(Ln, [P.F0 + 48*Ln + 12*k for k in range(4)]): e(x)
    stamp_flush(e, "cons")
    e("s_endpgm")

PPRIO = 3
CPRIO = 0
def main_producer(e):
    if PPRIO: e(f"s_setprio {PPRIO}")
    e("s_sub_u32 s30, s25, 4\ns_lshl_b32 s31, s30, 10\ns_lshl_b32 s32, s30, 12")
    srd(e, 8, P_V, 0, F*F*2)
    e("s_lshl_b32 s27, s23, 8")
    t_voff(e, "F", F*2, "s27", 8)
    e("v_lshlrev_b32 v5, 4, v2\nv_add_u32 v9, s32, v5")
    e(f"s_mul_i32 s28, s22, {112*8192}")
    e(f"s_and_b32 s29, s20, 1\ns_mul_i32 s29, s29, {XRM}")
    e(f"s_add_u32 s53, s24, {DQAT}" if DQCLS else f"s_mov_b32 s53, {DQAT}")
    def prep(own=None):
        if own is None:
            chunk_of_pos(e, "s36", "s24", "s37", "s38", "s39", 55, LEAD)
            e("s_xor_b32 s38, s37, s29\ns_lshr_b32 s39, s37, 3\ns_bitcmp1_b32 55, s39\ns_cselect_b32 s37, s38, s37")
            e("s_cmp_ge_u32 s37, s23\ns_addc_u32 s37, s37, 0")
        else:
            e(f"s_mov_b32 s37, s23")
        e(f"s_mul_i32 s45, s37, {64*F*2}")
        e("s_lshl_b32 s46, s37, 14\ns_add_u32 s46, s46, s28")
    TL, FL = t_loads(8, 8, "s45", 0, F*2), f_loads(9, 12, "s46", 1)
    AL = (TL + FL) if AORD == "VA" else (FL + TL)
    def adv():
        for x in next_a(): e(x)
        e("s_add_u32 s36, s36, 1")
    prep(0); emit(e, TL)
    for x in next_a(): e(x)
    lane_flag_addr(e, 13, 28)
    e(f"s_mul_i32 s34, s22, {28*128}")
    e("s_lshl_b32 s54, s23, 7\ns_add_u32 s54, s54, s34")
    dq_math(e, 0, extra=4)
    make_tag(e)
    e("s_waitcnt vmcnt(0)")
    e("s_barrier")
    stamp(e, 2)
    e("s_cmp_lg_u32 s30, 0\ns_cbranch_scc1 L_pa_nf")
    flag_store(e, "s54")
    e("L_pa_nf:")
    e("s_barrier")
    e("s_mov_b32 s36, 0")
    for _ in range(2):
        prep(); emit(e, TL); adv()
    flag_read(e, 13, "s34")
    e(f"s_mov_b32 s36, 0\ns_mov_b32 s33, {ASLOT}")
    prep()
    e("s_waitcnt vmcnt(0)")
    flag_wait_all(e, "fwq", 13, "s34", preloaded=True)
    stamp(e, 1)
    emit(e, FL); adv()
    prep(); emit(e, FL); adv()
    prep(); emit(e, AL); adv()
    prep()
    e("s_waitcnt vmcnt(12)\ns_barrier")
    emit(e, AL); adv()
    e("s_add_u32 s34, s34, 64")
    e("s_cmp_ge_u32 s36, s53\ns_cbranch_scc1 L_ga_dq")
    e("L_ga_ptop0:")
    prep()
    e("s_waitcnt vmcnt(16)\ns_barrier")
    emit(e, AL); adv()
    e("s_cmp_lt_u32 s36, s53\ns_cbranch_scc1 L_ga_ptop0")
    e("L_ga_dq:")
    fl = [-2] * 8 + [-1] * 8
    plan = {4: (0,), 5: (1,), 6: (2,), 7: (3,)}
    nit = max(plan) + 5
    for it in range(nit):
        prep()
        keep = len(fl) - max([k + 1 for k, t in enumerate(fl) if t == it - 3] + [0])
        e(f"s_waitcnt vmcnt({keep})\ns_barrier")
        if it == nit - 1:
            e("s_cmp_lg_u32 s30, 0\ns_cbranch_scc1 L_pa_nf2")
            flag_store(e, "s54", 64)
            e("L_pa_nf2:")
        emit(e, AL); adv(); fl += [it] * 8
        if it == 0:
            dq_loads(e, 1); fl += ["q"] * 12
        if it in plan:
            dq_math(e, 1, octs=plan[it]); fl += ["w"] * len(plan[it])
    e(f"s_cmp_ge_u32 s36, {CHK2}\ns_cbranch_scc1 L_ga_ck")
    e("L_ga_ptop1:")
    prep()
    e("s_waitcnt vmcnt(16)\ns_barrier")
    emit(e, AL); adv()
    e(f"s_cmp_lt_u32 s36, {CHK2}\ns_cbranch_scc1 L_ga_ptop1")
    e("L_ga_ck:")
    prep()
    e("s_waitcnt vmcnt(16)\ns_barrier")
    flag_read(e, 13, "s34")
    emit(e, AL); adv()
    prep()
    e("s_waitcnt vmcnt(17)\ns_barrier")
    emit(e, AL); adv()
    prep()
    e("s_waitcnt vmcnt(16)\ns_barrier")
    flag_wait_all(e, "fwq2", 13, "s34", preloaded=True)
    emit(e, AL); adv()
    e(f"v_min_u32 v13, 15, v2\nv_lshlrev_b32 v14, 7, v13")
    e(f"s_lshl_b32 s26, s23, 10\ns_add_u32 s26, s26, {FL_WV}\ns_lshl_b32 s27, s22, 10\ns_add_u32 s27, s27, {FL_XR - 1024}")
    e("v_mov_b32 v3, s26\nv_mov_b32 v4, s27\nv_cmp_gt_u32 vcc, 8, v13\ns_nop 1\nv_cndmask_b32 v3, v4, v3, vcc\nv_add_u32 v13, v14, v3")
    e("s_lshl_b32 s54, s22, 7\ns_add_u32 s54, s54, s26")
    srd(e, 16, P_WS, WS_XR, SZ_XR)
    e("s_lshl_b32 s55, s22, 19\ns_lshl_b32 s58, s23, 18\ns_and_b32 s59, s23, 3\ns_lshl_b32 s27, s22, 1")
    e("s_mov_b32 s52, 0\ns_mov_b32 s34, 0")
    e("L_ga_ptop:")
    prep()
    e("s_waitcnt vmcnt(16)\ns_barrier")
    emit(e, AL); adv()
    e("s_cmp_lt_u32 s36, 53\ns_cbranch_scc1 L_ga_ptop")
    def prepc(own=None, pos="s36"):
        if own is None:
            chunk_of_pos(e, pos, "s59", "s37", "s38", "s39", 14, LEADC)
            e("s_add_u32 s37, s37, 2\ns_add_u32 s38, s37, s27\ns_and_b32 s38, s38, 7\ns_xor_b32 s37, s37, s27\ns_and_b32 s37, s37, 8\ns_or_b32 s37, s37, s38")
        else:
            e(f"s_add_u32 s37, s27, {own}")
        e("s_lshl_b32 s45, s37, 14\ns_add_u32 s45, s45, s58")
        e("s_lshl_b32 s46, s37, 15\ns_add_u32 s46, s46, s55\ns_add_u32 s47, s46, 16384")
    WL, XL = f_loads(9, 12, "s45", 0), f_loads(9, 16, "s46", 0, "s53") + f_loads(9, 16, "s47", 1, "s53")
    def need(tag, xr_only=False):
        e("s_lshr_b32 s38, s37, 1")
        e(f"s_lshl_b32 s38, {0x100 if xr_only else 0x101}, s38")
        e("s_andn2_b32 s39, s38, s52")
        e(f"s_cbranch_scc0 L_{tag}_ok")
        e(f"s_mov_b32 s35, {SPIN}")
        e(f"L_{tag}_rd:")
        flag_read(e, 13, "s34")
        e("s_waitcnt vmcnt(0)")
        flag_mask(e)
        e("s_nop 1\ns_mov_b32 s52, vcc_lo")
        e("s_andn2_b32 s39, s38, s52")
        e(f"s_cbranch_scc0 L_{tag}_ok")
        e(f"s_sleep {PSLEEP}")
        e("s_sub_u32 s35, s35, 1\ns_cmp_lg_u32 s35, 0")
        e(f"s_cbranch_scc1 L_{tag}_rd")
        e(f"L_{tag}_ok:")
    def advc():
        for x in next_c("s53"): e(x)
        e("s_add_u32 s36, s36, 1")
    prep()
    e("s_waitcnt vmcnt(16)\ns_barrier")
    flag_read(e, 13, "s34")
    emit(e, AL); adv()
    prep()
    e("s_waitcnt vmcnt(17)\ns_barrier")
    emit(e, AL)
    srd(e, 12, P_WS, WS_WV, SZ_WQ)
    e(f"s_mov_b32 s53, {8*UNIT}\ns_mov_b32 s33, {6*UNIT}\ns_mov_b32 s36, 0")
    prepc(0)
    e("s_waitcnt vmcnt(16)\ns_barrier")
    flag_mask(e)
    e("s_nop 1\ns_mov_b32 s52, vcc_lo")
    need("fx0", True)
    emit(e, XL)
    for x in next_x("s53"): e(x)
    prepc(1)
    emit(e, XL)
    for x in next_x("s53"): e(x)
    stamp(e, 3)
    prepc()
    e("s_waitcnt vmcnt(24)\ns_barrier")
    need("fx2", True)
    emit(e, XL)
    e("s_waitcnt vmcnt(24)\ns_barrier")
    e("s_waitcnt vmcnt(16)\ns_barrier")
    e("s_waitcnt vmcnt(8)\ns_barrier")
    e("s_cmp_lg_u32 s30, 0\ns_cbranch_scc1 L_pc_nf")
    flag_store(e, "s54")
    e("L_pc_nf:")
    need("fw0")
    stamp(e, 5)
    emit(e, WL); advc()
    prepc()
    need("fw1")
    emit(e, WL + XL); advc()
    e("L_gc_ptop:")
    prepc()
    e("s_waitcnt vmcnt(12)\ns_barrier")
    need("fw2")
    emit(e, WL + XL); advc()
    e("s_cmp_lt_u32 s36, 14\ns_cbranch_scc1 L_gc_ptop")
    e("s_waitcnt vmcnt(12)\ns_barrier\ns_waitcnt vmcnt(0)\ns_barrier")
    e("s_or_b32 s26, s2, s30\ns_cmp_lg_u32 s26, 0\ns_cbranch_scc1 L_pc_end")
    lane_flag_addr(e, 13, 64)
    e(f"s_mov_b32 s34, {FL_XR}")
    flag_wait_all(e, "fall", 13, "s34")
    e(f"s_mov_b32 s26, {FL_E}")
    flag_store(e, "s26")
    e("L_pc_end:")
    stamp_flush(e, "prod")
    e("s_endpgm")

FAKEB = 0
PFDELAY = 0
def spare(e):
    srd(e, 8, P_U, 0, D*D*2)
    srd(e, 12, P_X, 0, S*D*2)
    srd(e, 16, P_WS, WS_XR, SZ_XR)
    if HALF:
        e("s_mov_b32 s22, s20\ns_sub_u32 s24, s21, 28\ns_and_b32 s23, s22, 4\ns_or_b32 s23, s23, s24")
    else:
        e("s_mov_b32 s22, s20\ns_sub_u32 s24, s21, 28\ns_add_u32 s23, s22, s24\ns_and_b32 s23, s23, 7")
    e("s_mov_b32 s53, 0")
    e("s_cmp_ge_u32 s25, 4\ns_cbranch_scc1 L_pb")
    if CPF & 1:
        e("s_cmp_lg_u32 s25, 0\ns_cbranch_scc1 L_nct1")
        code_touch(e)
        e("L_nct1:")
    e("s_lshr_b32 s30, s25, 1\ns_and_b32 s31, s25, 1")
    t_addr(e, "R", "s31", 16)
    e("v_lshrrev_b32 v5, 1, v4\nv_xor_b32 v5, v5, v3\nv_lshlrev_b32 v5, 4, v5")
    e(f"s_lshl_b32 s26, s30, 14\ns_add_u32 s26, s26, {UNIT}")
    e("v_lshlrev_b32 v6, 7, v4\nv_add3_u32 v20, v5, v6, s26\nv_xor_b32 v21, 64, v20")
    P = Phase(); P.F0, P.F1 = ACC + 128, ACC + 176
    P.addr = [(8+q, 16+q) for q in range(4)] + [(12, 20), (13, 21)]
    def reads(Fb, ks):
        out = []
        for a in range(4):
            for t in range(2):
                out.append(f"ds_read_b64_tr_b16 {vr(Fb+32+4*a+2*t,2)}, v{8+a} offset:{ks*8192 + t*1024}")
            for h in range(2):
                out.append(f"ds_read_b128 {vr(Fb+4*(2*a+h),4)}, v{12+ks} offset:{(2*a+h)*2048}")
        return out
    def mfmas(Fb):
        return [f"v_mfma_f32_16x16x32_bf16 {vr(ACC+16*a+4*b,4)}, {vr(Fb+32+4*b,4)}, {vr(Fb+4*a,4)}, {vr(ACC+16*a+4*b,4)}"
                for a, b in snake(8, 4)]
    P.reads, P.mfmas = reads, mfmas
    stamp(e, 1)
    e("L_bl:")
    for n in range(128): e(f"v_mov_b32 v{ACC+n}, 0")
    consumer(e, "gb", P, 16, drain=True)
    e("s_lshl_b32 s40, s22, 5\ns_lshl_b32 s41, s23, 2\ns_add_u32 s40, s40, s41\ns_lshl_b32 s41, s31, 1\ns_add_u32 s40, s40, s41")
    e("s_lshl_b32 s40, s40, 14\ns_lshl_b32 s41, s30, 13\ns_add_u32 s40, s40, s41")
    e("s_add_u32 s41, s40, 4096\ns_add_u32 s42, s40, 16384\ns_add_u32 s43, s40, 20480")
    e("v_lshlrev_b32 v3, 4, v2")
    n = 0
    for u in range(2):
        for a in range(8):
            d = P.F0 + 4*n; n += 1
            pack_pair(e, d, ACC + 16*a + 4*(2*u), ACC + 16*a + 4*(2*u+1))
            e(f"buffer_store_dwordx4 {vr(d,4)}, v3, s[16:19], s{40+2*u+(a>>2)} offen offset:{(a&3)*1024} {STAUX}")
    e("s_xor_b32 s23, s23, 4\ns_add_u32 s53, s53, 1\ns_cmp_lt_u32 s53, 2\ns_cbranch_scc1 L_bl")
    stamp(e, 2)
    e("s_waitcnt vmcnt(0)\ns_barrier")
    stamp_flush(e, "bcons")
    e("s_endpgm")
    e("L_pb:")
    if PPRIO: e(f"s_setprio {PPRIO}")
    e("s_sub_u32 s30, s25, 4\ns_lshl_b32 s31, s30, 10\ns_lshl_b32 s32, s30, 12")
    t_voff(e, "R", 2048, None, 8)
    e("s_and_b32 s26, s30, 1\ns_lshl_b32 s26, s26, 2")
    e("v_or_b32 v5, s26, v3\nv_and_b32 v6, 7, v2\nv_xor_b32 v5, v5, v6\nv_lshlrev_b32 v5, 4, v5")
    e("s_lshl_b32 s26, s30, 3")
    e("v_lshrrev_b32 v6, 3, v2\nv_add_u32 v6, s26, v6\nv_lshlrev_b32 v6, 11, v6")
    e("v_add_u32 v9, v5, v6")
    def prep():
        e("s_and_b32 s34, s36, 15")
        chunk_of_pos(e, "s34", "s24", "s37", "s38", "s39", 16, LEAD)
        if BROT: e("s_lshl_b32 s38, s20, 2\ns_add_u32 s37, s37, s38\ns_and_b32 s37, s37, 15")
        e(f"s_lshr_b32 s38, s36, 4\ns_lshl_b32 s38, s38, 2\ns_xor_b32 s38, s38, s23\ns_lshl_b32 s38, s38, 8\ns_lshl_b32 s45, s37, 17\ns_add_u32 s45, s45, s38")
        e(f"s_lshl_b32 s38, s22, 19\ns_lshl_b32 s46, s37, 7\ns_add_u32 s46, s46, s38")
    xl = []
    for u in range(2):
        for i in range(4):
            g = [f"s_add_u32 m0, s44, {(1+u)*UNIT + i*4096}"]
            g += [f"s_add_u32 s46, s46, {32*2048}" if (u or i) else "s_nop 0"]
            g.append("buffer_load_dwordx4 v9, s[12:15], s46 offen lds")
            xl.append(g)
    LD = t_loads(8, 8, "s45", 0, 2048) + xl
    def adv():
        for x in next_slot(): e(x)
        e("s_add_u32 s36, s36, 1")
    e(f"s_lshl_b32 s27, s22, 10\ns_lshl_b32 s26, s23, 7\ns_add_u32 s27, s27, s26\ns_add_u32 s27, s27, {FL_XR}")
    e("s_mov_b32 s36, 0")
    for _ in range(2):
        prep(); emit(e, LD); adv()
    make_tag(e)
    e("L_gb_ptop:")
    prep()
    e("s_waitcnt vmcnt(12)\ns_barrier")
    e("s_xor_b32 s26, s36, 19\ns_or_b32 s26, s26, s30\ns_cmp_lg_u32 s26, 0\ns_cbranch_scc1 L_pb_nf")
    flag_store(e, "s27")
    e("L_pb_nf:")
    if CPF & 2:
        e("s_xor_b32 s26, s36, 26\ns_or_b32 s26, s26, s30\ns_cmp_lg_u32 s26, 0\ns_cbranch_scc1 L_nct2")
        code_touch(e)
        e("L_nct2:")
    emit(e, LD); adv()
    e("s_cmp_lt_u32 s36, 32\ns_cbranch_scc1 L_gb_ptop")
    e("s_waitcnt vmcnt(12)\ns_barrier\ns_waitcnt vmcnt(0)\ns_barrier")
    e("s_barrier")
    e("s_cmp_lg_u32 s30, 0\ns_cbranch_scc1 L_pb_end")
    e("s_xor_b32 s27, s27, 512")
    flag_store(e, "s27")
    e("L_pb_end:")
    stamp_flush(e)
    e("s_endpgm")

def kernel(e):
    e(f".globl {NAME}\n.p2align 8\n.type {NAME},@function\n{NAME}:")
    if STAMP:
        for n in range(1, 8): e(f"s_mov_b64 s[{80+2*n}:{81+2*n}], 0")
    stamp(e, 0)
    e("s_load_dwordx16 s[60:75], s[0:1], 0")
    e("s_load_dwordx2 s[56:57], s[0:1], 64")
    e("s_cmp_ge_u32 s2, 256\ns_cbranch_scc1 L_end")
    e("s_and_b32 s20, s2, 7\ns_lshr_b32 s21, s2, 3")
    e("v_lshrrev_b32 v1, 6, v0\nv_and_b32 v2, 63, v0\ns_nop 0\nv_readfirstlane_b32 s25, v1")
    e("s_and_b32 s22, s20, 1\ns_lshl_b32 s22, s22, 2\ns_and_b32 s23, s21, 3\ns_add_u32 s22, s22, s23")
    e("s_lshr_b32 s23, s20, 1\ns_mul_i32 s23, s23, 7\ns_lshr_b32 s24, s21, 2\ns_add_u32 s23, s23, s24")
    e("s_add_u32 s24, s22, s23\ns_and_b32 s24, s24, 3")
    e("s_mov_b32 s33, 0")
    e(f"s_mov_b32 s26, {WS_FL + FL_E}")
    e("s_waitcnt lgkmcnt(0)")
    e("s_load_dwordx2 s[6:7], s[56:57], s26")
    srd(e, 48, P_WS, WS_FL, FL_BYTES)
    if CPF & 8:
        e("s_cmp_lg_u32 s25, 7\ns_cbranch_scc1 L_nct4")
        code_touch(e)
        e("L_nct4:")
    e("s_cmp_ge_u32 s21, 28\ns_cbranch_scc1 L_spare")
    dq_lanes(e)
    dq_loads(e, 0)
    dq_lanes2(e)
    e("s_cmp_ge_u32 s25, 4\ns_cbranch_scc1 L_mainp")
    main_consumer(e)
    e("L_mainp:")
    main_producer(e)
    e("L_spare:")
    spare(e)
    e("L_end:")
    e("s_endpgm")
    e("L_code_end:")
    e(f'.section .rodata,"a"\n.p2align 6\n.amdhsa_kernel {NAME}')
    e(f".amdhsa_next_free_vgpr 256\n.amdhsa_next_free_sgpr 96\n.amdhsa_accum_offset 256")
    e(".amdhsa_group_segment_fixed_size 0\n.amdhsa_kernarg_size 72\n.amdhsa_user_sgpr_count 2")
    e(".amdhsa_user_sgpr_kernarg_segment_ptr 1\n.amdhsa_system_sgpr_workgroup_id_x 1")
    e(".amdhsa_float_denorm_mode_32 3")
    e(".end_amdhsa_kernel")

HEADER = open("standalone__weight_only_int_quip__prompt.s.ref").read().split("; Override")[0]
ASLIST = False
def generate():
    e = Asm()
    out = HEADER
    if ASLIST:
        out += f"; @launch kernel={NAME} grid=(256,1,1) block=(512,1,1) lds={LDS_BYTES}\n"
    else:
        out += f"; @launch grid=(256,1,1) block=(512,1,1) lds={LDS_BYTES}\n"
    e('.amdgcn_target "amdgcn-amd-amdhsa--gfx950"\n.text')
    kernel(e)
    return out + e.text()

if __name__ == "__main__":
    args = [a for a in sys.argv[1:] if not a.startswith("-")]
    for a in sys.argv[1:]:
        if a.startswith("-"):
            k, v = a[1:].split("=", 1)
            globals()[k] = eval(v)
    path = args[0] if args else "standalone__weight_only_int_quip__prompt.s"
    open(path, "w").write(generate())
    print("wrote", path)
```

```python
import sys, re

S, D, F = 2048, 1024, 3584
WS_WQ, WS_WV, WS_XR, WS_FL, WS_ST = 0, 8 << 20, 16 << 20, 24 << 20, 64 << 20
SZ_WQ, SZ_XR = D * F * 2, S * D * 2
FL_WQ, FL_WV, FL_XR, FL_E = 0, 224 * 128, 448 * 128, 512 * 128
FL_BYTES = 513 * 128
NAME = "standalone__weight_only_int_quip__prompt_kernel"

NOMFMA = NOREAD = NOLOAD = False
STAMP = False
STAUX = "sc1"
OUTAUX = "sc1"
QAUX = ""
SKEW = True
LEAD = 2
NTOUCH = 0
XUT = 0
UNIT = 16384
SLOT = 3 * UNIT
LDS_BYTES = 3 * SLOT
PREB = 2
SALU_PER = 1
SPIN = 1 << 17
PSLEEP = 2
ACC = 28
TAIL = 3
BROT = True
HALF = True
LEADC = 2
TFILL = 2
XRM = 4
AORD = "AV"

class Asm:
    def __init__(self):
        self.L = []
    def __call__(self, s):
        for line in s.split("\n"):
            line = line.strip()
            if NOMFMA and line.startswith("v_mfma"): continue
            if NOREAD and line.startswith("ds_read"): continue
            if NOLOAD and line.startswith("buffer_load") and line.endswith("lds"): continue
            if line:
                self.L.append(("    " if not line.endswith(":") and not line.startswith(".") else "") + line)
    def text(self):
        return "\n".join(self.L) + "\n"

def vr(b, n=1):
    return f"v{b}" if n == 1 else f"v[{b}:{b+n-1}]"

P_X, P_QW, P_SC, P_ZR, P_U, P_V, P_OUT, P_WS = 60, 62, 64, 66, 68, 70, 72, 56
def srd(e, d, base, add, nbytes):
    if add:
        e(f"s_add_u32 s{d}, s{base}, {add}\ns_addc_u32 s{d+1}, s{base+1}, 0")
    else:
        e(f"s_mov_b32 s{d}, s{base}\ns_mov_b32 s{d+1}, s{base+1}")
    e(f"s_mov_b32 s{d+2}, {nbytes}\ns_mov_b32 s{d+3}, 0x20000")

DIAG = ""
def stamp(e, n, diag=""):
    if n in (3, 5) and diag != DIAG: return
    if STAMP:
        e(f"s_memrealtime s[{80+2*n}:{81+2*n}]")
        if n in (1, 2):
            e(f"s_memtime s[{90+2*n}:{91+2*n}]")
DBGSTAMP = False
ECHO = None
def stamp_flush(e, role=""):
    if not STAMP:
        return
    e("s_waitcnt lgkmcnt(0) vmcnt(0)")
    stamp(e, 4)
    e("s_waitcnt lgkmcnt(0)")
    if ECHO:
        if role == "cons":
            a_, b_, mult = ECHO
            e("s_or_b32 s26, s2, s25\ns_cmp_lg_u32 s26, 0\ns_cbranch_scc1 L_echo_end")
            e(f"s_sub_u32 s26, s{80+2*b_}, s{80+2*a_}\ns_mul_i32 s26, s26, {mult}\ns_add_u32 s26, s26, 6000")
            e("L_echo:")
            e("s_memrealtime s[28:29]\ns_waitcnt lgkmcnt(0)")
            e("s_sub_u32 s27, s28, s80\ns_cmp_lt_u32 s27, s26\ns_cbranch_scc1 L_echo")
            e("L_echo_end:")
        return
    if DBGSTAMP:
        srd(e, 76, 74, 0, 256)
        e("v_mov_b32 v4, 0\ns_mov_b64 exec, 1")
        sel = {"cons": [(0, 0, 1), (1, 1, 1), (1, 2, 0), (2, 3, 1), (2, 4, 0), (3, 5, 1), (3, 6, 0), (5, 7, 1), (5, 8, 0), (4, 9, 0), (0, 15, 0)],
               "prod": [(2, 10, 0), (1, 11, 0), (3, 12, 0)], "bcons": [(2, 13, 1), (2, 14, 0)]}.get(role, [])
        for k, (st, w, inv) in enumerate(sel):
            e(f"v_mov_b32 v{8+k}, s{80+2*st}")
            if inv: e(f"v_not_b32 v{8+k}, v{8+k}")
            e(f"buffer_atomic_umax v{8+k}, v4, s[76:79], 0 offen offset:{4*w}")
        return
    srd(e, 76, P_WS, WS_ST, 1 << 20)
    e(f"s_lshl_b32 s75, s2, 3\ns_add_u32 s75, s75, s25\ns_lshl_b32 s75, s75, 6")
    for n in range(16):
        e(f"v_mov_b32 v{8+n}, s{80+n}")
    e("v_mov_b32 v4, 0")
    e("s_mov_b64 exec, 1")
    for n in range(4):
        e(f"buffer_store_dwordx4 v[{8+4*n}:{11+4*n}], v4, s[76:79], s75 offen offset:{16*n}")

def chunk_of_pos(e, spos, scls, sdst, st1, st2, nch, lead, sxor=None):
    if not SKEW:
        e(f"s_mov_b32 {sdst}, {spos}")
        return
    e(f"s_sub_u32 {st1}, {spos}, {scls}")
    e(f"s_and_b32 {st1}, {st1}, 3")
    e(f"s_cmp_le_u32 {st1}, {lead}")
    e(f"s_cselect_b32 {st2}, -1, 0")
    e(f"s_cmp_eq_u32 {st1}, 0")
    e(f"s_cselect_b32 {st2}, {lead}, {st2}")
    e(f"s_cmp_lt_u32 {spos}, {scls}")
    e(f"s_cselect_b32 {st2}, 0, {st2}")
    e(f"s_sub_u32 {st1}, {spos}, {st1}")
    e(f"s_cmp_ge_i32 {st1}, {nch-3}")
    e(f"s_cselect_b32 {st2}, 0, {st2}")
    e(f"s_add_u32 {sdst}, {spos}, {st2}")
    if sxor:
        e(f"s_xor_b32 {sdst}, {sdst}, {sxor}")

def interleave(e, mfmas, others, per=1, lead=0):
    reads = [x for x in others if x.startswith("ds_")]
    salu = [x for x in others if x.startswith("s_")]
    valu = [x for x in others if x.startswith("v_")]
    def ready(x):
        ops = [t.strip(",") for t in x.split()[1:]]
        dst, srcs = ops[0], ops[1:]
        if any(re.search(rf", {dst}( |$)", r) for r in reads): return False
        if any(y.split()[1].strip(",") in srcs for y in salu): return False
        return True
    for _ in range(lead):
        if reads: e(reads.pop(0))
    for k, m in enumerate(mfmas):
        e(m)
        c = 0
        for _ in range(per):
            if reads: e(reads.pop(0)); c += 1
        while c < 2 and valu and ready(valu[0]):
            e(valu.pop(0)); c += 1
        for _ in range(SALU_PER if c else SALU_PER + 1):
            if salu: e(salu.pop(0))
    for x in reads + salu + valu:
        e(x)

def pack_pair(e, dst, c0, c1):
    e(f"v_cvt_pk_bf16_f32 v{dst}, v{c0}, v{c0+1}")
    e(f"v_cvt_pk_bf16_f32 v{dst+1}, v{c0+2}, v{c0+3}")
    e(f"v_cvt_pk_bf16_f32 v{dst+2}, v{c1}, v{c1+1}")
    e(f"v_cvt_pk_bf16_f32 v{dst+3}, v{c1+2}, v{c1+3}")

def next_slot(s="s33"):
    return [f"s_add_u32 {s}, {s}, {SLOT}", f"s_cmp_eq_u32 {s}, {3*SLOT}", f"s_cselect_b32 {s}, 0, {s}"]

class Phase:
    pass

def consumer(e, tag, P, nst, stampn=None, drain=False, flush=True):
    def upd():
        return [f"v_add_u32 v{c}, s33, v{b}" for (c, b) in P.addr]
    for x in upd(): e(x)
    e(f"s_mov_b32 s36, {nst}")
    e("s_barrier")
    if stampn is not None: stamp(e, stampn)
    for r in P.reads(P.F0, 0): e(r)
    e(f"s_branch L_{tag}_mid")
    m1 = P.mfmas(P.F1)
    e(f"L_{tag}_top:")
    for m in m1[:PREB]: e(m)
    e("s_barrier")
    interleave(e, m1[PREB:], P.reads(P.F0, 0), lead=1)
    e(f"L_{tag}_mid:")
    e("s_waitcnt lgkmcnt(0)")
    tail = next_slot() + ["s_sub_u32 s36, s36, 1", "s_cmp_lg_u32 s36, 0"] + upd()
    interleave(e, P.mfmas(P.F0), P.reads(P.F1, 1) + tail)
    e("s_waitcnt vmcnt(0) lgkmcnt(0)" if drain else "s_waitcnt lgkmcnt(0)")
    e(f"s_cbranch_scc1 L_{tag}_top")
    if flush:
        for m in m1: e(m)

FAST = True
TRACE = False
def trace_dump(e):
    if TRACE:
        srd(e, 76, P_WS, WS_ST + (1 << 20), 1 << 22)
        e("s_lshl_b32 s75, s2, 3\ns_add_u32 s75, s75, s25\ns_lshl_b32 s75, s75, 10")
        e("v_lshlrev_b32 v4, 4, v2")
        e("buffer_store_dwordx4 v[40:43], v4, s[76:79], s75 offen")
class Rec:
    def __init__(self): self.L = []
    def __call__(self, s): self.L += [x.strip() for x in s.split("\n") if x.strip()]
def fill_loads(e, groups, fills):
    for g, f in zip(groups, fills):
        for x in g + f: e(x)
def split_fill(ins, n):
    out, per = [], -(-len(ins) // n)
    ins = list(ins)
    for k in range(n):
        run = ins[:per]; ins = ins[per:]
        while ins and ins[0].split()[0] in ("s_cselect_b32", "s_addc_u32"):
            run.append(ins.pop(0))
        out.append(run)
    out[-1] += ins
    return out
def emit(e, groups):
    for g in groups:
        for x in g: e(x)

def snake(na, nb):
    return [(a, (b if a % 2 == 0 else nb - 1 - b)) for a in range(na) for b in range(nb)]

def t_addr(e, kind, swt, dst):
    e("v_lshrrev_b32 v3, 4, v2\nv_and_b32 v4, 15, v2\nv_lshrrev_b32 v5, 2, v4\nv_and_b32 v6, 3, v4")
    e(f"v_lshlrev_b32 v7, {2 if kind == 'F' else 3}, v3\nv_add_u32 v7, v7, v5\nv_lshlrev_b32 v7, 8, v7")
    e("v_lshlrev_b32 v6, 3, v6\nv_add_u32 v7, v7, v6")
    e("v_and_b32 v6, 1, v3\nv_lshlrev_b32 v6, 2, v6\nv_or_b32 v6, v6, v5")
    e(f"s_lshl_b32 s26, {swt}, 2")
    e("v_xor_b32 v6, s26, v6")
    for q in range(4):
        e(f"v_xor_b32 v5, {q}, v6\nv_lshlrev_b32 v5, 5, v5\nv_add_u32 v{dst+q}, v7, v5")

def t_voff(e, kind, trow, scol, dst):
    e("v_lshrrev_b32 v3, 4, v2\nv_and_b32 v4, 15, v2")
    if kind == "F":
        e("s_and_b32 s26, s30, 1\ns_lshl_b32 s26, s26, 2")
    else:
        e("s_and_b32 s26, s30, 2\ns_lshl_b32 s26, s26, 1")
    e("v_or_b32 v5, s26, v3\nv_lshlrev_b32 v5, 1, v5\nv_xor_b32 v5, v5, v4\nv_lshlrev_b32 v5, 4, v5")
    e("s_lshl_b32 s26, s30, 2")
    e(f"v_add_u32 v6, s26, v3\nv_mul_u32_u24 v6, {trow}, v6")
    e(f"v_add_u32 v5, v5, v6")
    if scol: e(f"v_add_u32 v{dst}, {scol}, v5")
    else: e(f"v_mov_b32 v{dst}, v5")

def t_loads(vreg, srdn, soff, unit, trow):
    out = []
    for i in range(4):
        if i == 0:
            g = [f"s_add_u32 s44, s33, s31", f"s_add_u32 m0, s44, {unit*UNIT}", "s_nop 0"]
        else:
            g = [f"s_add_u32 m0, s44, {unit*UNIT + i*4096}", f"s_add_u32 {soff}, {soff}, {16*trow}"]
        g.append(f"buffer_load_dwordx4 v{vreg}, s[{srdn}:{srdn+3}], {soff} offen lds")
        out.append(g)
    return out

def f_loads(vreg, srdn, soff, unit):
    out = []
    for i in range(4):
        g = ["s_add_u32 s43, s33, s32", f"s_add_u32 m0, s43, {unit*UNIT}", "s_nop 0"] if i == 0 else []
        g.append(f"buffer_load_dwordx4 v{vreg}, s[{srdn}:{srdn+3}], {soff} offen offset:{i*1024} lds")
        out.append(g)
    return out

CPF = 0
_ct = [0]
def code_touch(e, halves=(0, 1)):
    _ct[0] += 1
    lab = f"L_ct{_ct[0]}"
    e("s_getpc_b64 s[76:77]")
    e(f"{lab}:")
    e(f"s_sub_u32 s76, s76, {lab}-{NAME}\ns_subb_u32 s77, s77, 0")
    e(f"s_mov_b32 s78, L_code_end-{NAME}\ns_mov_b32 s79, 0x20000")
    e("v_lshlrev_b32 v27, 7, v2")
    for h in halves:
        e(f"s_movk_i32 s3, {h*8192}")
        e("buffer_load_dword v23, v27, s[76:79], s3 offen")

def make_tag(e):
    e("s_waitcnt lgkmcnt(0)")
    e("s_mul_i32 s4, s6, 0x9e3779b1\ns_add_u32 s4, s4, 0x7f4a7c15")
    e("s_mul_i32 s5, s7, 0x85ebca6b\ns_add_u32 s5, s5, 0xc2b2ae35")
def flag_store(e, soff):
    e("v_mov_b32 v10, s4\nv_mov_b32 v11, s5\nv_mov_b32 v12, 0")
    e("s_mov_b64 exec, 1")
    e(f"buffer_store_dwordx2 v[10:11], v12, s[48:51], {soff} offen sc1")
    e("s_mov_b64 exec, -1")
def flag_read(e, vaddr, soff):
    e(f"buffer_load_dwordx2 v[10:11], v{vaddr}, s[48:51], {soff} offen sc1")
def flag_mask(e):
    e("v_cmp_eq_u64 vcc, s[4:5], v[10:11]")
PIPE = 0
def poll_pipe(e, tag, vaddr, soff, check):
    e(f"s_mov_b32 s35, {SPIN}")
    for k in range(PIPE - 1):
        e(f"buffer_load_dwordx2 v[{32+2*k}:{33+2*k}], v{vaddr}, s[48:51], {soff} offen sc1")
        e(f"s_sleep {PSLEEP}")
    e(f"L_{tag}_rd:")
    for k in range(PIPE):
        kk = (k - 1) % PIPE
        e(f"buffer_load_dwordx2 v[{32+2*kk}:{33+2*kk}], v{vaddr}, s[48:51], {soff} offen sc1")
        e(f"s_waitcnt vmcnt({PIPE-1})")
        check(32 + 2*k)
        e(f"s_sleep {PSLEEP}")
    e("s_sub_u32 s35, s35, 1\ns_cmp_lg_u32 s35, 0")
    e(f"s_cbranch_scc1 L_{tag}_rd")
def flag_wait_all(e, tag, vaddr, soff, preloaded=False):
    if PIPE and preloaded:
        def chk(r):
            e(f"v_cmp_ne_u64 vcc, s[4:5], v[{r}:{r+1}]")
            e(f"s_cbranch_vccz L_{tag}_ok")
        chk(10)
        poll_pipe(e, tag, vaddr, soff, chk)
        e(f"L_{tag}_ok:")
        return
    e(f"s_mov_b32 s35, {SPIN}")
    if preloaded: e(f"s_branch L_{tag}_chk")
    e(f"L_{tag}_rd:")
    flag_read(e, vaddr, soff)
    e("s_waitcnt vmcnt(0)")
    e(f"L_{tag}_chk:")
    e("v_cmp_ne_u64 vcc, s[4:5], v[10:11]")
    e(f"s_cbranch_vccz L_{tag}_ok")
    e(f"s_sleep {PSLEEP}")
    e("s_sub_u32 s35, s35, 1\ns_cmp_lg_u32 s35, 0")
    e(f"s_cbranch_scc1 L_{tag}_rd")
    e(f"L_{tag}_ok:")
def lane_flag_addr(e, dst, n):
    e(f"v_min_u32 v{dst}, {n-1}, v2\nv_lshlrev_b32 v{dst}, 7, v{dst}")

def dequant(e):
    srd(e, 8, P_QW, 0, D*F*4)
    srd(e, 12, P_SC, 0, 32*F*2)
    srd(e, 16, P_ZR, 0, 32*F*2)
    e("v_lshrrev_b32 v3, 3, v2\nv_and_b32 v4, 7, v2")
    e(f"v_mul_u32_u24 v5, {F*4}, v3\nv_lshlrev_b32 v6, 4, v4\nv_add_u32 v5, v5, v6")
    e(f"v_add_u32 v8, {8*F*4}, v5")
    e("v_lshlrev_b32 v7, 3, v4")
    e("s_lshl_b32 s26, s22, 3\ns_add_u32 s26, s26, s25")
    e(f"s_mul_i32 s27, s26, {16*F*4}\ns_lshl_b32 s28, s23, 9\ns_add_u32 s27, s27, s28")
    e(f"s_lshr_b32 s28, s26, 1\ns_mul_i32 s28, s28, {F*2}\ns_lshl_b32 s29, s23, 8\ns_add_u32 s28, s28, s29")
    Q, SC, ZR, T = 32, 64, 72, 80
    for j in range(2):
        for o in range(2):
            for t in range(2):
                e(f"buffer_load_dwordx4 {vr(Q+16*j+8*o+4*t,4)}, v{5 if o == 0 else 8}, s[8:11], s27 offen offset:{j*256+t*128} {QAUX}")
        for t in range(2):
            e(f"buffer_load_dwordx2 {vr(SC+4*j+2*t,2)}, v7, s[12:15], s28 offen offset:{j*128+t*64}")
            e(f"buffer_load_dwordx2 {vr(ZR+4*j+2*t,2)}, v7, s[16:19], s28 offen offset:{j*128+t*64}")
    stamp(e, 3, "start")
    e("v_lshrrev_b32 v1, 2, v4\nv_lshlrev_b32 v1, 13, v1\nv_and_b32 v6, 3, v4\nv_lshlrev_b32 v6, 8, v6")
    e("v_lshlrev_b32 v3, 4, v3\nv_add3_u32 v1, v1, v6, v3")
    e("s_mul_i32 s29, s22, 56\ns_lshl_b32 s30, s23, 1\ns_add_u32 s29, s29, s30\ns_lshl_b32 s29, s29, 14")
    e("s_lshl_b32 s30, s25, 10\ns_add_u32 s29, s29, s30")
    e(f"s_add_u32 s30, s30, {UNIT}\nv_add_u32 v9, s30, v1")
    srd(e, 8, P_V, 0, F*F*2)
    srd(e, 12, P_WS, WS_WQ, SZ_WQ)
    srd(e, 16, P_WS, WS_WV, SZ_WQ)
    for j in range(2):
        e(f"s_waitcnt vmcnt({8*(1-j) + 2*j})")
        if j == 0: stamp(e, 5, "start")
        if j == 1: stamp(e, 3, "start2")
        for n in range(4):
            e(f"v_lshlrev_b32 v{T+2*n}, 16, v{SC+4*j+n}\nv_and_b32 v{T+2*n+1}, 0xffff0000, v{SC+4*j+n}")
            e(f"v_lshlrev_b32 v{T+8+2*n}, 16, v{ZR+4*j+n}\nv_and_b32 v{T+8+2*n+1}, 0xffff0000, v{ZR+4*j+n}")
        for o in range(2):
            q = Q + 16*j + 8*o
            for n in range(8): e(f"v_cvt_f32_i32 v{q+n}, v{q+n}")
            for n in range(8): e(f"v_cvt_pk_bf16_f32 v{q+n}, 0, v{q+n}")
            for n in range(8): e(f"v_sub_f32 v{q+n}, v{q+n}, v{T+8+n}")
            for n in range(8): e(f"v_cvt_pk_bf16_f32 v{q+n}, 0, v{q+n}")
            for n in range(8): e(f"v_mul_f32 v{q+n}, v{q+n}, v{T+n}")
            for n in range(4): e(f"v_cvt_pk_bf16_f32 v{q+n}, v{q+2*n}, v{q+2*n+1}")
            e(f"buffer_store_dwordx4 {vr(q,4)}, v1, s[12:15], s29 offen offset:{o*128} {STAUX}")
            e(f"ds_write_b128 v9, {vr(q,4)} offset:{j*SLOT + o*128}")
        e("s_add_u32 s29, s29, 16384")
    stamp(e, 5, "start2")

def main_consumer(e):
    if CPRIO: e(f"s_setprio {CPRIO}")
    P = Phase(); P.F0, P.F1 = ACC + 128, ACC + 176
    e("s_lshr_b32 s30, s25, 1\ns_and_b32 s31, s25, 1")
    t_addr(e, "F", "s31", 16)
    e(f"s_lshl_b32 s26, s30, 12\ns_add_u32 s26, s26, {UNIT}\nv_lshlrev_b32 v5, 4, v2\nv_add_u32 v20, s26, v5")
    P.addr = [(8+q, 16+q) for q in range(4)] + [(12, 20)]
    def reads(Fb, ks):
        out = []
        for a in range(4):
            out.append(f"ds_read_b128 {vr(Fb+4*a,4)}, v12 offset:{ks*8192 + a*1024}")
            for t in range(2):
                out.append(f"ds_read_b64_tr_b16 {vr(Fb+16+4*a+2*t,2)}, v{8+a} offset:{ks*4096 + t*8192}")
        return out
    def mfmas(Fb):
        return [f"v_mfma_f32_16x16x32_bf16 {vr(ACC+16*a+4*b,4)}, {vr(Fb+4*a,4)}, {vr(Fb+16+4*b,4)}, {vr(ACC+16*a+4*b,4)}"
                for a, b in snake(4, 4)]
    P.reads, P.mfmas = reads, mfmas
    e("v_lshrrev_b32 v3, 4, v2\nv_and_b32 v4, 15, v2")
    e(f"s_lshl_b32 s44, s22, 8\ns_lshl_b32 s45, s25, 6\ns_add_u32 s44, s44, s45\ns_mul_i32 s44, s44, {F*2}")
    e("s_lshl_b32 s45, s23, 8\ns_add_u32 s44, s44, s45")
    for b in range(1, 4): e(f"s_add_u32 s{44+b}, s44, {16*b*F*2}")
    e(f"v_and_b32 v5, 7, v4\nv_mul_u32_u24 v5, {F*2}, v5")
    e("v_lshlrev_b32 v6, 4, v3\nv_and_b32 v7, 8, v4\nv_lshlrev_b32 v7, 3, v7\nv_add3_u32 v14, v5, v6, v7")
    e(f"v_add_u32 v15, {8*F*2}, v14")
    for n in range(128): e(f"v_mov_b32 v{ACC+n}, 0")
    e("s_waitcnt vmcnt(0) lgkmcnt(0)\ns_barrier")
    consumer(e, "ga", P, 56, stampn=1)
    stamp(e, 2)
    e("s_lshl_b32 s40, s23, 5\ns_lshl_b32 s41, s22, 2\ns_add_u32 s40, s40, s41\ns_lshl_b32 s41, s30, 1\ns_add_u32 s40, s40, s41")
    e("s_lshl_b32 s40, s40, 13\ns_lshl_b32 s42, s31, 12\ns_add_u32 s40, s40, s42")
    e("s_add_u32 s41, s40, 8192")
    e("s_mov_b32 s43, s33")
    for x in next_slot("s43"): e(x)
    e("s_cmp_eq_u32 s30, 0\ns_cselect_b32 s43, s33, s43\ns_add_u32 s43, s43, s42")
    e("v_and_b32 v3, 0x33, v2\nv_lshrrev_b32 v4, 1, v2\nv_and_b32 v4, 4, v4\nv_or_b32 v3, v3, v4\nv_lshlrev_b32 v3, 4, v3")
    e("v_and_b32 v4, 4, v2\nv_lshlrev_b32 v4, 8, v4\nv_or_b32 v3, v3, v4")
    e("v_add_u32 v4, s43, v3")
    n = 0
    for u in range(2):
        for b in range(4):
            d = P.F0 + 4*n; n += 1
            pack_pair(e, d, ACC + 16*(2*u) + 4*b, ACC + 16*(2*u+1) + 4*b)
            e(f"buffer_store_dwordx4 {vr(d,4)}, v3, s[16:19], s{40+u} offen offset:{(b>>1)*2048 + (b&1)*128} {STAUX}")
            e(f"ds_write_b128 v4, {vr(d,4)} offset:{u*8192 + (b>>1)*2048 + (b&1)*128}")
    for n in range(64): e(f"v_mov_b32 v{ACC+n}, 0")
    srd(e, 16, P_OUT, 0, S*F*2)
    e("v_lshlrev_b32 v16, 4, v2")
    e(f"s_lshl_b32 s26, s25, 12\ns_add_u32 s26, s26, {UNIT}\nv_add_u32 v17, s26, v16")
    P.addr = [(9, 17), (8, 16)]
    def reads(Fb, ks):
        xr = [f"ds_read_b128 {vr(Fb+32+4*b,4)}, v9 offset:{ks*UNIT + b*1024}" for b in range(4)]
        wv = [f"ds_read_b128 {vr(Fb+4*a,4)}, v8 offset:{ks*8192 + a*1024}" for a in range(8)]
        return xr + wv
    def mfmas(Fb):
        return [f"v_mfma_f32_16x16x32_bf16 {vr(ACC+16*a+4*b,4)}, {vr(Fb+4*a,4)}, {vr(Fb+32+4*b,4)}, {vr(ACC+16*a+4*b,4)}"
                for a, b in snake(8, 4)]
    P.reads, P.mfmas = reads, mfmas
    e("s_waitcnt lgkmcnt(0)")
    consumer(e, "gc", P, 16 - TAIL, stampn=3, drain=True, flush=(TAIL == 0))
    def out_ops(Ln, temps):
        ops = []
        for b in range(4):
            d = temps[b % len(temps)]
            for h in range(2):
                u = 2*Ln + h
                c0, c1 = ACC + 16*(2*u) + 4*b, ACC + 16*(2*u+1) + 4*b
                ops += [f"v_cvt_pk_bf16_f32 v{d+4*h}, v{c0}, v{c0+1}", f"v_cvt_pk_bf16_f32 v{d+4*h+1}, v{c0+2}, v{c0+3}",
                        f"v_cvt_pk_bf16_f32 v{d+4*h+2}, v{c1}, v{c1+1}", f"v_cvt_pk_bf16_f32 v{d+4*h+3}, v{c1+2}, v{c1+3}"]
            ops += [f"v_mov_b32 v{d+8+j}, v{d+j}" for j in range(4)]
            ops += [f"v_mov_b32_dpp v{d+j}, v{d+4+j} row_ror:8 row_mask:0xf bank_mask:0xc" for j in range(4)]
            ops += [f"v_mov_b32_dpp v{d+4+j}, v{d+8+j} row_ror:8 row_mask:0xf bank_mask:0x3" for j in range(4)]
            ops += [f"buffer_store_dwordx4 {vr(d,4)}, v14, s[16:19], s{44+b} offen offset:{Ln*128} {OUTAUX}",
                    f"buffer_store_dwordx4 {vr(d+4,4)}, v15, s[16:19], s{44+b} offen offset:{Ln*128} {OUTAUX}"]
        return ops
    if TAIL:
        for t in range(1, TAIL):
            for x in next_slot(): e(x)
            e(f"v_add_u32 v{8+2*t}, s33, v16\nv_add_u32 v{9+2*t}, s33, v17")
        seq = [(g, t, ks) for g in range(2) for t in range(TAIL) for ks in range(2)]
        def hreads(Fb, g, t, ks):
            out = []
            for k in range(4):
                out.append(f"ds_read_b128 {vr(Fb+16+4*k,4)}, v{9+2*t} offset:{ks*UNIT + k*1024}")
                out.append(f"ds_read_b128 {vr(Fb+4*k,4)}, v{8+2*t} offset:{ks*8192 + (4*g+k)*1024}")
            return out
        def hmfmas(Fb, g):
            return [f"v_mfma_f32_16x16x32_bf16 {vr(ACC+16*(4*g+a)+4*b,4)}, {vr(Fb+4*a,4)}, {vr(Fb+16+4*b,4)}, {vr(ACC+16*(4*g+a)+4*b,4)}"
                    for a, b in snake(4, 4)]
        pend = P.mfmas(P.F1)
        fill = out_ops(0, [P.F0 + 32, P.F1 + 32])
        for n, (g, t, ks) in enumerate(seq + [(None, None, None)]):
            Fb = P.F0 if n % 2 == 0 else P.F1
            rd = hreads(Fb, g, t, ks) if g is not None else []
            usefill = n >= 2*TAIL + 1
            k0 = 0
            if g == 0 and ks == 0:
                for m in pend[:PREB]: e(m)
                e("s_barrier")
                k0 = PREB
                e(rd.pop(0))
            for k, m in enumerate(pend[k0:]):
                e(m)
                c = 0
                if rd: e(rd.pop(0)); c += 1
                if usefill and (n > 2*TAIL + 1 or k >= 4):
                    while fill and c < TFILL:
                        e(fill.pop(0)); c += 1
            if g is not None:
                e("s_waitcnt lgkmcnt(0)")
                pend = hmfmas(Fb, g)
        stamp(e, 5)
        for x in fill: e(x)
        e("s_nop 7")
        for x in out_ops(1, [P.F0, P.F0 + 12, P.F1, P.F1 + 12]): e(x)
    else:
        stamp(e, 5)
        e("s_nop 7")
        for Ln in range(2):
            for x in out_ops(Ln, [P.F0 + 48*Ln + 12*k for k in range(4)]): e(x)
    stamp_flush(e, "cons")
    e("s_endpgm")

PPRIO = 0
CPRIO = 0
def main_producer(e):
    if PPRIO: e(f"s_setprio {PPRIO}")
    if TRACE: e("v_mov_b32 v40, 0\nv_mov_b32 v41, 0\nv_mov_b32 v42, 0\nv_mov_b32 v43, 0")
    e("s_sub_u32 s30, s25, 4\ns_lshl_b32 s31, s30, 10\ns_lshl_b32 s32, s30, 12")
    e("s_lshl_b32 s27, s23, 8")
    t_voff(e, "F", F*2, "s27", 8)
    e("v_lshlrev_b32 v5, 4, v2\nv_add_u32 v9, s32, v5")
    e(f"s_mul_i32 s28, s22, {112*8192}")
    e(f"s_and_b32 s29, s20, 1\ns_mul_i32 s29, s29, {XRM}")
    e("s_lshl_b32 s53, s23, 1")
    def prep(own=None, e=e):
        if own is None:
            chunk_of_pos(e, "s36", "s24", "s37", "s38", "s39", 54, LEAD)
            e("s_xor_b32 s38, s37, s29\ns_cmp_lt_u32 s37, 48\ns_cselect_b32 s37, s38, s37")
            e("s_cmp_ge_u32 s37, s53\ns_cselect_b32 s38, 2, 0\ns_add_u32 s37, s37, s38")
        else:
            e(f"s_add_u32 s37, s53, {own}")
        e(f"s_mul_i32 s45, s37, {64*F*2}")
        e("s_lshl_b32 s46, s37, 14\ns_add_u32 s46, s46, s28")
    TL, FL = t_loads(8, 8, "s45", 0, F*2), f_loads(9, 12, "s46", 1)
    AL = (TL + FL) if AORD == "VA" else (FL + TL)
    def adv():
        for x in next_slot(): e(x)
        e("s_add_u32 s36, s36, 1")
    def m0f(): return ["s_add_u32 s43, s33, s32", f"s_add_u32 m0, s43, {UNIT}"]
    def loopA(label, limit):
        if not FAST:
            e(f"{label}:")
            prep()
            e("s_waitcnt vmcnt(8)\ns_barrier")
            emit(e, AL); adv()
            e(f"s_cmp_lt_u32 s36, {limit}\ns_cbranch_scc1 {label}")
            return
        prep()
        for x in m0f(): e(x)
        e(f"{label}:")
        e("s_waitcnt vmcnt(8)\ns_barrier")
        if TRACE: e("s_memtime s[96:97]\ns_memrealtime s[98:99]")
        r = Rec(); prep(e=r)
        mul, rest, s46 = r.L[-3], r.L[:-3], r.L[-2:]
        Fg = [[g[-1]] for g in FL]
        Tg = [[f"s_add_u32 m0, s44, {i*4096}", f"s_add_u32 s45, s45, {16*F*2}" if i else "s_nop 0", TL[i][-1]] for i in range(4)]
        body = split_fill(["s_add_u32 s36, s36, 1"] + next_slot() + rest, 5)
        fills = [[mul, "s_add_u32 s44, s33, s31"]] + body + [s46, m0f() + [f"s_cmp_lt_u32 s36, {limit}"]]
        if TRACE: fills[5] = fills[5] + ["s_waitcnt lgkmcnt(0)", "s_mov_b32 m0, s36", "s_nop 3", "v_writelane_b32 v40, s96, m0", "v_writelane_b32 v41, s98, m0"]
        fill_loads(e, Fg + Tg, fills)
        e(f"s_cbranch_scc1 {label}")
    make_tag(e)
    for o in range(2):
        prep(o); emit(e, TL)
        for x in next_slot(): e(x)
    e("s_mov_b32 s36, 0")
    prep(); emit(e, TL)
    lane_flag_addr(e, 13, 28)
    e(f"s_mul_i32 s34, s22, {28*128}")
    e("s_lshl_b32 s26, s23, 7\ns_add_u32 s26, s26, s34")
    e("s_waitcnt vmcnt(12)")
    e("s_barrier")
    stamp(e, 2)
    e("s_cmp_lg_u32 s30, 0\ns_cbranch_scc1 L_pa_nf")
    flag_store(e, "s26")
    e("L_pa_nf:")
    e("s_waitcnt vmcnt(8)\ns_barrier")
    flag_read(e, 13, "s34")
    e("s_waitcnt vmcnt(0)\ns_barrier")
    flag_wait_all(e, "fwq", 13, "s34", preloaded=True)
    stamp(e, 1)
    emit(e, FL); adv()
    prep()
    emit(e, AL); adv()
    e(f"v_min_u32 v13, 15, v2\nv_lshlrev_b32 v14, 7, v13")
    e(f"s_lshl_b32 s26, s23, 10\ns_add_u32 s26, s26, {FL_WV}\ns_lshl_b32 s27, s22, 10\ns_add_u32 s27, s27, {FL_XR - 1024}")
    e("v_mov_b32 v3, s26\nv_mov_b32 v4, s27\nv_cmp_gt_u32 vcc, 8, v13\ns_nop 1\nv_cndmask_b32 v3, v4, v3, vcc\nv_add_u32 v13, v14, v3")
    e("s_lshl_b32 s54, s22, 7\ns_add_u32 s54, s54, s26")
    srd(e, 16, P_WS, WS_XR, SZ_XR)
    loopA("L_ga_ptop", 50)
    e("s_lshl_b32 s55, s22, 19\ns_lshl_b32 s58, s23, 18\ns_and_b32 s59, s23, 3\ns_lshl_b32 s27, s22, 1")
    e("s_mov_b32 s52, 0\ns_mov_b32 s34, 0")
    def prepc(own=None, pos="s36"):
        if own is None:
            chunk_of_pos(e, pos, "s59", "s37", "s38", "s39", 14, LEADC)
            if HALF:
                e("s_add_u32 s37, s37, 2\ns_add_u32 s38, s37, s27\ns_and_b32 s38, s38, 7\ns_xor_b32 s37, s37, s27\ns_and_b32 s37, s37, 8\ns_or_b32 s37, s37, s38")
            else:
                e("s_add_u32 s37, s37, s27\ns_add_u32 s37, s37, 2\ns_and_b32 s37, s37, 15")
        else:
            e(f"s_add_u32 s37, s27, {own}")
        e("s_lshl_b32 s45, s37, 14\ns_add_u32 s45, s45, s58")
        e("s_lshl_b32 s46, s37, 15\ns_add_u32 s46, s46, s55\ns_add_u32 s47, s46, 16384")
    WL, X0, X1 = f_loads(9, 12, "s45", 0), f_loads(9, 16, "s46", 1), f_loads(9, 16, "s47", 2)
    def need(tag, xr_only=False):
        e("s_lshr_b32 s38, s37, 1")
        e(f"s_lshl_b32 s38, {0x100 if xr_only else 0x101}, s38")
        e("s_andn2_b32 s39, s38, s52")
        e(f"s_cbranch_scc0 L_{tag}_ok")
        if PIPE:
            def chk(r):
                e(f"v_cmp_eq_u64 vcc, s[4:5], v[{r}:{r+1}]")
                e("s_nop 1\ns_mov_b32 s52, vcc_lo")
                e("s_andn2_b32 s39, s38, s52")
                e(f"s_cbranch_scc0 L_{tag}_ok")
            poll_pipe(e, tag, 13, "s34", chk)
            e(f"L_{tag}_ok:")
            return
        e(f"s_mov_b32 s35, {SPIN}")
        e(f"L_{tag}_rd:")
        flag_read(e, 13, "s34")
        e("s_waitcnt vmcnt(0)")
        flag_mask(e)
        e("s_nop 1\ns_mov_b32 s52, vcc_lo")
        e("s_andn2_b32 s39, s38, s52")
        e(f"s_cbranch_scc0 L_{tag}_ok")
        e(f"s_sleep {PSLEEP}")
        e("s_sub_u32 s35, s35, 1\ns_cmp_lg_u32 s35, 0")
        e(f"s_cbranch_scc1 L_{tag}_rd")
        e(f"L_{tag}_ok:")
    prep()
    e("s_waitcnt vmcnt(8)\ns_barrier")
    flag_read(e, 13, "s34")
    emit(e, AL); adv()
    for k in range(3):
        prep()
        e(f"s_waitcnt vmcnt({8 if k == 0 else 12})\ns_barrier")
        if k == 0:
            flag_mask(e)
            e("s_nop 1\ns_mov_b32 s52, vcc_lo")
        emit(e, AL)
        if k < 2: prepc(k)
        else: prepc(None, "s34")
        need(f"fx{k}", True)
        emit(e, X1); adv()
    srd(e, 12, P_WS, WS_WV, SZ_WQ)
    stamp(e, 3)
    prepc(0)
    e("s_waitcnt vmcnt(12)\ns_barrier")
    emit(e, X0)
    for x in next_slot(): e(x)
    prepc(1)
    e("s_waitcnt vmcnt(4)\ns_barrier")
    emit(e, X0)
    for x in next_slot(): e(x)
    e("s_mov_b32 s36, 0")
    prepc()
    e("s_waitcnt vmcnt(4)\ns_barrier")
    emit(e, X0)
    e("s_waitcnt vmcnt(4)\ns_barrier")
    e("s_cmp_lg_u32 s30, 0\ns_cbranch_scc1 L_pc_nf")
    flag_store(e, "s54")
    e("L_pc_nf:")
    need("fw0")
    stamp(e, 5)
    emit(e, WL); adv()
    prepc()
    need("fw1")
    emit(e, WL + X0 + X1); adv()
    e("L_gc_ptop:")
    prepc()
    e("s_waitcnt vmcnt(12)\ns_barrier")
    need("fw2")
    if CPF & 4:
        e("s_xor_b32 s26, s36, 11\ns_or_b32 s26, s26, s30\ns_cmp_lg_u32 s26, 0\ns_cbranch_scc1 L_nct3")
        code_touch(e, (0,))
        e("L_nct3:")
    emit(e, WL + X0 + X1); adv()
    e("s_cmp_lt_u32 s36, 14\ns_cbranch_scc1 L_gc_ptop")
    e("s_waitcnt vmcnt(12)\ns_barrier\ns_waitcnt vmcnt(0)\ns_barrier")
    e("s_or_b32 s26, s2, s30\ns_cmp_lg_u32 s26, 0\ns_cbranch_scc1 L_pc_end")
    lane_flag_addr(e, 13, 64)
    e(f"s_mov_b32 s34, {FL_XR}")
    flag_wait_all(e, "fall", 13, "s34")
    e(f"s_mov_b32 s26, {FL_E}")
    flag_store(e, "s26")
    e("L_pc_end:")
    trace_dump(e)
    stamp_flush(e, "prod")
    e("s_endpgm")

FAKEB = 0
PFDELAY = 0
def spare(e):
    srd(e, 8, P_U, 0, D*D*2)
    srd(e, 12, P_X, 0, S*D*2)
    srd(e, 16, P_WS, WS_XR, SZ_XR)
    if HALF:
        e("s_mov_b32 s22, s20\ns_sub_u32 s24, s21, 28\ns_and_b32 s23, s22, 4\ns_or_b32 s23, s23, s24")
    else:
        e("s_mov_b32 s22, s20\ns_sub_u32 s24, s21, 28\ns_add_u32 s23, s22, s24\ns_and_b32 s23, s23, 7")
    e("s_mov_b32 s53, 0")
    e("s_cmp_ge_u32 s25, 4\ns_cbranch_scc1 L_pb")
    if CPF & 1:
        e("s_cmp_lg_u32 s25, 0\ns_cbranch_scc1 L_nct1")
        code_touch(e)
        e("L_nct1:")
    e("s_lshr_b32 s30, s25, 1\ns_and_b32 s31, s25, 1")
    t_addr(e, "R", "s31", 16)
    e("v_lshrrev_b32 v5, 1, v4\nv_xor_b32 v5, v5, v3\nv_lshlrev_b32 v5, 4, v5")
    e(f"s_lshl_b32 s26, s30, 14\ns_add_u32 s26, s26, {UNIT}")
    e("v_lshlrev_b32 v6, 7, v4\nv_add3_u32 v20, v5, v6, s26\nv_xor_b32 v21, 64, v20")
    P = Phase(); P.F0, P.F1 = ACC + 128, ACC + 176
    P.addr = [(8+q, 16+q) for q in range(4)] + [(12, 20), (13, 21)]
    def reads(Fb, ks):
        out = []
        for a in range(4):
            for t in range(2):
                out.append(f"ds_read_b64_tr_b16 {vr(Fb+32+4*a+2*t,2)}, v{8+a} offset:{ks*8192 + t*1024}")
            for h in range(2):
                out.append(f"ds_read_b128 {vr(Fb+4*(2*a+h),4)}, v{12+ks} offset:{(2*a+h)*2048}")
        return out
    def mfmas(Fb):
        return [f"v_mfma_f32_16x16x32_bf16 {vr(ACC+16*a+4*b,4)}, {vr(Fb+32+4*b,4)}, {vr(Fb+4*a,4)}, {vr(ACC+16*a+4*b,4)}"
                for a, b in snake(8, 4)]
    P.reads, P.mfmas = reads, mfmas
    stamp(e, 1)
    e("L_bl:")
    for n in range(128): e(f"v_mov_b32 v{ACC+n}, 0")
    consumer(e, "gb", P, 16, drain=True)
    e("s_lshl_b32 s40, s22, 5\ns_lshl_b32 s41, s23, 2\ns_add_u32 s40, s40, s41\ns_lshl_b32 s41, s31, 1\ns_add_u32 s40, s40, s41")
    e("s_lshl_b32 s40, s40, 14\ns_lshl_b32 s41, s30, 13\ns_add_u32 s40, s40, s41")
    e("s_add_u32 s41, s40, 4096\ns_add_u32 s42, s40, 16384\ns_add_u32 s43, s40, 20480")
    e("v_lshlrev_b32 v3, 4, v2")
    n = 0
    for u in range(2):
        for a in range(8):
            d = P.F0 + 4*n; n += 1
            pack_pair(e, d, ACC + 16*a + 4*(2*u), ACC + 16*a + 4*(2*u+1))
            e(f"buffer_store_dwordx4 {vr(d,4)}, v3, s[16:19], s{40+2*u+(a>>2)} offen offset:{(a&3)*1024} {STAUX}")
    e("s_xor_b32 s23, s23, 4\ns_add_u32 s53, s53, 1\ns_cmp_lt_u32 s53, 2\ns_cbranch_scc1 L_bl")
    stamp(e, 2)
    e("s_waitcnt vmcnt(0)\ns_barrier")
    stamp_flush(e, "bcons")
    e("s_endpgm")
    e("L_pb:")
    if PPRIO: e(f"s_setprio {PPRIO}")
    e("s_sub_u32 s30, s25, 4\ns_lshl_b32 s31, s30, 10\ns_lshl_b32 s32, s30, 12")
    t_voff(e, "R", 2048, None, 8)
    e("s_and_b32 s26, s30, 1\ns_lshl_b32 s26, s26, 2")
    e("v_or_b32 v5, s26, v3\nv_and_b32 v6, 7, v2\nv_xor_b32 v5, v5, v6\nv_lshlrev_b32 v5, 4, v5")
    e("s_lshl_b32 s26, s30, 3")
    e("v_lshrrev_b32 v6, 3, v2\nv_add_u32 v6, s26, v6\nv_lshlrev_b32 v6, 11, v6")
    e("v_add_u32 v9, v5, v6")
    def prep():
        e("s_and_b32 s34, s36, 15")
        chunk_of_pos(e, "s34", "s24", "s37", "s38", "s39", 16, LEAD)
        if BROT: e("s_lshl_b32 s38, s20, 2\ns_add_u32 s37, s37, s38\ns_and_b32 s37, s37, 15")
        e(f"s_lshr_b32 s38, s36, 4\ns_lshl_b32 s38, s38, 2\ns_xor_b32 s38, s38, s23\ns_lshl_b32 s38, s38, 8\ns_lshl_b32 s45, s37, 17\ns_add_u32 s45, s45, s38")
        e(f"s_lshl_b32 s38, s22, 19\ns_lshl_b32 s46, s37, 7\ns_add_u32 s46, s46, s38")
    xl = []
    for u in range(2):
        for i in range(4):
            g = [f"s_add_u32 m0, s44, {(1+u)*UNIT + i*4096}"]
            g += [f"s_add_u32 s46, s46, {32*2048}" if (u or i) else "s_nop 0"]
            g.append("buffer_load_dwordx4 v9, s[12:15], s46 offen lds")
            xl.append(g)
    LD = t_loads(8, 8, "s45", 0, 2048) + xl
    def adv():
        for x in next_slot(): e(x)
        e("s_add_u32 s36, s36, 1")
    e(f"s_lshl_b32 s27, s22, 10\ns_lshl_b32 s26, s23, 7\ns_add_u32 s27, s27, s26\ns_add_u32 s27, s27, {FL_XR}")
    e("s_mov_b32 s36, 0")
    for _ in range(2):
        prep(); emit(e, LD); adv()
    make_tag(e)
    e("L_gb_ptop:")
    prep()
    e("s_waitcnt vmcnt(12)\ns_barrier")
    e("s_xor_b32 s26, s36, 19\ns_or_b32 s26, s26, s30\ns_cmp_lg_u32 s26, 0\ns_cbranch_scc1 L_pb_nf")
    flag_store(e, "s27")
    e("L_pb_nf:")
    if CPF & 2:
        e("s_xor_b32 s26, s36, 26\ns_or_b32 s26, s26, s30\ns_cmp_lg_u32 s26, 0\ns_cbranch_scc1 L_nct2")
        code_touch(e)
        e("L_nct2:")
    emit(e, LD); adv()
    e("s_cmp_lt_u32 s36, 32\ns_cbranch_scc1 L_gb_ptop")
    e("s_waitcnt vmcnt(12)\ns_barrier\ns_waitcnt vmcnt(0)\ns_barrier")
    e("s_barrier")
    e("s_cmp_lg_u32 s30, 0\ns_cbranch_scc1 L_pb_end")
    e("s_xor_b32 s27, s27, 512")
    flag_store(e, "s27")
    e("L_pb_end:")
    stamp_flush(e)
    e("s_endpgm")

def kernel(e):
    e(f".globl {NAME}\n.p2align 8\n.type {NAME},@function\n{NAME}:")
    if STAMP:
        for n in range(1, 8): e(f"s_mov_b64 s[{80+2*n}:{81+2*n}], 0")
    stamp(e, 0)
    e("s_load_dwordx16 s[60:75], s[0:1], 0")
    e("s_load_dwordx2 s[56:57], s[0:1], 64")
    e("s_cmp_ge_u32 s2, 256\ns_cbranch_scc1 L_end")
    e("s_and_b32 s20, s2, 7\ns_lshr_b32 s21, s2, 3")
    e("v_lshrrev_b32 v1, 6, v0\nv_and_b32 v2, 63, v0\ns_nop 0\nv_readfirstlane_b32 s25, v1")
    e("s_and_b32 s22, s20, 1\ns_lshl_b32 s22, s22, 2\ns_and_b32 s23, s21, 3\ns_add_u32 s22, s22, s23")
    e("s_lshr_b32 s23, s20, 1\ns_mul_i32 s23, s23, 7\ns_lshr_b32 s24, s21, 2\ns_add_u32 s23, s23, s24")
    e("s_add_u32 s24, s22, s23\ns_and_b32 s24, s24, 3")
    e("s_mov_b32 s33, 0")
    e(f"s_mov_b32 s26, {WS_FL + FL_E}")
    e("s_waitcnt lgkmcnt(0)")
    e("s_load_dwordx2 s[6:7], s[56:57], s26")
    srd(e, 48, P_WS, WS_FL, FL_BYTES)
    if CPF & 8:
        e("s_cmp_lg_u32 s25, 7\ns_cbranch_scc1 L_nct4")
        code_touch(e)
        e("L_nct4:")
    e("s_cmp_ge_u32 s21, 28\ns_cbranch_scc1 L_spare")
    dequant(e)
    e("s_cmp_ge_u32 s25, 4\ns_cbranch_scc1 L_mainp")
    main_consumer(e)
    e("L_mainp:")
    main_producer(e)
    e("L_spare:")
    spare(e)
    e("L_end:")
    e("s_endpgm")
    e("L_code_end:")
    e(f'.section .rodata,"a"\n.p2align 6\n.amdhsa_kernel {NAME}')
    e(f".amdhsa_next_free_vgpr 256\n.amdhsa_next_free_sgpr 102\n.amdhsa_accum_offset 256")
    e(".amdhsa_group_segment_fixed_size 0\n.amdhsa_kernarg_size 72\n.amdhsa_user_sgpr_count 2")
    e(".amdhsa_user_sgpr_kernarg_segment_ptr 1\n.amdhsa_system_sgpr_workgroup_id_x 1")
    e(".amdhsa_float_denorm_mode_32 3")
    e(".end_amdhsa_kernel")

HEADER = open("standalone__weight_only_int_quip__prompt.s.ref").read().split("; Override")[0]
ASLIST = False
def generate():
    e = Asm()
    out = HEADER
    if ASLIST:
        out += f"; @launch kernel={NAME} grid=(256,1,1) block=(512,1,1) lds={LDS_BYTES}\n"
    else:
        out += f"; @launch grid=(256,1,1) block=(512,1,1) lds={LDS_BYTES}\n"
    e('.amdgcn_target "amdgcn-amd-amdhsa--gfx950"\n.text')
    kernel(e)
    return out + e.text()

if __name__ == "__main__":
    args = [a for a in sys.argv[1:] if not a.startswith("-")]
    for a in sys.argv[1:]:
        if a.startswith("-"):
            k, v = a[1:].split("=", 1)
            globals()[k] = eval(v)
    path = args[0] if args else "standalone__weight_only_int_quip__prompt.s"
    open(path, "w").write(generate())
    print("wrote", path)
```

```python
import sys, re

S, D, F = 2048, 1024, 3584
WS_WQ, WS_WV, WS_XR, WS_FL, WS_ST = 0, 8 << 20, 16 << 20, 24 << 20, 64 << 20
SZ_WQ, SZ_XR = D * F * 2, S * D * 2
FL_WQ, FL_WV, FL_XR, FL_PX, FL_E = 0, 224 * 128, 448 * 128, 512 * 128, 736 * 128
FL_BYTES = 737 * 128
WS_PX = 32 << 20
TS = 6
XD = 2
EARLY = True
XL = 1

NAME = "standalone__weight_only_int_quip__prompt_kernel"

NOMFMA = NOREAD = NOLOAD = False
STAMP = False
STAUX = "sc1"
OUTAUX = "sc1"
QAUX = ""
SKEW = True
LEAD = 2
NTOUCH = 0
XUT = 0
UNIT = 16384
SLOT = 3 * UNIT
LDS_BYTES = 3 * SLOT
PREB = 2
SALU_PER = 1
SPIN = 1 << 17
PSLEEP = 2
ACC = 28
TAIL = 3
DQAT = 4
TOFF = 4
DQSPREAD = 4
DQFIRST = False
DQCLS = True
CHK2 = 13
SEG = True
PLAN = {3: (0,), 4: (1,), 5: (2,), 6: (3,)}
DQ0 = 1
BROT = True
HALF = True
LEADC = 2
TFILL = 2
XRM = 4
AORD = "AV"

TRACE = False
class Asm:
    tr = False
    def __init__(self):
        self.L = []
    def __call__(self, s):
        for line in s.split("\n"):
            line = line.strip()
            if NOMFMA and line.startswith("v_mfma"): continue
            if NOREAD and line.startswith("ds_read"): continue
            if NOLOAD and line.startswith("buffer_load") and line.endswith("lds"): continue
            if TRACE and self.tr and line == "s_barrier":
                self.L += ["    s_waitcnt lgkmcnt(0)", "    s_mov_b32 m0, s100", "    s_add_u32 s100, s100, 1", "    s_nop 2",
                           "    v_writelane_b32 v40, s96, m0", "    v_writelane_b32 v41, s98, m0", "    s_barrier",
                           "    s_memtime s[96:97]", "    s_memrealtime s[98:99]"]
                continue
            if line:
                self.L.append(("    " if not line.endswith(":") and not line.startswith(".") else "") + line)
    def text(self):
        return "\n".join(self.L) + "\n"

def vr(b, n=1):
    return f"v{b}" if n == 1 else f"v[{b}:{b+n-1}]"

P_X, P_QW, P_SC, P_ZR, P_U, P_V, P_OUT, P_WS = 60, 62, 64, 66, 68, 70, 72, 56
def srd(e, d, base, add, nbytes):
    if add:
        e(f"s_add_u32 s{d}, s{base}, {add}\ns_addc_u32 s{d+1}, s{base+1}, 0")
    else:
        e(f"s_mov_b32 s{d}, s{base}\ns_mov_b32 s{d+1}, s{base+1}")
    e(f"s_mov_b32 s{d+2}, {nbytes}\ns_mov_b32 s{d+3}, 0x20000")

DIAG = ""
def stamp(e, n, diag=""):
    if n in (3, 5) and diag != DIAG: return
    if STAMP:
        e(f"s_memrealtime s[{80+2*n}:{81+2*n}]")
        if n in (1, 2):
            e(f"s_memtime s[{90+2*n}:{91+2*n}]")
DBGSTAMP = False
ECHO = None
def stamp_flush(e, role=""):
    if not STAMP:
        return
    e("s_waitcnt lgkmcnt(0) vmcnt(0)")
    stamp(e, 4)
    e("s_waitcnt lgkmcnt(0)")
    if ECHO:
        if role == "cons":
            a_, b_, mult = ECHO
            e("s_or_b32 s26, s2, s25\ns_cmp_lg_u32 s26, 0\ns_cbranch_scc1 L_echo_end")
            e(f"s_sub_u32 s26, s{80+2*b_}, s{80+2*a_}\ns_mul_i32 s26, s26, {mult}\ns_add_u32 s26, s26, 6000")
            e("L_echo:")
            e("s_memrealtime s[28:29]\ns_waitcnt lgkmcnt(0)")
            e("s_sub_u32 s27, s28, s80\ns_cmp_lt_u32 s27, s26\ns_cbranch_scc1 L_echo")
            e("L_echo_end:")
        return
    if DBGSTAMP:
        srd(e, 76, 74, 0, 256)
        e("v_mov_b32 v4, 0\ns_mov_b64 exec, 1")
        sel = {"cons": [(0, 0, 1), (1, 1, 1), (1, 2, 0), (2, 3, 1), (2, 4, 0), (3, 5, 1), (3, 6, 0), (5, 7, 1), (5, 8, 0), (4, 9, 0), (0, 15, 0)],
               "prod": [(2, 10, 0), (1, 11, 0), (3, 12, 0)], "bcons": [(2, 13, 1), (2, 14, 0)]}.get(role, [])
        for k, (st, w, inv) in enumerate(sel):
            e(f"v_mov_b32 v{8+k}, s{80+2*st}")
            if inv: e(f"v_not_b32 v{8+k}, v{8+k}")
            e(f"buffer_atomic_umax v{8+k}, v4, s[76:79], 0 offen offset:{4*w}")
        return
    srd(e, 76, P_WS, WS_ST, 1 << 20)
    e(f"s_lshl_b32 s75, s2, 3\ns_add_u32 s75, s75, s25\ns_lshl_b32 s75, s75, 6")
    for n in range(16):
        e(f"v_mov_b32 v{8+n}, s{80+n}")
    e("v_mov_b32 v4, 0")
    e("s_mov_b64 exec, 1")
    for n in range(4):
        e(f"buffer_store_dwordx4 v[{8+4*n}:{11+4*n}], v4, s[76:79], s75 offen offset:{16*n}")

def chunk_of_pos(e, spos, scls, sdst, st1, st2, nch, lead, sxor=None):
    if not SKEW:
        e(f"s_mov_b32 {sdst}, {spos}")
        return
    e(f"s_sub_u32 {st1}, {spos}, {scls}")
    e(f"s_and_b32 {st1}, {st1}, 3")
    e(f"s_cmp_le_u32 {st1}, {lead}")
    e(f"s_cselect_b32 {st2}, -1, 0")
    e(f"s_cmp_eq_u32 {st1}, 0")
    e(f"s_cselect_b32 {st2}, {lead}, {st2}")
    e(f"s_cmp_lt_u32 {spos}, {scls}")
    e(f"s_cselect_b32 {st2}, 0, {st2}")
    e(f"s_sub_u32 {st1}, {spos}, {st1}")
    e(f"s_cmp_ge_i32 {st1}, {nch-3}")
    e(f"s_cselect_b32 {st2}, 0, {st2}")
    e(f"s_add_u32 {sdst}, {spos}, {st2}")
    if sxor:
        e(f"s_xor_b32 {sdst}, {sdst}, {sxor}")

def interleave(e, mfmas, others, per=1, lead=0):
    reads = [x for x in others if x.startswith("ds_")]
    salu = [x for x in others if x.startswith("s_")]
    valu = [x for x in others if x.startswith("v_")]
    def ready(x):
        ops = [t.strip(",") for t in x.split()[1:]]
        dst, srcs = ops[0], ops[1:]
        if any(re.search(rf", {dst}( |$)", r) for r in reads): return False
        if any(y.split()[1].strip(",") in srcs for y in salu): return False
        return True
    for _ in range(lead):
        if reads: e(reads.pop(0))
    for k, m in enumerate(mfmas):
        e(m)
        c = 0
        for _ in range(per):
            if reads: e(reads.pop(0)); c += 1
        while c < 2 and valu and ready(valu[0]):
            e(valu.pop(0)); c += 1
        for _ in range(SALU_PER if c else SALU_PER + 1):
            if salu: e(salu.pop(0))
    for x in reads + salu + valu:
        e(x)

def pack_pair(e, dst, c0, c1):
    e(f"v_cvt_pk_bf16_f32 v{dst}, v{c0}, v{c0+1}")
    e(f"v_cvt_pk_bf16_f32 v{dst+1}, v{c0+2}, v{c0+3}")
    e(f"v_cvt_pk_bf16_f32 v{dst+2}, v{c1}, v{c1+1}")
    e(f"v_cvt_pk_bf16_f32 v{dst+3}, v{c1+2}, v{c1+3}")

def next_slot(s="s33"):
    return [f"s_add_u32 {s}, {s}, {SLOT}", f"s_cmp_eq_u32 {s}, {3*SLOT}", f"s_cselect_b32 {s}, 0, {s}"]

class Phase:
    pass

def zero(e, base, n):
    for k in range(0, n, 2): e(f"v_mov_b64 {vr(base+k,2)}, 0")
def mix(e, mf, rd, fill, lead=0, skip=0, cap=2, most=999):
    rd = list(rd)
    for _ in range(lead):
        if rd: e(rd.pop(0))
    for k, m in enumerate(mf):
        e(m)
        c = 0
        if rd: e(rd.pop(0)); c += 1
        while fill and c < cap and k >= skip and most > 0:
            e(fill.pop(0)); c += 1; most -= 1
    for x in rd: e(x)
def consumer(e, tag, P, nst, stampn=None, drain=False, flush=True, pend=None, fill=None, pre=None, post=None):
    def upd():
        return [f"v_add_u32 v{c}, s33, v{b}" for (c, b) in P.addr]
    m0, m1 = P.mfmas(P.F0), P.mfmas(P.F1)
    if pend is None:
        for x in upd(): e(x)
        e("s_barrier")
        if stampn is not None: stamp(e, stampn)
        for r in P.reads(P.F0, 0): e(r)
    else:
        for m in pend[:PREB]: e(m)
        e("s_barrier")
        if fill and EARLY:
            fill = list(fill)
            mix(e, pend[PREB:], P.reads(P.F0, 0), fill, lead=1, skip=12 - PREB, cap=4, most=15)
        else:
            interleave(e, pend[PREB:], P.reads(P.F0, 0), lead=1)
    if fill:
        fill = list(fill)
        for k in range(2):
            e("s_waitcnt lgkmcnt(0)")
            for x in next_slot(): e(x)
            if EARLY: mix(e, m0, P.reads(P.F1, 1), fill, skip=(2 if k == 0 else 0), cap=(3 if k == 0 else 2))
            else: mix(e, m0, P.reads(P.F1, 1), fill, skip=(5 if k == 0 else 0))
            for x in upd(): e(x)
            e("s_waitcnt vmcnt(0) lgkmcnt(0)" if k + 1 == XD else "s_waitcnt lgkmcnt(0)")
            for m in m1[:PREB]: e(m)
            e("s_barrier")
            mix(e, m1[PREB:], P.reads(P.F0, 0), fill, lead=1)
        for x in fill: e(x)
        stamp(e, 3, "b")
        nst -= 2
    e(f"s_mov_b32 s36, {nst}")
    e(f"s_branch L_{tag}_mid")
    for nm, hk in (("pre", pre), ("post", post)):
        if hk:
            e(f"L_{tag}_{nm}:")
            if nm == "pre": stamp(e, 5, "b")
            if nm == "post": stamp(e, 5, "c")
            for x in hk[1]: e(x)
            if nm == "pre": stamp(e, 3, "c")
            if nm == "post": stamp(e, 3, "d")
            e(f"s_branch L_{tag}_{nm}b")
    e(f"L_{tag}_top:")
    for k, m in enumerate(m1[:PREB]):
        e(m)
        if k == 0 and pre:
            e(f"s_cmp_eq_u32 s36, {pre[0]}\ns_cbranch_scc1 L_{tag}_pre\nL_{tag}_preb:")
    if post: e(f"s_cmp_eq_u32 s36, {post[0]}")
    e("s_barrier")
    if post: e(f"s_cbranch_scc1 L_{tag}_post\nL_{tag}_postb:")
    interleave(e, m1[PREB:], P.reads(P.F0, 0), lead=1)
    e(f"L_{tag}_mid:")
    e("s_waitcnt lgkmcnt(0)")
    tail = next_slot() + ["s_sub_u32 s36, s36, 1", "s_cmp_lg_u32 s36, 0"] + upd()
    interleave(e, m0, P.reads(P.F1, 1) + tail)
    e("s_waitcnt vmcnt(0) lgkmcnt(0)" if drain else "s_waitcnt lgkmcnt(0)")
    e(f"s_cbranch_scc1 L_{tag}_top")
    if flush:
        for m in m1: e(m)
    return m1

FAST = True
class Rec:
    def __init__(self): self.L = []
    def __call__(self, s): self.L += [x.strip() for x in s.split("\n") if x.strip()]
def fill_loads(e, groups, fills):
    for g, f in zip(groups, fills):
        for x in g + f: e(x)
def split_fill(ins, n):
    out, per = [], -(-len(ins) // n)
    ins = list(ins)
    for k in range(n):
        run = ins[:per]; ins = ins[per:]
        while ins and ins[0].split()[0] in ("s_cselect_b32", "s_addc_u32"):
            run.append(ins.pop(0))
        out.append(run)
    out[-1] += ins
    return out
def emit(e, groups):
    for g in groups:
        for x in g: e(x)

def snake(na, nb):
    return [(a, (b if a % 2 == 0 else nb - 1 - b)) for a in range(na) for b in range(nb)]

def t_addr(e, kind, swt, dst):
    e("v_lshrrev_b32 v3, 4, v2\nv_and_b32 v4, 15, v2\nv_lshrrev_b32 v5, 2, v4\nv_and_b32 v6, 3, v4")
    e(f"v_lshlrev_b32 v7, {2 if kind == 'F' else 3}, v3\nv_add_u32 v7, v7, v5\nv_lshlrev_b32 v7, 8, v7")
    e("v_lshlrev_b32 v6, 3, v6\nv_add_u32 v7, v7, v6")
    e("v_and_b32 v6, 1, v3\nv_lshlrev_b32 v6, 2, v6\nv_or_b32 v6, v6, v5")
    e(f"s_lshl_b32 s26, {swt}, 2")
    e("v_xor_b32 v6, s26, v6")
    for q in range(4):
        e(f"v_xor_b32 v5, {q}, v6\nv_lshlrev_b32 v5, 5, v5\nv_add_u32 v{dst+q}, v7, v5")

def t_voff(e, kind, trow, scol, dst):
    e("v_lshrrev_b32 v3, 4, v2\nv_and_b32 v4, 15, v2")
    if kind == "F":
        e("s_and_b32 s26, s30, 1\ns_lshl_b32 s26, s26, 2")
    else:
        e("s_and_b32 s26, s30, 2\ns_lshl_b32 s26, s26, 1")
    e("v_or_b32 v5, s26, v3\nv_lshlrev_b32 v5, 1, v5\nv_xor_b32 v5, v5, v4\nv_lshlrev_b32 v5, 4, v5")
    e("s_lshl_b32 s26, s30, 2")
    e(f"v_add_u32 v6, s26, v3\nv_mul_u32_u24 v6, {trow}, v6")
    e(f"v_add_u32 v5, v5, v6")
    if scol: e(f"v_add_u32 v{dst}, {scol}, v5")
    else: e(f"v_mov_b32 v{dst}, v5")

def t_loads(vreg, srdn, soff, unit, trow):
    out = []
    for i in range(4):
        if i == 0:
            g = [f"s_add_u32 s44, s33, s31", f"s_add_u32 m0, s44, {unit*UNIT}", "s_nop 0"]
        else:
            g = [f"s_add_u32 m0, s44, {unit*UNIT + i*4096}", f"s_add_u32 {soff}, {soff}, {16*trow}"]
        g.append(f"buffer_load_dwordx4 v{vreg}, s[{srdn}:{srdn+3}], {soff} offen lds")
        out.append(g)
    return out

def f_loads(vreg, srdn, soff, unit):
    out = []
    for i in range(4):
        g = ["s_add_u32 s3, s33, s32", f"s_add_u32 m0, s3, {unit*UNIT}", "s_nop 0"] if i == 0 else []
        g.append(f"buffer_load_dwordx4 v{vreg}, s[{srdn}:{srdn+3}], {soff} offen offset:{i*1024} lds")
        out.append(g)
    return out

CPF = 0
_ct = [0]
def code_touch(e, halves=(0, 1)):
    _ct[0] += 1
    lab = f"L_ct{_ct[0]}"
    e("s_getpc_b64 s[76:77]")
    e(f"{lab}:")
    e(f"s_sub_u32 s76, s76, {lab}-{NAME}\ns_subb_u32 s77, s77, 0")
    e(f"s_mov_b32 s78, L_code_end-{NAME}\ns_mov_b32 s79, 0x20000")
    e("v_lshlrev_b32 v27, 7, v2")
    for h in halves:
        e(f"s_movk_i32 s3, {h*8192}")
        e("buffer_load_dword v23, v27, s[76:79], s3 offen")

def make_tag(e):
    e("s_waitcnt lgkmcnt(0)")
    e("s_mul_i32 s4, s6, 0x9e3779b1\ns_add_u32 s4, s4, 0x7f4a7c15")
    e("s_mul_i32 s5, s7, 0x85ebca6b\ns_add_u32 s5, s5, 0xc2b2ae35")
def flag_store(e, soff, off=0):
    e("v_mov_b32 v24, s4\nv_mov_b32 v25, s5\nv_mov_b32 v26, 0")
    e("s_mov_b64 exec, 1")
    e(f"buffer_store_dwordx2 v[24:25], v26, s[48:51], {soff} offen offset:{off} sc1")
    e("s_mov_b64 exec, -1")
def flag_read(e, vaddr, soff):
    e(f"buffer_load_dwordx2 v[10:11], v{vaddr}, s[48:51], {soff} offen sc1")
def flag_mask(e):
    e("v_cmp_eq_u64 vcc, s[4:5], v[10:11]")
PIPE = 0
def poll_pipe(e, tag, vaddr, soff, check):
    e(f"s_mov_b32 s35, {SPIN}")
    for k in range(PIPE - 1):
        e(f"buffer_load_dwordx2 v[{32+2*k}:{33+2*k}], v{vaddr}, s[48:51], {soff} offen sc1")
        e(f"s_sleep {PSLEEP}")
    e(f"L_{tag}_rd:")
    for k in range(PIPE):
        kk = (k - 1) % PIPE
        e(f"buffer_load_dwordx2 v[{32+2*kk}:{33+2*kk}], v{vaddr}, s[48:51], {soff} offen sc1")
        e(f"s_waitcnt vmcnt({PIPE-1})")
        check(32 + 2*k)
        e(f"s_sleep {PSLEEP}")
    e("s_sub_u32 s35, s35, 1\ns_cmp_lg_u32 s35, 0")
    e(f"s_cbranch_scc1 L_{tag}_rd")
def flag_wait_all(e, tag, vaddr, soff, preloaded=False):
    if PIPE and preloaded:
        def chk(r):
            e(f"v_cmp_ne_u64 vcc, s[4:5], v[{r}:{r+1}]")
            e(f"s_cbranch_vccz L_{tag}_ok")
        chk(10)
        poll_pipe(e, tag, vaddr, soff, chk)
        e(f"L_{tag}_ok:")
        return
    e(f"s_mov_b32 s35, {SPIN}")
    if preloaded: e(f"s_branch L_{tag}_chk")
    e(f"L_{tag}_rd:")
    flag_read(e, vaddr, soff)
    e("s_waitcnt vmcnt(0)")
    e(f"L_{tag}_chk:")
    e("v_cmp_ne_u64 vcc, s[4:5], v[10:11]")
    e(f"s_cbranch_vccz L_{tag}_ok")
    e(f"s_sleep {PSLEEP}")
    e("s_sub_u32 s35, s35, 1\ns_cmp_lg_u32 s35, 0")
    e(f"s_cbranch_scc1 L_{tag}_rd")
    e(f"L_{tag}_ok:")
def lane_flag_addr(e, dst, n):
    e(f"v_min_u32 v{dst}, {n-1}, v2\nv_lshlrev_b32 v{dst}, 7, v{dst}")

DQ_Q, DQ_SC, DQ_ZR, DQ_T = 160, 192, 196, 200
def dq_lanes(e):
    srd(e, 40, P_QW, 0, D*F*4)
    srd(e, 76, P_SC, 0, 32*F*2)
    srd(e, 16, P_ZR, 0, 32*F*2)
    e("v_lshrrev_b32 v3, 3, v2\nv_and_b32 v4, 7, v2")
    e(f"v_mul_u32_u24 v5, {F*4}, v3\nv_lshlrev_b32 v6, 4, v4\nv_add_u32 v21, v5, v6")
    e("v_lshlrev_b32 v22, 3, v4")
def dq_lanes2(e):
    e("v_lshrrev_b32 v1, 2, v4\nv_lshlrev_b32 v1, 13, v1\nv_and_b32 v6, 3, v4\nv_lshlrev_b32 v6, 8, v6")
    e("v_lshlrev_b32 v3, 4, v3\nv_add3_u32 v1, v1, v6, v3")
    srd(e, 12, P_WS, WS_WQ, SZ_WQ)
def dq_loads(e, part):
    no = 2 if part == 0 else 4
    e(f"s_and_b32 s38, s20, 1\ns_mul_i32 s38, s38, 28\ns_lshr_b32 s35, s23, 1\ns_add_u32 s38, s38, s35")
    if part: e("s_add_u32 s38, s38, 14\ns_lshl_b32 s39, s30, 1")
    else: e("s_mov_b32 s39, s25")
    e("s_and_b32 s47, s22, 6\ns_and_b32 s35, s23, 1\ns_or_b32 s47, s47, s35")
    e("s_lshl_b32 s26, s47, 3\ns_add_u32 s26, s26, s39")
    e(f"s_mul_i32 s27, s26, {16*F*4}\ns_lshl_b32 s35, s38, 8\ns_add_u32 s27, s27, s35")
    e(f"s_lshr_b32 s26, s26, 1\ns_mul_i32 s26, s26, {F*2}\ns_lshl_b32 s35, s38, 7\ns_add_u32 s26, s26, s35")
    for o in range(no):
        for t in range(2):
            e(f"buffer_load_dwordx4 {vr(DQ_Q+8*o+4*t,4)}, v21, s[40:43], s27 offen offset:{t*128} {QAUX}")
        if o == 0:
            for t in range(2):
                e(f"buffer_load_dwordx2 {vr(DQ_SC+2*t,2)}, v22, s[76:79], s26 offen offset:{t*64}")
                e(f"buffer_load_dwordx2 {vr(DQ_ZR+2*t,2)}, v22, s[16:19], s26 offen offset:{t*64}")
        if o < no - 1: e(f"s_add_u32 s27, s27, {8*F*4}")
    e("s_mul_i32 s47, s47, 56\ns_add_u32 s47, s47, s38\ns_lshl_b32 s47, s47, 14\ns_lshl_b32 s39, s39, 10\ns_add_u32 s47, s47, s39")
def dq_math(e, part, extra=0, octs=None):
    no = 2 if part == 0 else 4
    Q, SC, ZR, T = DQ_Q, DQ_SC, DQ_ZR, DQ_T
    for o in (octs if octs is not None else range(no)):
        if octs is None: e(f"s_waitcnt vmcnt({2*(no-1-o) + o + extra})")
        if o == 0:
            for n in range(4):
                e(f"v_lshlrev_b32 v{T+2*n}, 16, v{SC+n}\nv_and_b32 v{T+2*n+1}, 0xffff0000, v{SC+n}")
                e(f"v_lshlrev_b32 v{T+8+2*n}, 16, v{ZR+n}\nv_and_b32 v{T+8+2*n+1}, 0xffff0000, v{ZR+n}")
        q = Q + 8*o
        for n in range(8): e(f"v_cvt_f32_i32 v{q+n}, v{q+n}")
        for n in range(8): e(f"v_cvt_pk_bf16_f32 v{q+n}, 0, v{q+n}")
        for n in range(8): e(f"v_sub_f32 v{q+n}, v{q+n}, v{T+8+n}")
        for n in range(8): e(f"v_cvt_pk_bf16_f32 v{q+n}, 0, v{q+n}")
        for n in range(8): e(f"v_mul_f32 v{q+n}, v{q+n}, v{T+n}")
        for n in range(4): e(f"v_cvt_pk_bf16_f32 v{q+n}, v{q+2*n}, v{q+2*n+1}")
        e(f"buffer_store_dwordx4 {vr(q,4)}, v1, s[12:15], s47 offen offset:{(o>>1)*1024 + (o&1)*128} {STAUX}")

def main_consumer(e):
    if CPRIO: e(f"s_setprio {CPRIO}")
    P = Phase(); P.F0, P.F1 = ACC + 128, ACC + 176
    e("s_lshr_b32 s30, s25, 1\ns_and_b32 s31, s25, 1")
    t_addr(e, "F", "s31", 16)
    e(f"s_lshl_b32 s26, s30, 12\ns_add_u32 s26, s26, {UNIT}\nv_lshlrev_b32 v5, 4, v2\nv_add_u32 v20, s26, v5")
    P.addr = [(8+q, 16+q) for q in range(4)] + [(12, 20)]
    def reads(Fb, ks):
        out = []
        for a in range(4):
            out.append(f"ds_read_b128 {vr(Fb+4*a,4)}, v12 offset:{ks*8192 + a*1024}")
            for t in range(2):
                out.append(f"ds_read_b64_tr_b16 {vr(Fb+16+4*a+2*t,2)}, v{8+a} offset:{ks*4096 + t*8192}")
        return out
    def mf_s(acc):
        return lambda Fb: [f"v_mfma_f32_16x16x32_bf16 {vr(acc+16*a+4*b,4)}, {vr(Fb+4*a,4)}, {vr(Fb+16+4*b,4)}, {vr(acc+16*a+4*b,4)}"
                           for a, b in snake(4, 4)]
    def reads_l(Fb, ks):
        return reads(Fb, ks) + [f"ds_read_b128 {vr(Fb+32+4*a,4)}, v12 offset:{UNIT + ks*8192 + a*1024}" for a in range(4)]
    def mf_l(Fb):
        out = []
        for a, b in snake(8, 4):
            acc, src = (ACC + 64 + 16*a, Fb + 4*a) if a < 4 else (ACC + 16*(a-4), Fb + 32 + 4*(a-4))
            out.append(f"v_mfma_f32_16x16x32_bf16 {vr(acc+4*b,4)}, {vr(src,4)}, {vr(Fb+16+4*b,4)}, {vr(acc+4*b,4)}")
        return out
    zero(e, ACC, 128)
    dq_math(e, 0)
    srd(e, 16, P_WS, WS_WV, SZ_WQ)
    srd(e, 8, P_WS, WS_PX, SZ_WQ)
    e("v_lshrrev_b32 v3, 4, v2\nv_and_b32 v4, 15, v2")
    e(f"s_lshl_b32 s44, s22, 8\ns_lshl_b32 s45, s25, 6\ns_add_u32 s44, s44, s45\ns_mul_i32 s44, s44, {F*2}")
    e("s_lshl_b32 s45, s23, 8\ns_add_u32 s44, s44, s45")
    for b in range(1, 4): e(f"s_add_u32 s{44+b}, s44, {16*b*F*2}")
    e(f"v_and_b32 v5, 7, v4\nv_mul_u32_u24 v5, {F*2}, v5")
    e("v_lshlrev_b32 v6, 4, v3\nv_and_b32 v7, 8, v4\nv_lshlrev_b32 v7, 3, v7\nv_add3_u32 v14, v5, v6, v7")
    e(f"v_add_u32 v15, {8*F*2}, v14")
    e("v_lshlrev_b32 v5, 2, v3\nv_sub_u32 v5, v4, v5")
    e("v_and_b32 v6, 1, v5\nv_lshlrev_b32 v6, 4, v6\nv_mov_b32 v7, 0x3f80\nv_lshlrev_b32 v6, v6, v7\nv_lshrrev_b32 v5, 1, v5")
    e("v_mov_b32 v7, 0\nv_cmp_eq_u32 vcc, 0, v5\ns_nop 1\nv_cndmask_b32 v24, v7, v6, vcc")
    e("v_cmp_eq_u32 vcc, 1, v5\ns_nop 1\nv_cndmask_b32 v25, v7, v6, vcc")
    e("v_lshlrev_b32 v13, 4, v2")
    e("s_lshl_b32 s52, s23, 3\ns_add_u32 s52, s52, s22\ns_lshl_b32 s52, s52, 15\ns_lshl_b32 s26, s25, 13\ns_add_u32 s52, s52, s26")
    e("s_add_u32 s53, s52, 4096\ns_xor_b32 s54, s52, 0x8000\ns_xor_b32 s55, s53, 0x8000")
    e("s_waitcnt vmcnt(0) lgkmcnt(0)\ns_barrier")
    e("v_mov_b64 v[22:23], 0\nv_mov_b64 v[26:27], 0")
    P.reads, P.mfmas = reads_l, mf_l
    pend = consumer(e, "gl", P, 28 - TS, stampn=1, flush=False)
    stamp(e, 3, "a")
    P.reads, P.mfmas = reads, mf_s(ACC + 64)
    pend = consumer(e, "ga", P, TS, flush=False, pend=pend)
    stamp(e, 5, "a")
    P.reads, P.mfmas = reads, mf_s(ACC)
    fill, RX = [], []
    for u in range(2):
        for b in range(4):
            c0, c1 = ACC + 64 + 16*(2*u) + 4*b, ACC + 64 + 16*(2*u+1) + 4*b
            fill += [f"v_cvt_pk_bf16_f32 v{c0}, v{c0}, v{c0+1}", f"v_cvt_pk_bf16_f32 v{c0+1}, v{c0+2}, v{c0+3}",
                     f"v_cvt_pk_bf16_f32 v{c0+2}, v{c1}, v{c1+1}", f"v_cvt_pk_bf16_f32 v{c0+3}, v{c1+2}, v{c1+3}",
                     f"buffer_store_dwordx4 {vr(c0,4)}, v13, s[8:11], s{54+u} offen offset:{b*1024} {STAUX}"]
            RX.append((P.F0 if u == 0 else P.F1) + 32 + 4*b)
    fill += [f"v_mov_b64 {vr(ACC+64+k,2)}, 0" for k in list(range(16, 32, 2)) + list(range(48, 64, 2)) + list(range(0, 16, 2)) + list(range(32, 48, 2))]
    rx = [f"buffer_load_dwordx4 {vr(RX[4*u+b],4)}, v13, s[8:11], s{52+u} offen offset:{b*1024} sc1" for u in range(2) for b in range(4)]
    consumer(e, "gs", P, TS, pend=pend, fill=fill, pre=(TS - XD, ["s_waitcnt vmcnt(0)"]) if XD > 2 else None, post=(XL, rx))
    stamp(e, 5, "d")
    e("s_waitcnt vmcnt(0)")
    for b in range(4):
        for u in range(2):
            for h in range(2):
                c = ACC + 16*(2*u+h) + 4*b
                e(f"v_mfma_f32_16x16x32_bf16 {vr(c,4)}, {vr(24-2*h,4)}, {vr(RX[4*u+b],4)}, {vr(c,4)}")
    stamp(e, 2)
    e("s_lshl_b32 s40, s23, 5\ns_lshl_b32 s41, s22, 2\ns_add_u32 s40, s40, s41\ns_lshl_b32 s41, s30, 1\ns_add_u32 s40, s40, s41")
    e("s_lshl_b32 s40, s40, 13\ns_lshl_b32 s42, s31, 12\ns_add_u32 s40, s40, s42")
    e("s_add_u32 s41, s40, 8192")
    e("s_mov_b32 s43, s33")
    for x in next_slot("s43"): e(x)
    e("s_cmp_eq_u32 s30, 0\ns_cselect_b32 s43, s33, s43\ns_add_u32 s43, s43, s42")
    e("v_and_b32 v3, 0x33, v2\nv_lshrrev_b32 v4, 1, v2\nv_and_b32 v4, 4, v4\nv_or_b32 v3, v3, v4\nv_lshlrev_b32 v3, 4, v3")
    e("v_and_b32 v4, 4, v2\nv_lshlrev_b32 v4, 8, v4\nv_or_b32 v3, v3, v4")
    e("v_add_u32 v4, s43, v3")
    n = 0
    for u in range(2):
        for b in range(4):
            d = P.F0 + 4*n; n += 1
            pack_pair(e, d, ACC + 16*(2*u) + 4*b, ACC + 16*(2*u+1) + 4*b)
            e(f"buffer_store_dwordx4 {vr(d,4)}, v3, s[16:19], s{40+u} offen offset:{(b>>1)*2048 + (b&1)*128} {STAUX}")
            e(f"ds_write_b128 v4, {vr(d,4)} offset:{u*8192 + (b>>1)*2048 + (b&1)*128}")
    zero(e, ACC, 64)
    srd(e, 16, P_OUT, 0, S*F*2)
    e("v_lshlrev_b32 v16, 4, v2")
    e(f"s_lshl_b32 s26, s25, 12\ns_add_u32 s26, s26, {UNIT}\nv_add_u32 v17, s26, v16")
    P.addr = [(9, 17), (8, 16)]
    def reads(Fb, ks):
        xr = [f"ds_read_b128 {vr(Fb+32+4*b,4)}, v9 offset:{ks*UNIT + b*1024}" for b in range(4)]
        wv = [f"ds_read_b128 {vr(Fb+4*a,4)}, v8 offset:{ks*8192 + a*1024}" for a in range(8)]
        return xr + wv
    def mfmas(Fb):
        return [f"v_mfma_f32_16x16x32_bf16 {vr(ACC+16*a+4*b,4)}, {vr(Fb+4*a,4)}, {vr(Fb+32+4*b,4)}, {vr(ACC+16*a+4*b,4)}"
                for a, b in snake(8, 4)]
    P.reads, P.mfmas = reads, mfmas
    e("s_waitcnt lgkmcnt(0)")
    consumer(e, "gc", P, 16 - TAIL, stampn=3, drain=True, flush=(TAIL == 0))
    def out_ops(Ln, temps):
        ops = []
        for b in range(4):
            d = temps[b % len(temps)]
            for h in range(2):
                u = 2*Ln + h
                c0, c1 = ACC + 16*(2*u) + 4*b, ACC + 16*(2*u+1) + 4*b
                ops += [f"v_cvt_pk_bf16_f32 v{d+4*h}, v{c0}, v{c0+1}", f"v_cvt_pk_bf16_f32 v{d+4*h+1}, v{c0+2}, v{c0+3}",
                        f"v_cvt_pk_bf16_f32 v{d+4*h+2}, v{c1}, v{c1+1}", f"v_cvt_pk_bf16_f32 v{d+4*h+3}, v{c1+2}, v{c1+3}"]
            ops += [f"v_mov_b32 v{d+8+j}, v{d+j}" for j in range(4)]
            ops += [f"v_mov_b32_dpp v{d+j}, v{d+4+j} row_ror:8 row_mask:0xf bank_mask:0xc" for j in range(4)]
            ops += [f"v_mov_b32_dpp v{d+4+j}, v{d+8+j} row_ror:8 row_mask:0xf bank_mask:0x3" for j in range(4)]
            ops += [f"buffer_store_dwordx4 {vr(d,4)}, v14, s[16:19], s{44+b} offen offset:{Ln*128} {OUTAUX}",
                    f"buffer_store_dwordx4 {vr(d+4,4)}, v15, s[16:19], s{44+b} offen offset:{Ln*128} {OUTAUX}"]
        return ops
    if TAIL:
        for t in range(1, TAIL):
            for x in next_slot(): e(x)
            e(f"v_add_u32 v{8+2*t}, s33, v16\nv_add_u32 v{9+2*t}, s33, v17")
        seq = [(g, t, ks) for g in range(2) for t in range(TAIL) for ks in range(2)]
        def hreads(Fb, g, t, ks):
            out = []
            for k in range(4):
                out.append(f"ds_read_b128 {vr(Fb+16+4*k,4)}, v{9+2*t} offset:{ks*UNIT + k*1024}")
                out.append(f"ds_read_b128 {vr(Fb+4*k,4)}, v{8+2*t} offset:{ks*8192 + (4*g+k)*1024}")
            return out
        def hmfmas(Fb, g):
            return [f"v_mfma_f32_16x16x32_bf16 {vr(ACC+16*(4*g+a)+4*b,4)}, {vr(Fb+4*a,4)}, {vr(Fb+16+4*b,4)}, {vr(ACC+16*(4*g+a)+4*b,4)}"
                    for a, b in snake(4, 4)]
        pend = P.mfmas(P.F1)
        fill = out_ops(0, [P.F0 + 32, P.F1 + 32])
        for n, (g, t, ks) in enumerate(seq + [(None, None, None)]):
            Fb = P.F0 if n % 2 == 0 else P.F1
            rd = hreads(Fb, g, t, ks) if g is not None else []
            usefill = n >= 2*TAIL + 1
            k0 = 0
            if g == 0 and ks == 0:
                for m in pend[:PREB]: e(m)
                e("s_barrier")
                k0 = PREB
                e(rd.pop(0))
            for k, m in enumerate(pend[k0:]):
                e(m)
                c = 0
                if rd: e(rd.pop(0)); c += 1
                if usefill and (n > 2*TAIL + 1 or k >= 4):
                    while fill and c < TFILL:
                        e(fill.pop(0)); c += 1
            if g is not None:
                e("s_waitcnt lgkmcnt(0)")
                pend = hmfmas(Fb, g)
        stamp(e, 5)
        for x in fill: e(x)
        e("s_nop 7")
        for x in out_ops(1, [P.F0, P.F0 + 12, P.F1, P.F1 + 12]): e(x)
    else:
        stamp(e, 5)
        e("s_nop 7")
        for Ln in range(2):
            for x in out_ops(Ln, [P.F0 + 48*Ln + 12*k for k in range(4)]): e(x)
    stamp_flush(e, "cons")
    e("s_endpgm")

PPRIO = 3
CPRIO = 0
def main_producer(e):
    if TRACE:
        e("v_mov_b32 v40, 0\nv_mov_b32 v41, 0\nv_mov_b32 v42, 0\nv_mov_b32 v43, 0\ns_mov_b32 s100, 0\ns_mov_b64 s[96:97], 0\ns_mov_b64 s[98:99], 0")
        e.tr = True
    if PPRIO: e(f"s_setprio {PPRIO}")
    e("s_sub_u32 s30, s25, 4\ns_lshl_b32 s31, s30, 10\ns_lshl_b32 s32, s30, 12")
    srd(e, 8, P_V, 0, F*F*2)
    e("s_lshl_b32 s27, s23, 8")
    t_voff(e, "F", F*2, "s27", 8)
    e("v_lshlrev_b32 v5, 4, v2\nv_add_u32 v9, s32, v5")
    e(f"s_mul_i32 s28, s22, {112*8192}\ns_xor_b32 s29, s22, 1\ns_mul_i32 s29, s29, {112*8192}")
    e("s_and_b32 s53, s20, 1\ns_mul_i32 s53, s53, 28")
    def prep():
        if SEG:
            e("s_cmp_ge_u32 s36, 14\ns_cselect_b32 s45, 14, 0\ns_sub_u32 s46, s36, s45")
            chunk_of_pos(e, "s46", "s24", "s37", "s38", "s39", 14, LEAD)
            e("s_add_u32 s37, s37, s53\ns_add_u32 s37, s37, s45")
        else:
            chunk_of_pos(e, "s36", "s24", "s37", "s38", "s39", 28, LEAD)
            e("s_add_u32 s37, s37, s53")
        e(f"s_mul_i32 s45, s37, {64*F*2}")
        e("s_lshl_b32 s38, s37, 14\ns_add_u32 s46, s38, s29\ns_add_u32 s58, s38, s28")
    TL = t_loads(8, 8, "s45", 0, F*2)
    FO, FI2, FI1 = f_loads(9, 12, "s46", 1), f_loads(9, 12, "s58", 2), f_loads(9, 12, "s58", 1)
    LL, S1, S2 = FO + FI2 + TL, FO + TL, FI1 + TL
    def adv():
        for x in next_slot(): e(x)
        e("s_add_u32 s36, s36, 1")
    lane_flag_addr(e, 13, 28)
    e(f"s_mul_i32 s34, s22, {28*128}")
    e("s_lshl_b32 s54, s23, 7\ns_add_u32 s54, s54, s34")
    dq_math(e, 0)
    make_tag(e)
    e("s_waitcnt vmcnt(0)")
    e("s_barrier")
    stamp(e, 2)
    e("s_cmp_lg_u32 s30, 0\ns_cbranch_scc1 L_pa_nf")
    flag_store(e, "s54")
    e("L_pa_nf:")
    e("s_mov_b32 s36, 0")
    for _ in range(2):
        prep(); emit(e, TL); adv()
    flag_read(e, 13, "s34")
    e(f"s_mov_b32 s36, 0\ns_mov_b32 s33, 0")
    prep()
    e("s_waitcnt vmcnt(0)")
    flag_wait_all(e, "fwq", 13, "s34", preloaded=True)
    stamp(e, 1)
    emit(e, FO + FI2); adv()
    prep(); emit(e, FO + FI2); adv()
    e("s_add_u32 s34, s34, 64")
    fl = [-1] * 8
    plan = PLAN
    nit = max(plan) + 3
    for it in range(nit):
        prep()
        keep = len(fl) - max([k + 1 for k, t in enumerate(fl) if t == it - 2 or (it == nit - 1 and t == "w")] + [0])
        e(f"s_waitcnt vmcnt({keep})\ns_barrier")
        if it == nit - 1:
            e("s_cmp_lg_u32 s30, 0\ns_cbranch_scc1 L_pa_nf2")
            flag_store(e, "s54", 64)
            e("L_pa_nf2:")
        emit(e, LL); adv(); fl += [it] * 12
        if it == DQ0:
            dq_loads(e, 1); fl += ["q"] * 12
        if it in plan:
            e(f"s_waitcnt vmcnt({len(fl) - max(k + 1 for k, t in enumerate(fl) if t == 'q')})")
            dq_math(e, 1, octs=plan[it]); fl += ["w"] * len(plan[it])
    assert 2 + nit <= CHK2
    if 2 + nit < CHK2:
        e("L_gl_ptop0:")
        prep()
        e("s_waitcnt vmcnt(12)\ns_barrier")
        emit(e, LL); adv()
        e(f"s_cmp_lt_u32 s36, {CHK2}\ns_cbranch_scc1 L_gl_ptop0")
    prep()
    e("s_waitcnt vmcnt(12)\ns_barrier")
    flag_read(e, 13, "s34")
    emit(e, LL); adv()
    prep()
    e("s_waitcnt vmcnt(12)\ns_barrier")
    flag_wait_all(e, "fwq2", 13, "s34", preloaded=True)
    emit(e, LL); adv()
    e(f"v_min_u32 v13, 15, v2\nv_lshlrev_b32 v14, 7, v13")
    e(f"s_lshl_b32 s26, s23, 10\ns_add_u32 s26, s26, {FL_WV}\ns_lshl_b32 s27, s22, 10\ns_add_u32 s27, s27, {FL_XR - 1024}")
    e("v_mov_b32 v3, s26\nv_mov_b32 v4, s27\nv_cmp_gt_u32 vcc, 8, v13\ns_nop 1\nv_cndmask_b32 v3, v4, v3, vcc\nv_add_u32 v13, v14, v3")
    e("s_lshl_b32 s54, s22, 7\ns_add_u32 s54, s54, s26")
    e(f"s_add_u32 s40, s54, {FL_PX - FL_WV}\ns_xor_b32 s41, s40, 128")
    e("v_mov_b32 v3, s40\nv_cmp_gt_u32 vcc, 16, v2\ns_nop 1\nv_cndmask_b32 v13, v3, v13, vcc")
    srd(e, 16, P_WS, WS_XR, SZ_XR)
    e("s_lshl_b32 s55, s22, 19\ns_lshl_b32 s42, s23, 18\ns_and_b32 s59, s23, 3\ns_lshl_b32 s27, s22, 1")
    e("s_mov_b32 s52, 0\ns_mov_b32 s34, 0")
    e("L_gl_ptop:")
    prep()
    e("s_waitcnt vmcnt(12)\ns_barrier")
    emit(e, LL); adv()
    e(f"s_cmp_lt_u32 s36, {28 - TS}\ns_cbranch_scc1 L_gl_ptop")
    prep()
    e("s_waitcnt vmcnt(12)\ns_barrier")
    emit(e, S1); adv()
    e("L_ga_ptop:")
    prep()
    e("s_waitcnt vmcnt(8)\ns_barrier")
    emit(e, S1); adv()
    e(f"s_cmp_lt_u32 s36, 28\ns_cbranch_scc1 L_ga_ptop")
    e(f"s_mov_b32 s36, {28 - TS}")
    def prepc(own=None, pos="s36"):
        if own is None:
            chunk_of_pos(e, pos, "s59", "s37", "s38", "s39", 14, LEADC)
            e("s_add_u32 s37, s37, 2\ns_and_b32 s38, s37, 6\ns_lshl_b32 s38, s38, 1\ns_add_u32 s38, s38, s27\ns_and_b32 s38, s38, 15")
            e("s_lshr_b32 s39, s37, 2\ns_and_b32 s39, s39, 2\ns_xor_b32 s38, s38, s39\ns_and_b32 s37, s37, 1\ns_or_b32 s37, s37, s38")
        else:
            e(f"s_add_u32 s37, s27, {own}")
        e("s_lshl_b32 s45, s37, 14\ns_add_u32 s45, s45, s42")
        e("s_lshl_b32 s46, s37, 15\ns_add_u32 s46, s46, s55\ns_add_u32 s47, s46, 16384")
    WL, X0, X1 = f_loads(9, 12, "s45", 0), f_loads(9, 16, "s46", 1), f_loads(9, 16, "s47", 2)
    def need(tag, xr_only=False, px=False):
        if px: e("s_mov_b32 s38, 0x10000")
        else: e(f"s_lshr_b32 s38, s37, 1\ns_lshl_b32 s38, {0x100 if xr_only else 0x101}, s38")
        e("s_andn2_b32 s39, s38, s52")
        e(f"s_cbranch_scc0 L_{tag}_ok")
        e(f"s_mov_b32 s35, {SPIN}")
        e(f"L_{tag}_rd:")
        flag_read(e, 13, "s34")
        e("s_waitcnt vmcnt(0)")
        flag_mask(e)
        e("s_nop 1\ns_mov_b32 s52, vcc_lo")
        e("s_andn2_b32 s39, s38, s52")
        e(f"s_cbranch_scc0 L_{tag}_ok")
        e(f"s_sleep {PSLEEP}")
        e("s_sub_u32 s35, s35, 1\ns_cmp_lg_u32 s35, 0")
        e(f"s_cbranch_scc1 L_{tag}_rd")
        e(f"L_{tag}_ok:")
    def pxflag(bar):
        if bar == XD:
            e("s_cmp_lg_u32 s30, 0\ns_cbranch_scc1 L_px_nf")
            flag_store(e, "s41")
            e("L_px_nf:")
    npl = min(TS - 4, XD + 2)
    e("L_gs_ptop:")
    prep()
    e("s_waitcnt vmcnt(8)\ns_barrier")
    emit(e, S2); adv()
    e(f"s_cmp_lt_u32 s36, {28 - TS + npl}\ns_cbranch_scc1 L_gs_ptop")
    prev = 8
    for t in range(npl, TS):
        prep()
        e(f"s_waitcnt vmcnt({prev})\ns_barrier")
        pxflag(t - 2)
        k = t - (TS - 3)
        if k == 0:
            flag_mask(e)
            e("s_nop 1\ns_mov_b32 s52, vcc_lo")
        if k == -1 or k == 2: flag_read(e, 13, "s34")
        emit(e, S2); prev = 8
        if k >= 0:
            if k < 2: prepc(k)
            else: prepc(None, "s34")
            need(f"fx{k}", True)
            emit(e, X1); prev = 12
        adv()
    srd(e, 12, P_WS, WS_WV, SZ_WQ)
    stamp(e, 3)
    prepc(0)
    def pxcheck():
        e("s_cmp_lg_u32 s30, 0\ns_cbranch_scc1 L_fpx_ok")
        flag_mask(e)
        e("s_nop 1\ns_mov_b32 s52, vcc_lo")
        need("fpx", px=True)
    e("s_waitcnt vmcnt(12)")
    if XL == 2: pxcheck()
    e("s_barrier")
    if XL == 1: flag_read(e, 13, "s34")
    emit(e, X0)
    for x in next_slot(): e(x)
    prepc(1)
    e("s_waitcnt vmcnt(4)")
    if XL == 1: pxcheck()
    e("s_barrier")
    emit(e, X0)
    for x in next_slot(): e(x)
    e("s_mov_b32 s36, 0")
    prepc()
    e("s_waitcnt vmcnt(4)\ns_barrier")
    emit(e, X0)
    e("s_waitcnt vmcnt(4)\ns_barrier")
    e("s_cmp_lg_u32 s30, 0\ns_cbranch_scc1 L_pc_nf")
    flag_store(e, "s54")
    e("L_pc_nf:")
    need("fw0")
    stamp(e, 5)
    emit(e, WL); adv()
    prepc()
    need("fw1")
    emit(e, WL + X0 + X1); adv()
    e("L_gc_ptop:")
    prepc()
    e("s_waitcnt vmcnt(12)\ns_barrier")
    need("fw2")
    if CPF & 4:
        e("s_xor_b32 s26, s36, 11\ns_or_b32 s26, s26, s30\ns_cmp_lg_u32 s26, 0\ns_cbranch_scc1 L_nct3")
        code_touch(e, (0,))
        e("L_nct3:")
    emit(e, WL + X0 + X1); adv()
    e("s_cmp_lt_u32 s36, 14\ns_cbranch_scc1 L_gc_ptop")
    e("s_waitcnt vmcnt(12)\ns_barrier\ns_waitcnt vmcnt(0)\ns_barrier")
    e("s_or_b32 s26, s2, s30\ns_cmp_lg_u32 s26, 0\ns_cbranch_scc1 L_pc_end")
    lane_flag_addr(e, 13, 64)
    e(f"s_mov_b32 s34, {FL_XR}")
    flag_wait_all(e, "fall", 13, "s34")
    e(f"s_mov_b32 s26, {FL_E}")
    flag_store(e, "s26")
    e("L_pc_end:")
    e.tr = False
    if TRACE:
        srd(e, 76, P_WS, WS_ST + (1 << 20), 1 << 22)
        e("s_lshl_b32 s75, s2, 3\ns_add_u32 s75, s75, s25\ns_lshl_b32 s75, s75, 10")
        e("v_lshlrev_b32 v4, 4, v2")
        e("buffer_store_dwordx4 v[40:43], v4, s[76:79], s75 offen")
    stamp_flush(e, "prod")
    e("s_endpgm")

FAKEB = 0
PFDELAY = 0
def spare(e):
    srd(e, 8, P_U, 0, D*D*2)
    srd(e, 12, P_X, 0, S*D*2)
    srd(e, 16, P_WS, WS_XR, SZ_XR)
    if HALF:
        e("s_mov_b32 s22, s20\ns_sub_u32 s24, s21, 28\ns_and_b32 s23, s22, 1\ns_lshl_b32 s26, s24, 1\ns_or_b32 s23, s23, s26")
    else:
        e("s_mov_b32 s22, s20\ns_sub_u32 s24, s21, 28\ns_add_u32 s23, s22, s24\ns_and_b32 s23, s23, 7")
    e("s_mov_b32 s53, 0")
    e("s_cmp_ge_u32 s25, 4\ns_cbranch_scc1 L_pb")
    if CPF & 1:
        e("s_cmp_lg_u32 s25, 0\ns_cbranch_scc1 L_nct1")
        code_touch(e)
        e("L_nct1:")
    e("s_lshr_b32 s30, s25, 1\ns_and_b32 s31, s25, 1")
    t_addr(e, "R", "s31", 16)
    e("v_lshrrev_b32 v5, 1, v4\nv_xor_b32 v5, v5, v3\nv_lshlrev_b32 v5, 4, v5")
    e(f"s_lshl_b32 s26, s30, 14\ns_add_u32 s26, s26, {UNIT}")
    e("v_lshlrev_b32 v6, 7, v4\nv_add3_u32 v20, v5, v6, s26\nv_xor_b32 v21, 64, v20")
    P = Phase(); P.F0, P.F1 = ACC + 128, ACC + 176
    P.addr = [(8+q, 16+q) for q in range(4)] + [(12, 20), (13, 21)]
    def reads(Fb, ks):
        out = []
        for a in range(4):
            for t in range(2):
                out.append(f"ds_read_b64_tr_b16 {vr(Fb+32+4*a+2*t,2)}, v{8+a} offset:{ks*8192 + t*1024}")
            for h in range(2):
                out.append(f"ds_read_b128 {vr(Fb+4*(2*a+h),4)}, v{12+ks} offset:{(2*a+h)*2048}")
        return out
    def mfmas(Fb):
        return [f"v_mfma_f32_16x16x32_bf16 {vr(ACC+16*a+4*b,4)}, {vr(Fb+32+4*b,4)}, {vr(Fb+4*a,4)}, {vr(ACC+16*a+4*b,4)}"
                for a, b in snake(8, 4)]
    P.reads, P.mfmas = reads, mfmas
    stamp(e, 1)
    e("L_bl:")
    zero(e, ACC, 128)
    consumer(e, "gb", P, 16, drain=True)
    e("s_lshl_b32 s40, s22, 5\ns_lshl_b32 s41, s23, 2\ns_add_u32 s40, s40, s41\ns_lshl_b32 s41, s31, 1\ns_add_u32 s40, s40, s41")
    e("s_lshl_b32 s40, s40, 14\ns_lshl_b32 s41, s30, 13\ns_add_u32 s40, s40, s41")
    e("s_add_u32 s41, s40, 4096\ns_add_u32 s42, s40, 16384\ns_add_u32 s43, s40, 20480")
    e("v_lshlrev_b32 v3, 4, v2")
    n = 0
    for u in range(2):
        for a in range(8):
            d = P.F0 + 4*n; n += 1
            pack_pair(e, d, ACC + 16*a + 4*(2*u), ACC + 16*a + 4*(2*u+1))
            e(f"buffer_store_dwordx4 {vr(d,4)}, v3, s[16:19], s{40+2*u+(a>>2)} offen offset:{(a&3)*1024} {STAUX}")
    e("s_xor_b32 s23, s23, 1\ns_add_u32 s53, s53, 1\ns_cmp_lt_u32 s53, 2\ns_cbranch_scc1 L_bl")
    stamp(e, 2)
    e("s_waitcnt vmcnt(0)\ns_barrier")
    stamp_flush(e, "bcons")
    e("s_endpgm")
    e("L_pb:")
    if PPRIO: e(f"s_setprio {PPRIO}")
    e("s_sub_u32 s30, s25, 4\ns_lshl_b32 s31, s30, 10\ns_lshl_b32 s32, s30, 12")
    t_voff(e, "R", 2048, None, 8)
    e("s_and_b32 s26, s30, 1\ns_lshl_b32 s26, s26, 2")
    e("v_or_b32 v5, s26, v3\nv_and_b32 v6, 7, v2\nv_xor_b32 v5, v5, v6\nv_lshlrev_b32 v5, 4, v5")
    e("s_lshl_b32 s26, s30, 3")
    e("v_lshrrev_b32 v6, 3, v2\nv_add_u32 v6, s26, v6\nv_lshlrev_b32 v6, 11, v6")
    e("v_add_u32 v9, v5, v6")
    def prep():
        e("s_and_b32 s34, s36, 15")
        chunk_of_pos(e, "s34", "s24", "s37", "s38", "s39", 16, LEAD)
        if BROT: e("s_lshl_b32 s38, s20, 1\ns_add_u32 s37, s37, s38\ns_and_b32 s37, s37, 15")
        e(f"s_lshr_b32 s38, s36, 4\ns_xor_b32 s38, s38, s23\ns_lshl_b32 s38, s38, 8\ns_lshl_b32 s45, s37, 17\ns_add_u32 s45, s45, s38")
        e(f"s_lshl_b32 s38, s22, 19\ns_lshl_b32 s46, s37, 7\ns_add_u32 s46, s46, s38")
    xl = []
    for u in range(2):
        for i in range(4):
            g = [f"s_add_u32 m0, s44, {(1+u)*UNIT + i*4096}"]
            g += [f"s_add_u32 s46, s46, {32*2048}" if (u or i) else "s_nop 0"]
            g.append("buffer_load_dwordx4 v9, s[12:15], s46 offen lds")
            xl.append(g)
    LD = t_loads(8, 8, "s45", 0, 2048) + xl
    def adv():
        for x in next_slot(): e(x)
        e("s_add_u32 s36, s36, 1")
    e(f"s_lshl_b32 s27, s22, 10\ns_lshl_b32 s26, s23, 7\ns_add_u32 s27, s27, s26\ns_add_u32 s27, s27, {FL_XR}")
    e("s_mov_b32 s36, 0")
    for _ in range(2):
        prep(); emit(e, LD); adv()
    make_tag(e)
    e("L_gb_ptop:")
    prep()
    e("s_waitcnt vmcnt(12)\ns_barrier")
    e("s_xor_b32 s26, s36, 19\ns_or_b32 s26, s26, s30\ns_cmp_lg_u32 s26, 0\ns_cbranch_scc1 L_pb_nf")
    flag_store(e, "s27")
    e("L_pb_nf:")
    if CPF & 2:
        e("s_xor_b32 s26, s36, 26\ns_or_b32 s26, s26, s30\ns_cmp_lg_u32 s26, 0\ns_cbranch_scc1 L_nct2")
        code_touch(e)
        e("L_nct2:")
    emit(e, LD); adv()
    e("s_cmp_lt_u32 s36, 32\ns_cbranch_scc1 L_gb_ptop")
    e("s_waitcnt vmcnt(12)\ns_barrier\ns_waitcnt vmcnt(0)\ns_barrier")
    e("s_barrier")
    e("s_cmp_lg_u32 s30, 0\ns_cbranch_scc1 L_pb_end")
    e("s_xor_b32 s27, s27, 128")
    flag_store(e, "s27")
    e("L_pb_end:")
    stamp_flush(e)
    e("s_endpgm")

def kernel(e):
    e(f".globl {NAME}\n.p2align 8\n.type {NAME},@function\n{NAME}:")
    if STAMP:
        for n in range(1, 8): e(f"s_mov_b64 s[{80+2*n}:{81+2*n}], 0")
    stamp(e, 0)
    e("s_load_dwordx16 s[60:75], s[0:1], 0")
    e("s_load_dwordx2 s[56:57], s[0:1], 64")
    e("s_cmp_ge_u32 s2, 256\ns_cbranch_scc1 L_end")
    e("s_and_b32 s20, s2, 7\ns_lshr_b32 s21, s2, 3")
    e("v_lshrrev_b32 v1, 6, v0\nv_and_b32 v2, 63, v0\ns_nop 0\nv_readfirstlane_b32 s25, v1")
    e("s_and_b32 s26, s21, 3\ns_lshl_b32 s22, s26, 1\ns_and_b32 s23, s20, 1\ns_add_u32 s22, s22, s23")
    e("s_lshr_b32 s23, s20, 1\ns_mul_i32 s23, s23, 7\ns_lshr_b32 s24, s21, 2\ns_add_u32 s23, s23, s24")
    e("s_add_u32 s24, s26, s23\ns_and_b32 s24, s24, 3")
    e("s_mov_b32 s33, 0")
    e(f"s_mov_b32 s26, {WS_FL + FL_E}")
    e("s_waitcnt lgkmcnt(0)")
    e("s_load_dwordx2 s[6:7], s[56:57], s26")
    srd(e, 48, P_WS, WS_FL, FL_BYTES)
    if CPF & 8:
        e("s_cmp_lg_u32 s25, 7\ns_cbranch_scc1 L_nct4")
        code_touch(e)
        e("L_nct4:")
    e("s_cmp_ge_u32 s21, 28\ns_cbranch_scc1 L_spare")
    dq_lanes(e)
    dq_loads(e, 0)
    dq_lanes2(e)
    e("s_cmp_ge_u32 s25, 4\ns_cbranch_scc1 L_mainp")
    main_consumer(e)
    e("L_mainp:")
    main_producer(e)
    e("L_spare:")
    spare(e)
    e("L_end:")
    e("s_endpgm")
    e("L_code_end:")
    e(f'.section .rodata,"a"\n.p2align 6\n.amdhsa_kernel {NAME}')
    e(f".amdhsa_next_free_vgpr 256\n.amdhsa_next_free_sgpr 102\n.amdhsa_accum_offset 256")
    e(".amdhsa_group_segment_fixed_size 0\n.amdhsa_kernarg_size 72\n.amdhsa_user_sgpr_count 2")
    e(".amdhsa_user_sgpr_kernarg_segment_ptr 1\n.amdhsa_system_sgpr_workgroup_id_x 1")
    e(".amdhsa_float_denorm_mode_32 3")
    e(".end_amdhsa_kernel")

HEADER = open("standalone__weight_only_int_quip__prompt.s.ref").read().split("; Override")[0]
ASLIST = False
def generate():
    e = Asm()
    out = HEADER
    if ASLIST:
        out += f"; @launch kernel={NAME} grid=(256,1,1) block=(512,1,1) lds={LDS_BYTES}\n"
    else:
        out += f"; @launch grid=(256,1,1) block=(512,1,1) lds={LDS_BYTES}\n"
    e('.amdgcn_target "amdgcn-amd-amdhsa--gfx950"\n.text')
    kernel(e)
    return out + e.text()

if __name__ == "__main__":
    args = [a for a in sys.argv[1:] if not a.startswith("-")]
    for a in sys.argv[1:]:
        if a.startswith("-"):
            k, v = a[1:].split("=", 1)
            globals()[k] = eval(v)
    path = args[0] if args else "standalone__weight_only_int_quip__prompt.s"
    open(path, "w").write(generate())
    print("wrote", path)
```

```python
import sys, re

S, D, F = 2048, 1024, 3584
WS_WQ, WS_WV, WS_XR, WS_FL, WS_ST = 0, 8 << 20, 16 << 20, 24 << 20, 64 << 20
SZ_WQ, SZ_XR = D * F * 2, S * D * 2
FL_WQ, FL_WV, FL_XR, FL_PX, FL_E = 0, 224 * 128, 448 * 128, 512 * 128, 736 * 128
FL_BYTES = 737 * 128
WS_PX = 32 << 20
TS = 6
XD = 2
EARLY = True
XL = 1

NAME = "standalone__weight_only_int_quip__prompt_kernel"

NOMFMA = NOREAD = NOLOAD = False
STAMP = False
STAUX = "sc1"
OUTAUX = "sc1"
QAUX = ""
SKEW = True
LEAD = 2
NTOUCH = 0
XUT = 0
UNIT = 16384
SLOT = 3 * UNIT
LDS_BYTES = 3 * SLOT
PREB = 2
SALU_PER = 1
SPIN = 1 << 17
PSLEEP = 2
ACC = 28
TAIL = 3
DQAT = 4
TOFF = 4
DQSPREAD = 4
DQFIRST = False
DQCLS = True
CHK2 = 13
SEG = True
LATEX = True
PLAN = {3: (0,), 4: (1,), 5: (2,), 6: (3,)}
DQ0 = 1
BROT = True
HALF = True
LEADC = 2
TFILL = 2
XRM = 4
AORD = "AV"

TRACE = False
class Asm:
    tr = False
    def __init__(self):
        self.L = []
    def __call__(self, s):
        for line in s.split("\n"):
            line = line.strip()
            if NOMFMA and line.startswith("v_mfma"): continue
            if NOREAD and line.startswith("ds_read"): continue
            if NOLOAD and line.startswith("buffer_load") and line.endswith("lds"): continue
            if TRACE and self.tr and line == "s_barrier":
                self.L += ["    s_waitcnt lgkmcnt(0)", "    s_mov_b32 m0, s100", "    s_add_u32 s100, s100, 1", "    s_nop 2",
                           "    v_writelane_b32 v40, s96, m0", "    v_writelane_b32 v41, s98, m0", "    s_barrier",
                           "    s_memtime s[96:97]", "    s_memrealtime s[98:99]"]
                continue
            if line:
                self.L.append(("    " if not line.endswith(":") and not line.startswith(".") else "") + line)
    def text(self):
        return "\n".join(self.L) + "\n"

def vr(b, n=1):
    return f"v{b}" if n == 1 else f"v[{b}:{b+n-1}]"

P_X, P_QW, P_SC, P_ZR, P_U, P_V, P_OUT, P_WS = 60, 62, 64, 66, 68, 70, 72, 56
def srd(e, d, base, add, nbytes):
    if add:
        e(f"s_add_u32 s{d}, s{base}, {add}\ns_addc_u32 s{d+1}, s{base+1}, 0")
    else:
        e(f"s_mov_b32 s{d}, s{base}\ns_mov_b32 s{d+1}, s{base+1}")
    e(f"s_mov_b32 s{d+2}, {nbytes}\ns_mov_b32 s{d+3}, 0x20000")

DIAG = ""
def stamp(e, n, diag=""):
    if n in (3, 5) and diag != DIAG: return
    if STAMP:
        e(f"s_memrealtime s[{80+2*n}:{81+2*n}]")
        if n in (1, 2):
            e(f"s_memtime s[{90+2*n}:{91+2*n}]")
DBGSTAMP = False
ECHO = None
def stamp_flush(e, role=""):
    if not STAMP:
        return
    e("s_waitcnt lgkmcnt(0) vmcnt(0)")
    stamp(e, 4)
    e("s_waitcnt lgkmcnt(0)")
    if ECHO:
        if role == "cons":
            a_, b_, mult = ECHO
            e("s_or_b32 s26, s2, s25\ns_cmp_lg_u32 s26, 0\ns_cbranch_scc1 L_echo_end")
            e(f"s_sub_u32 s26, s{80+2*b_}, s{80+2*a_}\ns_mul_i32 s26, s26, {mult}\ns_add_u32 s26, s26, 6000")
            e("L_echo:")
            e("s_memrealtime s[28:29]\ns_waitcnt lgkmcnt(0)")
            e("s_sub_u32 s27, s28, s80\ns_cmp_lt_u32 s27, s26\ns_cbranch_scc1 L_echo")
            e("L_echo_end:")
        return
    if DBGSTAMP:
        srd(e, 76, 74, 0, 256)
        e("v_mov_b32 v4, 0\ns_mov_b64 exec, 1")
        sel = {"cons": [(0, 0, 1), (1, 1, 1), (1, 2, 0), (2, 3, 1), (2, 4, 0), (3, 5, 1), (3, 6, 0), (5, 7, 1), (5, 8, 0), (4, 9, 0), (0, 15, 0)],
               "prod": [(2, 10, 0), (1, 11, 0), (3, 12, 0)], "bcons": [(2, 13, 1), (2, 14, 0)]}.get(role, [])
        for k, (st, w, inv) in enumerate(sel):
            e(f"v_mov_b32 v{8+k}, s{80+2*st}")
            if inv: e(f"v_not_b32 v{8+k}, v{8+k}")
            e(f"buffer_atomic_umax v{8+k}, v4, s[76:79], 0 offen offset:{4*w}")
        return
    srd(e, 76, P_WS, WS_ST, 1 << 20)
    e(f"s_lshl_b32 s75, s2, 3\ns_add_u32 s75, s75, s25\ns_lshl_b32 s75, s75, 6")
    for n in range(16):
        e(f"v_mov_b32 v{8+n}, s{80+n}")
    e("v_mov_b32 v4, 0")
    e("s_mov_b64 exec, 1")
    for n in range(4):
        e(f"buffer_store_dwordx4 v[{8+4*n}:{11+4*n}], v4, s[76:79], s75 offen offset:{16*n}")

def chunk_of_pos(e, spos, scls, sdst, st1, st2, nch, lead, sxor=None):
    if not SKEW:
        e(f"s_mov_b32 {sdst}, {spos}")
        return
    e(f"s_sub_u32 {st1}, {spos}, {scls}")
    e(f"s_and_b32 {st1}, {st1}, 3")
    e(f"s_cmp_le_u32 {st1}, {lead}")
    e(f"s_cselect_b32 {st2}, -1, 0")
    e(f"s_cmp_eq_u32 {st1}, 0")
    e(f"s_cselect_b32 {st2}, {lead}, {st2}")
    e(f"s_cmp_lt_u32 {spos}, {scls}")
    e(f"s_cselect_b32 {st2}, 0, {st2}")
    e(f"s_sub_u32 {st1}, {spos}, {st1}")
    e(f"s_cmp_ge_i32 {st1}, {nch-3}")
    e(f"s_cselect_b32 {st2}, 0, {st2}")
    e(f"s_add_u32 {sdst}, {spos}, {st2}")
    if sxor:
        e(f"s_xor_b32 {sdst}, {sdst}, {sxor}")

def interleave(e, mfmas, others, per=1, lead=0):
    reads = [x for x in others if x.startswith("ds_")]
    salu = [x for x in others if x.startswith("s_")]
    valu = [x for x in others if x.startswith("v_")]
    def ready(x):
        ops = [t.strip(",") for t in x.split()[1:]]
        dst, srcs = ops[0], ops[1:]
        if any(re.search(rf", {dst}( |$)", r) for r in reads): return False
        if any(y.split()[1].strip(",") in srcs for y in salu): return False
        return True
    for _ in range(lead):
        if reads: e(reads.pop(0))
    for k, m in enumerate(mfmas):
        e(m)
        c = 0
        for _ in range(per):
            if reads: e(reads.pop(0)); c += 1
        while c < 2 and valu and ready(valu[0]):
            e(valu.pop(0)); c += 1
        for _ in range(SALU_PER if c else SALU_PER + 1):
            if salu: e(salu.pop(0))
    for x in reads + salu + valu:
        e(x)

def pack_pair(e, dst, c0, c1):
    e(f"v_cvt_pk_bf16_f32 v{dst}, v{c0}, v{c0+1}")
    e(f"v_cvt_pk_bf16_f32 v{dst+1}, v{c0+2}, v{c0+3}")
    e(f"v_cvt_pk_bf16_f32 v{dst+2}, v{c1}, v{c1+1}")
    e(f"v_cvt_pk_bf16_f32 v{dst+3}, v{c1+2}, v{c1+3}")

def next_slot(s="s33"):
    return [f"s_add_u32 {s}, {s}, {SLOT}", f"s_cmp_eq_u32 {s}, {3*SLOT}", f"s_cselect_b32 {s}, 0, {s}"]

class Phase:
    pass

def zero(e, base, n):
    for k in range(0, n, 2): e(f"v_mov_b64 {vr(base+k,2)}, 0")
def mix(e, mf, rd, fill, lead=0, skip=0, cap=2, most=999):
    rd = list(rd)
    for _ in range(lead):
        if rd: e(rd.pop(0))
    for k, m in enumerate(mf):
        e(m)
        c = 0
        if rd: e(rd.pop(0)); c += 1
        while fill and c < cap and k >= skip and most > 0:
            e(fill.pop(0)); c += 1; most -= 1
    for x in rd: e(x)
def consumer(e, tag, P, nst, stampn=None, drain=False, flush=True, pend=None, fill=None, pre=None, post=None):
    def upd():
        return [f"v_add_u32 v{c}, s33, v{b}" for (c, b) in P.addr]
    m0, m1 = P.mfmas(P.F0), P.mfmas(P.F1)
    if pend is None:
        for x in upd(): e(x)
        e("s_barrier")
        if stampn is not None: stamp(e, stampn)
        for r in P.reads(P.F0, 0): e(r)
    else:
        for m in pend[:PREB]: e(m)
        e("s_barrier")
        if fill and EARLY:
            fill = list(fill)
            mix(e, pend[PREB:], P.reads(P.F0, 0), fill, lead=1, skip=12 - PREB, cap=4, most=15)
        else:
            interleave(e, pend[PREB:], P.reads(P.F0, 0), lead=1)
    if fill:
        fill = list(fill)
        for k in range(2):
            e("s_waitcnt lgkmcnt(0)")
            for x in next_slot(): e(x)
            if EARLY: mix(e, m0, P.reads(P.F1, 1), fill, skip=(2 if k == 0 else 0), cap=(3 if k == 0 else 2))
            else: mix(e, m0, P.reads(P.F1, 1), fill, skip=(5 if k == 0 else 0))
            for x in upd(): e(x)
            e("s_waitcnt vmcnt(0) lgkmcnt(0)" if k + 1 == XD else "s_waitcnt lgkmcnt(0)")
            for m in m1[:PREB]: e(m)
            e("s_barrier")
            mix(e, m1[PREB:], P.reads(P.F0, 0), fill, lead=1)
        for x in fill: e(x)
        stamp(e, 3, "b")
        nst -= 2
    e(f"s_mov_b32 s36, {nst}")
    e(f"s_branch L_{tag}_mid")
    for nm, hk in (("pre", pre), ("post", post)):
        if hk:
            e(f"L_{tag}_{nm}:")
            if nm == "pre": stamp(e, 5, "b")
            if nm == "post": stamp(e, 5, "c")
            for x in hk[1]: e(x)
            if nm == "pre": stamp(e, 3, "c")
            if nm == "post": stamp(e, 3, "d")
            e(f"s_branch L_{tag}_{nm}b")
    e(f"L_{tag}_top:")
    for k, m in enumerate(m1[:PREB]):
        e(m)
        if k == 0 and pre:
            e(f"s_cmp_eq_u32 s36, {pre[0]}\ns_cbranch_scc1 L_{tag}_pre\nL_{tag}_preb:")
    if post: e(f"s_cmp_eq_u32 s36, {post[0]}")
    e("s_barrier")
    if post: e(f"s_cbranch_scc1 L_{tag}_post\nL_{tag}_postb:")
    interleave(e, m1[PREB:], P.reads(P.F0, 0), lead=1)
    e(f"L_{tag}_mid:")
    e("s_waitcnt lgkmcnt(0)")
    tail = next_slot() + ["s_sub_u32 s36, s36, 1", "s_cmp_lg_u32 s36, 0"] + upd()
    interleave(e, m0, P.reads(P.F1, 1) + tail)
    e("s_waitcnt vmcnt(0) lgkmcnt(0)" if drain else "s_waitcnt lgkmcnt(0)")
    e(f"s_cbranch_scc1 L_{tag}_top")
    if flush:
        for m in m1: e(m)
    return m1

FAST = True
class Rec:
    def __init__(self): self.L = []
    def __call__(self, s): self.L += [x.strip() for x in s.split("\n") if x.strip()]
def fill_loads(e, groups, fills):
    for g, f in zip(groups, fills):
        for x in g + f: e(x)
def split_fill(ins, n):
    out, per = [], -(-len(ins) // n)
    ins = list(ins)
    for k in range(n):
        run = ins[:per]; ins = ins[per:]
        while ins and ins[0].split()[0] in ("s_cselect_b32", "s_addc_u32"):
            run.append(ins.pop(0))
        out.append(run)
    out[-1] += ins
    return out
def emit(e, groups):
    for g in groups:
        for x in g: e(x)

def snake(na, nb):
    return [(a, (b if a % 2 == 0 else nb - 1 - b)) for a in range(na) for b in range(nb)]

def t_addr(e, kind, swt, dst):
    e("v_lshrrev_b32 v3, 4, v2\nv_and_b32 v4, 15, v2\nv_lshrrev_b32 v5, 2, v4\nv_and_b32 v6, 3, v4")
    e(f"v_lshlrev_b32 v7, {2 if kind == 'F' else 3}, v3\nv_add_u32 v7, v7, v5\nv_lshlrev_b32 v7, 8, v7")
    e("v_lshlrev_b32 v6, 3, v6\nv_add_u32 v7, v7, v6")
    e("v_and_b32 v6, 1, v3\nv_lshlrev_b32 v6, 2, v6\nv_or_b32 v6, v6, v5")
    e(f"s_lshl_b32 s26, {swt}, 2")
    e("v_xor_b32 v6, s26, v6")
    for q in range(4):
        e(f"v_xor_b32 v5, {q}, v6\nv_lshlrev_b32 v5, 5, v5\nv_add_u32 v{dst+q}, v7, v5")

def t_voff(e, kind, trow, scol, dst):
    e("v_lshrrev_b32 v3, 4, v2\nv_and_b32 v4, 15, v2")
    if kind == "F":
        e("s_and_b32 s26, s30, 1\ns_lshl_b32 s26, s26, 2")
    else:
        e("s_and_b32 s26, s30, 2\ns_lshl_b32 s26, s26, 1")
    e("v_or_b32 v5, s26, v3\nv_lshlrev_b32 v5, 1, v5\nv_xor_b32 v5, v5, v4\nv_lshlrev_b32 v5, 4, v5")
    e("s_lshl_b32 s26, s30, 2")
    e(f"v_add_u32 v6, s26, v3\nv_mul_u32_u24 v6, {trow}, v6")
    e(f"v_add_u32 v5, v5, v6")
    if scol: e(f"v_add_u32 v{dst}, {scol}, v5")
    else: e(f"v_mov_b32 v{dst}, v5")

def t_loads(vreg, srdn, soff, unit, trow):
    out = []
    for i in range(4):
        if i == 0:
            g = [f"s_add_u32 s44, s33, s31", f"s_add_u32 m0, s44, {unit*UNIT}", "s_nop 0"]
        else:
            g = [f"s_add_u32 m0, s44, {unit*UNIT + i*4096}", f"s_add_u32 {soff}, {soff}, {16*trow}"]
        g.append(f"buffer_load_dwordx4 v{vreg}, s[{srdn}:{srdn+3}], {soff} offen lds")
        out.append(g)
    return out

def f_loads(vreg, srdn, soff, unit):
    out = []
    for i in range(4):
        g = ["s_add_u32 s3, s33, s32", f"s_add_u32 m0, s3, {unit*UNIT}", "s_nop 0"] if i == 0 else []
        g.append(f"buffer_load_dwordx4 v{vreg}, s[{srdn}:{srdn+3}], {soff} offen offset:{i*1024} lds")
        out.append(g)
    return out

CPF = 0
_ct = [0]
def code_touch(e, halves=(0, 1)):
    _ct[0] += 1
    lab = f"L_ct{_ct[0]}"
    e("s_getpc_b64 s[76:77]")
    e(f"{lab}:")
    e(f"s_sub_u32 s76, s76, {lab}-{NAME}\ns_subb_u32 s77, s77, 0")
    e(f"s_mov_b32 s78, L_code_end-{NAME}\ns_mov_b32 s79, 0x20000")
    e("v_lshlrev_b32 v27, 7, v2")
    for h in halves:
        e(f"s_movk_i32 s3, {h*8192}")
        e("buffer_load_dword v23, v27, s[76:79], s3 offen")

def make_tag(e):
    e("s_waitcnt lgkmcnt(0)")
    e("s_mul_i32 s4, s6, 0x9e3779b1\ns_add_u32 s4, s4, 0x7f4a7c15")
    e("s_mul_i32 s5, s7, 0x85ebca6b\ns_add_u32 s5, s5, 0xc2b2ae35")
def flag_store(e, soff, off=0):
    e("v_mov_b32 v24, s4\nv_mov_b32 v25, s5\nv_mov_b32 v26, 0")
    e("s_mov_b64 exec, 1")
    e(f"buffer_store_dwordx2 v[24:25], v26, s[48:51], {soff} offen offset:{off} sc1")
    e("s_mov_b64 exec, -1")
def flag_read(e, vaddr, soff):
    e(f"buffer_load_dwordx2 v[10:11], v{vaddr}, s[48:51], {soff} offen sc1")
def flag_mask(e):
    e("v_cmp_eq_u64 vcc, s[4:5], v[10:11]")
PIPE = 0
def poll_pipe(e, tag, vaddr, soff, check):
    e(f"s_mov_b32 s35, {SPIN}")
    for k in range(PIPE - 1):
        e(f"buffer_load_dwordx2 v[{32+2*k}:{33+2*k}], v{vaddr}, s[48:51], {soff} offen sc1")
        e(f"s_sleep {PSLEEP}")
    e(f"L_{tag}_rd:")
    for k in range(PIPE):
        kk = (k - 1) % PIPE
        e(f"buffer_load_dwordx2 v[{32+2*kk}:{33+2*kk}], v{vaddr}, s[48:51], {soff} offen sc1")
        e(f"s_waitcnt vmcnt({PIPE-1})")
        check(32 + 2*k)
        e(f"s_sleep {PSLEEP}")
    e("s_sub_u32 s35, s35, 1\ns_cmp_lg_u32 s35, 0")
    e(f"s_cbranch_scc1 L_{tag}_rd")
def flag_wait_all(e, tag, vaddr, soff, preloaded=False):
    if PIPE and preloaded:
        def chk(r):
            e(f"v_cmp_ne_u64 vcc, s[4:5], v[{r}:{r+1}]")
            e(f"s_cbranch_vccz L_{tag}_ok")
        chk(10)
        poll_pipe(e, tag, vaddr, soff, chk)
        e(f"L_{tag}_ok:")
        return
    e(f"s_mov_b32 s35, {SPIN}")
    if preloaded: e(f"s_branch L_{tag}_chk")
    e(f"L_{tag}_rd:")
    flag_read(e, vaddr, soff)
    e("s_waitcnt vmcnt(0)")
    e(f"L_{tag}_chk:")
    e("v_cmp_ne_u64 vcc, s[4:5], v[10:11]")
    e(f"s_cbranch_vccz L_{tag}_ok")
    e(f"s_sleep {PSLEEP}")
    e("s_sub_u32 s35, s35, 1\ns_cmp_lg_u32 s35, 0")
    e(f"s_cbranch_scc1 L_{tag}_rd")
    e(f"L_{tag}_ok:")
def lane_flag_addr(e, dst, n):
    e(f"v_min_u32 v{dst}, {n-1}, v2\nv_lshlrev_b32 v{dst}, 7, v{dst}")

DQ_Q, DQ_SC, DQ_ZR, DQ_T = 160, 192, 196, 200
def dq_lanes(e):
    srd(e, 40, P_QW, 0, D*F*4)
    srd(e, 76, P_SC, 0, 32*F*2)
    srd(e, 16, P_ZR, 0, 32*F*2)
    e("v_lshrrev_b32 v3, 3, v2\nv_and_b32 v4, 7, v2")
    e(f"v_mul_u32_u24 v5, {F*4}, v3\nv_lshlrev_b32 v6, 4, v4\nv_add_u32 v21, v5, v6")
    e("v_lshlrev_b32 v22, 3, v4")
def dq_lanes2(e):
    e("v_lshrrev_b32 v1, 2, v4\nv_lshlrev_b32 v1, 13, v1\nv_and_b32 v6, 3, v4\nv_lshlrev_b32 v6, 8, v6")
    e("v_lshlrev_b32 v3, 4, v3\nv_add3_u32 v1, v1, v6, v3")
    srd(e, 12, P_WS, WS_WQ, SZ_WQ)
def dq_loads(e, part):
    no = 2 if part == 0 else 4
    e(f"s_and_b32 s38, s20, 1\ns_mul_i32 s38, s38, 28\ns_lshr_b32 s35, s23, 1\ns_add_u32 s38, s38, s35")
    if part: e("s_add_u32 s38, s38, 14\ns_lshl_b32 s39, s30, 1")
    else: e("s_mov_b32 s39, s25")
    e("s_and_b32 s47, s22, 6\ns_and_b32 s35, s23, 1\ns_or_b32 s47, s47, s35")
    e("s_lshl_b32 s26, s47, 3\ns_add_u32 s26, s26, s39")
    e(f"s_mul_i32 s27, s26, {16*F*4}\ns_lshl_b32 s35, s38, 8\ns_add_u32 s27, s27, s35")
    e(f"s_lshr_b32 s26, s26, 1\ns_mul_i32 s26, s26, {F*2}\ns_lshl_b32 s35, s38, 7\ns_add_u32 s26, s26, s35")
    for o in range(no):
        for t in range(2):
            e(f"buffer_load_dwordx4 {vr(DQ_Q+8*o+4*t,4)}, v21, s[40:43], s27 offen offset:{t*128} {QAUX}")
        if o == 0:
            for t in range(2):
                e(f"buffer_load_dwordx2 {vr(DQ_SC+2*t,2)}, v22, s[76:79], s26 offen offset:{t*64}")
                e(f"buffer_load_dwordx2 {vr(DQ_ZR+2*t,2)}, v22, s[16:19], s26 offen offset:{t*64}")
        if o < no - 1: e(f"s_add_u32 s27, s27, {8*F*4}")
    e("s_mul_i32 s47, s47, 56\ns_add_u32 s47, s47, s38\ns_lshl_b32 s47, s47, 14\ns_lshl_b32 s39, s39, 10\ns_add_u32 s47, s47, s39")
def dq_math(e, part, extra=0, octs=None):
    no = 2 if part == 0 else 4
    Q, SC, ZR, T = DQ_Q, DQ_SC, DQ_ZR, DQ_T
    for o in (octs if octs is not None else range(no)):
        if octs is None: e(f"s_waitcnt vmcnt({2*(no-1-o) + o + extra})")
        if o == 0:
            for n in range(4):
                e(f"v_lshlrev_b32 v{T+2*n}, 16, v{SC+n}\nv_and_b32 v{T+2*n+1}, 0xffff0000, v{SC+n}")
                e(f"v_lshlrev_b32 v{T+8+2*n}, 16, v{ZR+n}\nv_and_b32 v{T+8+2*n+1}, 0xffff0000, v{ZR+n}")
        q = Q + 8*o
        for n in range(8): e(f"v_cvt_f32_i32 v{q+n}, v{q+n}")
        for n in range(8): e(f"v_cvt_pk_bf16_f32 v{q+n}, 0, v{q+n}")
        for n in range(8): e(f"v_sub_f32 v{q+n}, v{q+n}, v{T+8+n}")
        for n in range(8): e(f"v_cvt_pk_bf16_f32 v{q+n}, 0, v{q+n}")
        for n in range(8): e(f"v_mul_f32 v{q+n}, v{q+n}, v{T+n}")
        for n in range(4): e(f"v_cvt_pk_bf16_f32 v{q+n}, v{q+2*n}, v{q+2*n+1}")
        e(f"buffer_store_dwordx4 {vr(q,4)}, v1, s[12:15], s47 offen offset:{(o>>1)*1024 + (o&1)*128} {STAUX}")

def main_consumer(e):
    if CPRIO: e(f"s_setprio {CPRIO}")
    P = Phase(); P.F0, P.F1 = ACC + 128, ACC + 176
    e("s_lshr_b32 s30, s25, 1\ns_and_b32 s31, s25, 1")
    t_addr(e, "F", "s31", 16)
    e(f"s_lshl_b32 s26, s30, 12\ns_add_u32 s26, s26, {UNIT}\nv_lshlrev_b32 v5, 4, v2\nv_add_u32 v20, s26, v5")
    P.addr = [(8+q, 16+q) for q in range(4)] + [(12, 20)]
    def reads(Fb, ks):
        out = []
        for a in range(4):
            out.append(f"ds_read_b128 {vr(Fb+4*a,4)}, v12 offset:{ks*8192 + a*1024}")
            for t in range(2):
                out.append(f"ds_read_b64_tr_b16 {vr(Fb+16+4*a+2*t,2)}, v{8+a} offset:{ks*4096 + t*8192}")
        return out
    def mf_s(acc):
        return lambda Fb: [f"v_mfma_f32_16x16x32_bf16 {vr(acc+16*a+4*b,4)}, {vr(Fb+4*a,4)}, {vr(Fb+16+4*b,4)}, {vr(acc+16*a+4*b,4)}"
                           for a, b in snake(4, 4)]
    def reads_l(Fb, ks):
        return reads(Fb, ks) + [f"ds_read_b128 {vr(Fb+32+4*a,4)}, v12 offset:{UNIT + ks*8192 + a*1024}" for a in range(4)]
    def mf_l(Fb):
        out = []
        for a, b in snake(8, 4):
            acc, src = (ACC + 64 + 16*a, Fb + 4*a) if a < 4 else (ACC + 16*(a-4), Fb + 32 + 4*(a-4))
            out.append(f"v_mfma_f32_16x16x32_bf16 {vr(acc+4*b,4)}, {vr(src,4)}, {vr(Fb+16+4*b,4)}, {vr(acc+4*b,4)}")
        return out
    zero(e, ACC, 128)
    dq_math(e, 0)
    srd(e, 16, P_WS, WS_WV, SZ_WQ)
    srd(e, 8, P_WS, WS_PX, SZ_WQ)
    e("v_lshrrev_b32 v3, 4, v2\nv_and_b32 v4, 15, v2")
    e(f"s_lshl_b32 s44, s22, 8\ns_lshl_b32 s45, s25, 6\ns_add_u32 s44, s44, s45\ns_mul_i32 s44, s44, {F*2}")
    e("s_lshl_b32 s45, s23, 8\ns_add_u32 s44, s44, s45")
    for b in range(1, 4): e(f"s_add_u32 s{44+b}, s44, {16*b*F*2}")
    e(f"v_and_b32 v5, 7, v4\nv_mul_u32_u24 v5, {F*2}, v5")
    e("v_lshlrev_b32 v6, 4, v3\nv_and_b32 v7, 8, v4\nv_lshlrev_b32 v7, 3, v7\nv_add3_u32 v14, v5, v6, v7")
    e(f"v_add_u32 v15, {8*F*2}, v14")
    e("v_lshlrev_b32 v5, 2, v3\nv_sub_u32 v5, v4, v5")
    e("v_and_b32 v6, 1, v5\nv_lshlrev_b32 v6, 4, v6\nv_mov_b32 v7, 0x3f80\nv_lshlrev_b32 v6, v6, v7\nv_lshrrev_b32 v5, 1, v5")
    e("v_mov_b32 v7, 0\nv_cmp_eq_u32 vcc, 0, v5\ns_nop 1\nv_cndmask_b32 v24, v7, v6, vcc")
    e("v_cmp_eq_u32 vcc, 1, v5\ns_nop 1\nv_cndmask_b32 v25, v7, v6, vcc")
    e("v_lshlrev_b32 v13, 4, v2")
    e("s_lshl_b32 s52, s23, 3\ns_add_u32 s52, s52, s22\ns_lshl_b32 s52, s52, 15\ns_lshl_b32 s26, s25, 13\ns_add_u32 s52, s52, s26")
    e("s_add_u32 s53, s52, 4096\ns_xor_b32 s54, s52, 0x8000\ns_xor_b32 s55, s53, 0x8000")
    e("s_waitcnt vmcnt(0) lgkmcnt(0)\ns_barrier")
    e("v_mov_b64 v[22:23], 0\nv_mov_b64 v[26:27], 0")
    P.reads, P.mfmas = reads_l, mf_l
    pend = consumer(e, "gl", P, 28 - TS, stampn=1, flush=False)
    stamp(e, 3, "a")
    P.reads, P.mfmas = reads, mf_s(ACC + 64)
    pend = consumer(e, "ga", P, TS, flush=False, pend=pend)
    stamp(e, 5, "a")
    P.reads, P.mfmas = reads, mf_s(ACC)
    fill, RX = [], []
    for u in range(2):
        for b in range(4):
            c0, c1 = ACC + 64 + 16*(2*u) + 4*b, ACC + 64 + 16*(2*u+1) + 4*b
            fill += [f"v_cvt_pk_bf16_f32 v{c0}, v{c0}, v{c0+1}", f"v_cvt_pk_bf16_f32 v{c0+1}, v{c0+2}, v{c0+3}",
                     f"v_cvt_pk_bf16_f32 v{c0+2}, v{c1}, v{c1+1}", f"v_cvt_pk_bf16_f32 v{c0+3}, v{c1+2}, v{c1+3}",
                     f"buffer_store_dwordx4 {vr(c0,4)}, v13, s[8:11], s{54+u} offen offset:{b*1024} {STAUX}"]
            RX.append((P.F0 if u == 0 else P.F1) + 32 + 4*b)
    fill += [f"v_mov_b64 {vr(ACC+64+k,2)}, 0" for k in list(range(16, 32, 2)) + list(range(48, 64, 2)) + list(range(0, 16, 2)) + list(range(32, 48, 2))]
    rx = [f"buffer_load_dwordx4 {vr(RX[4*u+b],4)}, v13, s[8:11], s{52+u} offen offset:{b*1024} sc1" for u in range(2) for b in range(4)]
    consumer(e, "gs", P, TS, pend=pend, fill=fill, pre=(TS - XD, ["s_waitcnt vmcnt(0)"]) if XD > 2 else None, post=(XL, rx))
    stamp(e, 5, "d")
    e("s_waitcnt vmcnt(0)")
    for b in range(4):
        for u in range(2):
            for h in range(2):
                c = ACC + 16*(2*u+h) + 4*b
                e(f"v_mfma_f32_16x16x32_bf16 {vr(c,4)}, {vr(24-2*h,4)}, {vr(RX[4*u+b],4)}, {vr(c,4)}")
    stamp(e, 2)
    e("s_lshl_b32 s40, s23, 5\ns_lshl_b32 s41, s22, 2\ns_add_u32 s40, s40, s41\ns_lshl_b32 s41, s30, 1\ns_add_u32 s40, s40, s41")
    e("s_lshl_b32 s40, s40, 13\ns_lshl_b32 s42, s31, 12\ns_add_u32 s40, s40, s42")
    e("s_add_u32 s41, s40, 8192")
    e("s_mov_b32 s43, s33")
    for x in next_slot("s43"): e(x)
    e("s_cmp_eq_u32 s30, 0\ns_cselect_b32 s43, s33, s43\ns_add_u32 s43, s43, s42")
    e("v_and_b32 v3, 0x33, v2\nv_lshrrev_b32 v4, 1, v2\nv_and_b32 v4, 4, v4\nv_or_b32 v3, v3, v4\nv_lshlrev_b32 v3, 4, v3")
    e("v_and_b32 v4, 4, v2\nv_lshlrev_b32 v4, 8, v4\nv_or_b32 v3, v3, v4")
    e("v_add_u32 v4, s43, v3")
    n = 0
    for u in range(2):
        for b in range(4):
            d = P.F0 + 4*n; n += 1
            pack_pair(e, d, ACC + 16*(2*u) + 4*b, ACC + 16*(2*u+1) + 4*b)
            e(f"buffer_store_dwordx4 {vr(d,4)}, v3, s[16:19], s{40+u} offen offset:{(b>>1)*2048 + (b&1)*128} {STAUX}")
            e(f"ds_write_b128 v4, {vr(d,4)} offset:{u*8192 + (b>>1)*2048 + (b&1)*128}")
    zero(e, ACC, 64)
    srd(e, 16, P_OUT, 0, S*F*2)
    e("v_lshlrev_b32 v16, 4, v2")
    e(f"s_lshl_b32 s26, s25, 12\ns_add_u32 s26, s26, {UNIT}\nv_add_u32 v17, s26, v16")
    P.addr = [(9, 17), (8, 16)]
    def reads(Fb, ks):
        xr = [f"ds_read_b128 {vr(Fb+32+4*b,4)}, v9 offset:{ks*UNIT + b*1024}" for b in range(4)]
        wv = [f"ds_read_b128 {vr(Fb+4*a,4)}, v8 offset:{ks*8192 + a*1024}" for a in range(8)]
        return xr + wv
    def mfmas(Fb):
        return [f"v_mfma_f32_16x16x32_bf16 {vr(ACC+16*a+4*b,4)}, {vr(Fb+4*a,4)}, {vr(Fb+32+4*b,4)}, {vr(ACC+16*a+4*b,4)}"
                for a, b in snake(8, 4)]
    P.reads, P.mfmas = reads, mfmas
    e("s_waitcnt lgkmcnt(0)")
    consumer(e, "gc", P, 16 - TAIL, stampn=3, drain=True, flush=(TAIL == 0))
    def out_ops(Ln, temps):
        ops = []
        for b in range(4):
            d = temps[b % len(temps)]
            for h in range(2):
                u = 2*Ln + h
                c0, c1 = ACC + 16*(2*u) + 4*b, ACC + 16*(2*u+1) + 4*b
                ops += [f"v_cvt_pk_bf16_f32 v{d+4*h}, v{c0}, v{c0+1}", f"v_cvt_pk_bf16_f32 v{d+4*h+1}, v{c0+2}, v{c0+3}",
                        f"v_cvt_pk_bf16_f32 v{d+4*h+2}, v{c1}, v{c1+1}", f"v_cvt_pk_bf16_f32 v{d+4*h+3}, v{c1+2}, v{c1+3}"]
            ops += [f"v_mov_b32 v{d+8+j}, v{d+j}" for j in range(4)]
            ops += [f"v_mov_b32_dpp v{d+j}, v{d+4+j} row_ror:8 row_mask:0xf bank_mask:0xc" for j in range(4)]
            ops += [f"v_mov_b32_dpp v{d+4+j}, v{d+8+j} row_ror:8 row_mask:0xf bank_mask:0x3" for j in range(4)]
            ops += [f"buffer_store_dwordx4 {vr(d,4)}, v14, s[16:19], s{44+b} offen offset:{Ln*128} {OUTAUX}",
                    f"buffer_store_dwordx4 {vr(d+4,4)}, v15, s[16:19], s{44+b} offen offset:{Ln*128} {OUTAUX}"]
        return ops
    if TAIL:
        for t in range(1, TAIL):
            for x in next_slot(): e(x)
            e(f"v_add_u32 v{8+2*t}, s33, v16\nv_add_u32 v{9+2*t}, s33, v17")
        seq = [(g, t, ks) for g in range(2) for t in range(TAIL) for ks in range(2)]
        def hreads(Fb, g, t, ks):
            out = []
            for k in range(4):
                out.append(f"ds_read_b128 {vr(Fb+16+4*k,4)}, v{9+2*t} offset:{ks*UNIT + k*1024}")
                out.append(f"ds_read_b128 {vr(Fb+4*k,4)}, v{8+2*t} offset:{ks*8192 + (4*g+k)*1024}")
            return out
        def hmfmas(Fb, g):
            return [f"v_mfma_f32_16x16x32_bf16 {vr(ACC+16*(4*g+a)+4*b,4)}, {vr(Fb+4*a,4)}, {vr(Fb+16+4*b,4)}, {vr(ACC+16*(4*g+a)+4*b,4)}"
                    for a, b in snake(4, 4)]
        pend = P.mfmas(P.F1)
        fill = out_ops(0, [P.F0 + 32, P.F1 + 32])
        for n, (g, t, ks) in enumerate(seq + [(None, None, None)]):
            Fb = P.F0 if n % 2 == 0 else P.F1
            rd = hreads(Fb, g, t, ks) if g is not None else []
            usefill = n >= 2*TAIL + 1
            k0 = 0
            if g == 0 and ks == 0:
                for m in pend[:PREB]: e(m)
                e("s_barrier")
                k0 = PREB
                e(rd.pop(0))
            for k, m in enumerate(pend[k0:]):
                e(m)
                c = 0
                if rd: e(rd.pop(0)); c += 1
                if usefill and (n > 2*TAIL + 1 or k >= 4):
                    while fill and c < TFILL:
                        e(fill.pop(0)); c += 1
            if g is not None:
                e("s_waitcnt lgkmcnt(0)")
                pend = hmfmas(Fb, g)
        stamp(e, 5)
        for x in fill: e(x)
        e("s_nop 7")
        for x in out_ops(1, [P.F0, P.F0 + 12, P.F1, P.F1 + 12]): e(x)
    else:
        stamp(e, 5)
        e("s_nop 7")
        for Ln in range(2):
            for x in out_ops(Ln, [P.F0 + 48*Ln + 12*k for k in range(4)]): e(x)
    stamp_flush(e, "cons")
    e("s_endpgm")

PPRIO = 0
CPRIO = 0
def main_producer(e):
    if TRACE:
        e("v_mov_b32 v40, 0\nv_mov_b32 v41, 0\nv_mov_b32 v42, 0\nv_mov_b32 v43, 0\ns_mov_b32 s100, 0\ns_mov_b64 s[96:97], 0\ns_mov_b64 s[98:99], 0")
        e.tr = True
    if PPRIO: e(f"s_setprio {PPRIO}")
    e("s_sub_u32 s30, s25, 4\ns_lshl_b32 s31, s30, 10\ns_lshl_b32 s32, s30, 12")
    srd(e, 8, P_V, 0, F*F*2)
    e("s_lshl_b32 s27, s23, 8")
    t_voff(e, "F", F*2, "s27", 8)
    e("v_lshlrev_b32 v5, 4, v2\nv_add_u32 v9, s32, v5")
    e(f"s_mul_i32 s28, s22, {112*8192}\ns_xor_b32 s29, s22, 1\ns_mul_i32 s29, s29, {112*8192}")
    e("s_and_b32 s53, s20, 1\ns_mul_i32 s53, s53, 28")
    def prep():
        if SEG:
            e("s_cmp_ge_u32 s36, 14\ns_cselect_b32 s45, 14, 0\ns_sub_u32 s46, s36, s45")
            chunk_of_pos(e, "s46", "s24", "s37", "s38", "s39", 14, LEAD)
            e("s_add_u32 s37, s37, s53\ns_add_u32 s37, s37, s45")
        else:
            chunk_of_pos(e, "s36", "s24", "s37", "s38", "s39", 28, LEAD)
            e("s_add_u32 s37, s37, s53")
        e(f"s_mul_i32 s45, s37, {64*F*2}")
        e("s_lshl_b32 s38, s37, 14\ns_add_u32 s46, s38, s29\ns_add_u32 s58, s38, s28")
    TL = t_loads(8, 8, "s45", 0, F*2)
    FO, FI2, FI1 = f_loads(9, 12, "s46", 1), f_loads(9, 12, "s58", 2), f_loads(9, 12, "s58", 1)
    LL, S1, S2 = FO + FI2 + TL, FO + TL, FI1 + TL
    def adv():
        for x in next_slot(): e(x)
        e("s_add_u32 s36, s36, 1")
    lane_flag_addr(e, 13, 28)
    e(f"s_mul_i32 s34, s22, {28*128}")
    e("s_lshl_b32 s54, s23, 7\ns_add_u32 s54, s54, s34")
    dq_math(e, 0)
    make_tag(e)
    e("s_waitcnt vmcnt(0)")
    e("s_barrier")
    stamp(e, 2)
    e("s_cmp_lg_u32 s30, 0\ns_cbranch_scc1 L_pa_nf")
    flag_store(e, "s54")
    e("L_pa_nf:")
    e("s_mov_b32 s36, 0")
    for _ in range(2):
        prep(); emit(e, TL); adv()
    flag_read(e, 13, "s34")
    e(f"s_mov_b32 s36, 0\ns_mov_b32 s33, 0")
    prep()
    e("s_waitcnt vmcnt(0)")
    flag_wait_all(e, "fwq", 13, "s34", preloaded=True)
    stamp(e, 1)
    emit(e, FO + FI2); adv()
    prep(); emit(e, FO + FI2); adv()
    e("s_add_u32 s34, s34, 64")
    fl = [-1] * 8
    plan = PLAN
    nit = max(plan) + 3
    for it in range(nit):
        prep()
        keep = len(fl) - max([k + 1 for k, t in enumerate(fl) if t == it - 2 or (it == nit - 1 and t == "w")] + [0])
        e(f"s_waitcnt vmcnt({keep})\ns_barrier")
        if it == nit - 1:
            e("s_cmp_lg_u32 s30, 0\ns_cbranch_scc1 L_pa_nf2")
            flag_store(e, "s54", 64)
            e("L_pa_nf2:")
        emit(e, LL); adv(); fl += [it] * 12
        if it == DQ0:
            dq_loads(e, 1); fl += ["q"] * 12
        if it in plan:
            e(f"s_waitcnt vmcnt({len(fl) - max(k + 1 for k, t in enumerate(fl) if t == 'q')})")
            dq_math(e, 1, octs=plan[it]); fl += ["w"] * len(plan[it])
    assert 2 + nit <= CHK2
    if 2 + nit < CHK2:
        e("L_gl_ptop0:")
        prep()
        e("s_waitcnt vmcnt(12)\ns_barrier")
        emit(e, LL); adv()
        e(f"s_cmp_lt_u32 s36, {CHK2}\ns_cbranch_scc1 L_gl_ptop0")
    prep()
    e("s_waitcnt vmcnt(12)\ns_barrier")
    flag_read(e, 13, "s34")
    emit(e, LL); adv()
    prep()
    e("s_waitcnt vmcnt(12)\ns_barrier")
    flag_wait_all(e, "fwq2", 13, "s34", preloaded=True)
    emit(e, LL); adv()
    e(f"v_min_u32 v13, 15, v2\nv_lshlrev_b32 v14, 7, v13")
    e(f"s_lshl_b32 s26, s23, 10\ns_add_u32 s26, s26, {FL_WV}\ns_lshl_b32 s27, s22, 10\ns_add_u32 s27, s27, {FL_XR - 1024}")
    e("v_mov_b32 v3, s26\nv_mov_b32 v4, s27\nv_cmp_gt_u32 vcc, 8, v13\ns_nop 1\nv_cndmask_b32 v3, v4, v3, vcc\nv_add_u32 v13, v14, v3")
    e("s_lshl_b32 s54, s22, 7\ns_add_u32 s54, s54, s26")
    e(f"s_add_u32 s40, s54, {FL_PX - FL_WV}\ns_xor_b32 s41, s40, 128")
    e("v_mov_b32 v3, s40\nv_cmp_gt_u32 vcc, 16, v2\ns_nop 1\nv_cndmask_b32 v13, v3, v13, vcc")
    srd(e, 16, P_WS, WS_XR, SZ_XR)
    e("s_lshl_b32 s55, s22, 19\ns_lshl_b32 s42, s23, 18\ns_and_b32 s59, s23, 3\ns_lshl_b32 s27, s22, 1")
    e("s_mov_b32 s52, 0\ns_mov_b32 s34, 0")
    e("L_gl_ptop:")
    prep()
    e("s_waitcnt vmcnt(12)\ns_barrier")
    emit(e, LL); adv()
    e(f"s_cmp_lt_u32 s36, {28 - TS}\ns_cbranch_scc1 L_gl_ptop")
    prep()
    e("s_waitcnt vmcnt(12)\ns_barrier")
    emit(e, S1); adv()
    e("L_ga_ptop:")
    prep()
    e("s_waitcnt vmcnt(8)\ns_barrier")
    emit(e, S1); adv()
    e(f"s_cmp_lt_u32 s36, 28\ns_cbranch_scc1 L_ga_ptop")
    e(f"s_mov_b32 s36, {28 - TS}")
    def prepc(own=None, pos="s36"):
        if own is None:
            chunk_of_pos(e, pos, "s59", "s37", "s38", "s39", 14, LEADC)
            e("s_add_u32 s37, s37, 2\ns_and_b32 s38, s37, 6\ns_lshl_b32 s38, s38, 1\ns_add_u32 s38, s38, s27\ns_and_b32 s38, s38, 15")
            e("s_lshr_b32 s39, s37, 2\ns_and_b32 s39, s39, 2\ns_xor_b32 s38, s38, s39\ns_and_b32 s37, s37, 1\ns_or_b32 s37, s37, s38")
        else:
            e(f"s_add_u32 s37, s27, {own}")
        e("s_lshl_b32 s45, s37, 14\ns_add_u32 s45, s45, s42")
        e("s_lshl_b32 s46, s37, 15\ns_add_u32 s46, s46, s55\ns_add_u32 s47, s46, 16384")
    WL, X0, X1 = f_loads(9, 12, "s45", 0), f_loads(9, 16, "s46", 1), f_loads(9, 16, "s47", 2)
    def need(tag, xr_only=False, px=False):
        if px: e("s_mov_b32 s38, 0x10000")
        else: e(f"s_lshr_b32 s38, s37, 1\ns_lshl_b32 s38, {0x100 if xr_only else 0x101}, s38")
        e("s_andn2_b32 s39, s38, s52")
        e(f"s_cbranch_scc0 L_{tag}_ok")
        e(f"s_mov_b32 s35, {SPIN}")
        e(f"L_{tag}_rd:")
        flag_read(e, 13, "s34")
        e("s_waitcnt vmcnt(0)")
        flag_mask(e)
        e("s_nop 1\ns_mov_b32 s52, vcc_lo")
        e("s_andn2_b32 s39, s38, s52")
        e(f"s_cbranch_scc0 L_{tag}_ok")
        e(f"s_sleep {PSLEEP}")
        e("s_sub_u32 s35, s35, 1\ns_cmp_lg_u32 s35, 0")
        e(f"s_cbranch_scc1 L_{tag}_rd")
        e(f"L_{tag}_ok:")
    def pxflag(bar):
        if bar == XD:
            e("s_cmp_lg_u32 s30, 0\ns_cbranch_scc1 L_px_nf")
            flag_store(e, "s41")
            e("L_px_nf:")
    npl = min(TS - 4, XD + 2)
    e("L_gs_ptop:")
    prep()
    e("s_waitcnt vmcnt(8)\ns_barrier")
    emit(e, S2); adv()
    e(f"s_cmp_lt_u32 s36, {28 - TS + npl}\ns_cbranch_scc1 L_gs_ptop")
    prev = 8
    for t in range(npl, TS):
        prep()
        e(f"s_waitcnt vmcnt({prev})\ns_barrier")
        pxflag(t - 2)
        k = t - (TS - 3)
        if k == 0:
            flag_mask(e)
            e("s_nop 1\ns_mov_b32 s52, vcc_lo")
        if k == -1 or k == 2: flag_read(e, 13, "s34")
        emit(e, S2); prev = 8
        if k >= 0 and not LATEX:
            if k < 2: prepc(k)
            else: prepc(None, "s34")
            need(f"fx{k}", True)
            emit(e, X1); prev = 12
        adv()
    XA = (X0 + X1) if LATEX else X0
    nx = len(XA)
    srd(e, 12, P_WS, WS_WV, SZ_WQ)
    stamp(e, 3)
    prepc(0)
    def pxcheck():
        e("s_cmp_lg_u32 s30, 0\ns_cbranch_scc1 L_fpx_ok")
        flag_mask(e)
        e("s_nop 1\ns_mov_b32 s52, vcc_lo")
        need("fpx", px=True)
    e(f"s_waitcnt vmcnt({prev})")
    if XL == 2: pxcheck()
    e("s_barrier")
    if LATEX: need("fx0", True)
    if XL == 1: flag_read(e, 13, "s34")
    emit(e, XA)
    for x in next_slot(): e(x)
    prepc(1)
    e(f"s_waitcnt vmcnt({nx})")
    if XL == 1: pxcheck()
    e("s_barrier")
    emit(e, XA)
    for x in next_slot(): e(x)
    e("s_mov_b32 s36, 0")
    prepc()
    if LATEX: need("fx2", True)
    e(f"s_waitcnt vmcnt({nx})\ns_barrier")
    emit(e, XA)
    e(f"s_waitcnt vmcnt({nx})\ns_barrier")
    e("s_cmp_lg_u32 s30, 0\ns_cbranch_scc1 L_pc_nf")
    flag_store(e, "s54")
    e("L_pc_nf:")
    need("fw0")
    stamp(e, 5)
    emit(e, WL); adv()
    prepc()
    need("fw1")
    emit(e, WL + X0 + X1); adv()
    e("L_gc_ptop:")
    prepc()
    e("s_waitcnt vmcnt(12)\ns_barrier")
    need("fw2")
    if CPF & 4:
        e("s_xor_b32 s26, s36, 11\ns_or_b32 s26, s26, s30\ns_cmp_lg_u32 s26, 0\ns_cbranch_scc1 L_nct3")
        code_touch(e, (0,))
        e("L_nct3:")
    emit(e, WL + X0 + X1); adv()
    e("s_cmp_lt_u32 s36, 14\ns_cbranch_scc1 L_gc_ptop")
    e("s_waitcnt vmcnt(12)\ns_barrier\ns_waitcnt vmcnt(0)\ns_barrier")
    e("s_or_b32 s26, s2, s30\ns_cmp_lg_u32 s26, 0\ns_cbranch_scc1 L_pc_end")
    lane_flag_addr(e, 13, 64)
    e(f"s_mov_b32 s34, {FL_XR}")
    flag_wait_all(e, "fall", 13, "s34")
    e(f"s_mov_b32 s26, {FL_E}")
    flag_store(e, "s26")
    e("L_pc_end:")
    e.tr = False
    if TRACE:
        srd(e, 76, P_WS, WS_ST + (1 << 20), 1 << 22)
        e("s_lshl_b32 s75, s2, 3\ns_add_u32 s75, s75, s25\ns_lshl_b32 s75, s75, 10")
        e("v_lshlrev_b32 v4, 4, v2")
        e("buffer_store_dwordx4 v[40:43], v4, s[76:79], s75 offen")
    stamp_flush(e, "prod")
    e("s_endpgm")

FAKEB = 0
PFDELAY = 0
def spare(e):
    srd(e, 8, P_U, 0, D*D*2)
    srd(e, 12, P_X, 0, S*D*2)
    srd(e, 16, P_WS, WS_XR, SZ_XR)
    if HALF:
        e("s_mov_b32 s22, s20\ns_sub_u32 s24, s21, 28\ns_and_b32 s23, s22, 1\ns_lshl_b32 s26, s24, 1\ns_or_b32 s23, s23, s26")
    else:
        e("s_mov_b32 s22, s20\ns_sub_u32 s24, s21, 28\ns_add_u32 s23, s22, s24\ns_and_b32 s23, s23, 7")
    e("s_mov_b32 s53, 0")
    e("s_cmp_ge_u32 s25, 4\ns_cbranch_scc1 L_pb")
    if CPF & 1:
        e("s_cmp_lg_u32 s25, 0\ns_cbranch_scc1 L_nct1")
        code_touch(e)
        e("L_nct1:")
    e("s_lshr_b32 s30, s25, 1\ns_and_b32 s31, s25, 1")
    t_addr(e, "R", "s31", 16)
    e("v_lshrrev_b32 v5, 1, v4\nv_xor_b32 v5, v5, v3\nv_lshlrev_b32 v5, 4, v5")
    e(f"s_lshl_b32 s26, s30, 14\ns_add_u32 s26, s26, {UNIT}")
    e("v_lshlrev_b32 v6, 7, v4\nv_add3_u32 v20, v5, v6, s26\nv_xor_b32 v21, 64, v20")
    P = Phase(); P.F0, P.F1 = ACC + 128, ACC + 176
    P.addr = [(8+q, 16+q) for q in range(4)] + [(12, 20), (13, 21)]
    def reads(Fb, ks):
        out = []
        for a in range(4):
            for t in range(2):
                out.append(f"ds_read_b64_tr_b16 {vr(Fb+32+4*a+2*t,2)}, v{8+a} offset:{ks*8192 + t*1024}")
            for h in range(2):
                out.append(f"ds_read_b128 {vr(Fb+4*(2*a+h),4)}, v{12+ks} offset:{(2*a+h)*2048}")
        return out
    def mfmas(Fb):
        return [f"v_mfma_f32_16x16x32_bf16 {vr(ACC+16*a+4*b,4)}, {vr(Fb+32+4*b,4)}, {vr(Fb+4*a,4)}, {vr(ACC+16*a+4*b,4)}"
                for a, b in snake(8, 4)]
    P.reads, P.mfmas = reads, mfmas
    stamp(e, 1)
    e("L_bl:")
    zero(e, ACC, 128)
    consumer(e, "gb", P, 16, drain=True)
    e("s_lshl_b32 s40, s22, 5\ns_lshl_b32 s41, s23, 2\ns_add_u32 s40, s40, s41\ns_lshl_b32 s41, s31, 1\ns_add_u32 s40, s40, s41")
    e("s_lshl_b32 s40, s40, 14\ns_lshl_b32 s41, s30, 13\ns_add_u32 s40, s40, s41")
    e("s_add_u32 s41, s40, 4096\ns_add_u32 s42, s40, 16384\ns_add_u32 s43, s40, 20480")
    e("v_lshlrev_b32 v3, 4, v2")
    n = 0
    for u in range(2):
        for a in range(8):
            d = P.F0 + 4*n; n += 1
            pack_pair(e, d, ACC + 16*a + 4*(2*u), ACC + 16*a + 4*(2*u+1))
            e(f"buffer_store_dwordx4 {vr(d,4)}, v3, s[16:19], s{40+2*u+(a>>2)} offen offset:{(a&3)*1024} {STAUX}")
    e("s_xor_b32 s23, s23, 1\ns_add_u32 s53, s53, 1\ns_cmp_lt_u32 s53, 2\ns_cbranch_scc1 L_bl")
    stamp(e, 2)
    e("s_waitcnt vmcnt(0)\ns_barrier")
    stamp_flush(e, "bcons")
    e("s_endpgm")
    e("L_pb:")
    if PPRIO: e(f"s_setprio {PPRIO}")
    e("s_sub_u32 s30, s25, 4\ns_lshl_b32 s31, s30, 10\ns_lshl_b32 s32, s30, 12")
    t_voff(e, "R", 2048, None, 8)
    e("s_and_b32 s26, s30, 1\ns_lshl_b32 s26, s26, 2")
    e("v_or_b32 v5, s26, v3\nv_and_b32 v6, 7, v2\nv_xor_b32 v5, v5, v6\nv_lshlrev_b32 v5, 4, v5")
    e("s_lshl_b32 s26, s30, 3")
    e("v_lshrrev_b32 v6, 3, v2\nv_add_u32 v6, s26, v6\nv_lshlrev_b32 v6, 11, v6")
    e("v_add_u32 v9, v5, v6")
    def prep():
        e("s_and_b32 s34, s36, 15")
        chunk_of_pos(e, "s34", "s24", "s37", "s38", "s39", 16, LEAD)
        if BROT: e("s_lshl_b32 s38, s20, 1\ns_add_u32 s37, s37, s38\ns_and_b32 s37, s37, 15")
        e(f"s_lshr_b32 s38, s36, 4\ns_xor_b32 s38, s38, s23\ns_lshl_b32 s38, s38, 8\ns_lshl_b32 s45, s37, 17\ns_add_u32 s45, s45, s38")
        e(f"s_lshl_b32 s38, s22, 19\ns_lshl_b32 s46, s37, 7\ns_add_u32 s46, s46, s38")
    xl = []
    for u in range(2):
        for i in range(4):
            g = [f"s_add_u32 m0, s44, {(1+u)*UNIT + i*4096}"]
            g += [f"s_add_u32 s46, s46, {32*2048}" if (u or i) else "s_nop 0"]
            g.append("buffer_load_dwordx4 v9, s[12:15], s46 offen lds")
            xl.append(g)
    LD = t_loads(8, 8, "s45", 0, 2048) + xl
    def adv():
        for x in next_slot(): e(x)
        e("s_add_u32 s36, s36, 1")
    e(f"s_lshl_b32 s27, s22, 10\ns_lshl_b32 s26, s23, 7\ns_add_u32 s27, s27, s26\ns_add_u32 s27, s27, {FL_XR}")
    e("s_mov_b32 s36, 0")
    for _ in range(2):
        prep(); emit(e, LD); adv()
    make_tag(e)
    e("L_gb_ptop:")
    prep()
    e("s_waitcnt vmcnt(12)\ns_barrier")
    e("s_xor_b32 s26, s36, 19\ns_or_b32 s26, s26, s30\ns_cmp_lg_u32 s26, 0\ns_cbranch_scc1 L_pb_nf")
    flag_store(e, "s27")
    e("L_pb_nf:")
    if CPF & 2:
        e("s_xor_b32 s26, s36, 26\ns_or_b32 s26, s26, s30\ns_cmp_lg_u32 s26, 0\ns_cbranch_scc1 L_nct2")
        code_touch(e)
        e("L_nct2:")
    emit(e, LD); adv()
    e("s_cmp_lt_u32 s36, 32\ns_cbranch_scc1 L_gb_ptop")
    e("s_waitcnt vmcnt(12)\ns_barrier\ns_waitcnt vmcnt(0)\ns_barrier")
    e("s_barrier")
    e("s_cmp_lg_u32 s30, 0\ns_cbranch_scc1 L_pb_end")
    e("s_xor_b32 s27, s27, 128")
    flag_store(e, "s27")
    e("L_pb_end:")
    stamp_flush(e)
    e("s_endpgm")

def kernel(e):
    e(f".globl {NAME}\n.p2align 8\n.type {NAME},@function\n{NAME}:")
    if STAMP:
        for n in range(1, 8): e(f"s_mov_b64 s[{80+2*n}:{81+2*n}], 0")
    stamp(e, 0)
    e("s_load_dwordx16 s[60:75], s[0:1], 0")
    e("s_load_dwordx2 s[56:57], s[0:1], 64")
    e("s_cmp_ge_u32 s2, 256\ns_cbranch_scc1 L_end")
    e("s_and_b32 s20, s2, 7\ns_lshr_b32 s21, s2, 3")
    e("v_lshrrev_b32 v1, 6, v0\nv_and_b32 v2, 63, v0\ns_nop 0\nv_readfirstlane_b32 s25, v1")
    e("s_and_b32 s26, s21, 3\ns_lshl_b32 s22, s26, 1\ns_and_b32 s23, s20, 1\ns_add_u32 s22, s22, s23")
    e("s_lshr_b32 s23, s20, 1\ns_mul_i32 s23, s23, 7\ns_lshr_b32 s24, s21, 2\ns_add_u32 s23, s23, s24")
    e("s_add_u32 s24, s26, s23\ns_and_b32 s24, s24, 3")
    e("s_mov_b32 s33, 0")
    e(f"s_mov_b32 s26, {WS_FL + FL_E}")
    e("s_waitcnt lgkmcnt(0)")
    e("s_load_dwordx2 s[6:7], s[56:57], s26")
    srd(e, 48, P_WS, WS_FL, FL_BYTES)
    if CPF & 8:
        e("s_cmp_lg_u32 s25, 7\ns_cbranch_scc1 L_nct4")
        code_touch(e)
        e("L_nct4:")
    e("s_cmp_ge_u32 s21, 28\ns_cbranch_scc1 L_spare")
    dq_lanes(e)
    dq_loads(e, 0)
    dq_lanes2(e)
    e("s_cmp_ge_u32 s25, 4\ns_cbranch_scc1 L_mainp")
    main_consumer(e)
    e("L_mainp:")
    main_producer(e)
    e("L_spare:")
    spare(e)
    e("L_end:")
    e("s_endpgm")
    e("L_code_end:")
    e(f'.section .rodata,"a"\n.p2align 6\n.amdhsa_kernel {NAME}')
    e(f".amdhsa_next_free_vgpr 256\n.amdhsa_next_free_sgpr {102 if TRACE else 96}\n.amdhsa_accum_offset 256")
    e(".amdhsa_group_segment_fixed_size 0\n.amdhsa_kernarg_size 72\n.amdhsa_user_sgpr_count 2")
    e(".amdhsa_user_sgpr_kernarg_segment_ptr 1\n.amdhsa_system_sgpr_workgroup_id_x 1")
    e(".amdhsa_float_denorm_mode_32 3")
    e(".end_amdhsa_kernel")

HEADER = open("standalone__weight_only_int_quip__prompt.s.ref").read().split("; Override")[0]
ASLIST = False
DOC = """; y = (x @ U) @ (dequant(qw) @ V), one persistent launch, one workgroup per CU (generated by the author's own script).
"""
def generate():
    e = Asm()
    out = HEADER
    if ASLIST:
        out += f"; @launch kernel={NAME} grid=(256,1,1) block=(512,1,1) lds={LDS_BYTES}\n"
    else:
        out += f"; @launch grid=(256,1,1) block=(512,1,1) lds={LDS_BYTES}\n"
    out += DOC
    e('.amdgcn_target "amdgcn-amd-amdhsa--gfx950"\n.text')
    kernel(e)
    return out + e.text()

if __name__ == "__main__":
    args = [a for a in sys.argv[1:] if not a.startswith("-")]
    for a in sys.argv[1:]:
        if a.startswith("-"):
            k, v = a[1:].split("=", 1)
            globals()[k] = eval(v)
    path = args[0] if args else "standalone__weight_only_int_quip__prompt.s"
    open(path, "w").write(generate())
    print("wrote", path)
```

```python
import sys, re

S, D, F = 2048, 1024, 3584
WS_WQ, WS_WV, WS_XR, WS_FL, WS_ST = 0, 8 << 20, 16 << 20, 24 << 20, 64 << 20
SZ_WQ, SZ_XR = D * F * 2, S * D * 2
FL_WQ, FL_WV, FL_XR, FL_PX, FL_E = 0, 224 * 128, 448 * 128, 512 * 128, 736 * 128
FL_BYTES = 737 * 128
WS_PX = 32 << 20
TS = 8
XD = 2
LE = 25
EARLY = True
XL = 2

NAME = "standalone__weight_only_int_quip__prompt_kernel"

NOMFMA = NOREAD = NOLOAD = False
STAMP = False
STAUX = "sc1"
OUTAUX = "sc1"
QAUX = ""
SKEW = True
LEAD = 2
NTOUCH = 0
XUT = 0
UNIT = 16384
SLOT = 3 * UNIT
LDS_BYTES = 3 * SLOT
PREB = 2
SALU_PER = 1
SPIN = 1 << 17
PSLEEP = 2
ACC = 28
TAIL = 3
DQAT = 4
TOFF = 4
DQSPREAD = 4
DQFIRST = False
DQCLS = True
CHK2 = 13
SEG = True
DQMIX = False
LATEX = True
PLAN = {3: (0,), 4: (1,), 5: (2,), 6: (3,)}
DQ0 = 1
BROT = True
HALF = True
LEADC = 2
TFILL = 2
XRM = 4
AORD = "AV"

TRACE = False
class Asm:
    tr = False
    def __init__(self):
        self.L = []
    def __call__(self, s):
        for line in s.split("\n"):
            line = line.strip()
            if NOMFMA and line.startswith("v_mfma"): continue
            if NOREAD and line.startswith("ds_read"): continue
            if NOLOAD and line.startswith("buffer_load") and line.endswith("lds"): continue
            if TRACE and self.tr and line == "s_barrier":
                self.L += ["    s_waitcnt lgkmcnt(0)", "    s_mov_b32 m0, s100", "    s_add_u32 s100, s100, 1", "    s_nop 2",
                           "    v_writelane_b32 v40, s96, m0", "    v_writelane_b32 v41, s98, m0", "    s_barrier",
                           "    s_memtime s[96:97]", "    s_memrealtime s[98:99]"]
                continue
            if line:
                self.L.append(("    " if not line.endswith(":") and not line.startswith(".") else "") + line)
    def text(self):
        return "\n".join(self.L) + "\n"

def vr(b, n=1):
    return f"v{b}" if n == 1 else f"v[{b}:{b+n-1}]"

P_X, P_QW, P_SC, P_ZR, P_U, P_V, P_OUT, P_WS = 60, 62, 64, 66, 68, 70, 72, 56
def srd(e, d, base, add, nbytes):
    if add:
        e(f"s_add_u32 s{d}, s{base}, {add}\ns_addc_u32 s{d+1}, s{base+1}, 0")
    else:
        e(f"s_mov_b32 s{d}, s{base}\ns_mov_b32 s{d+1}, s{base+1}")
    e(f"s_mov_b32 s{d+2}, {nbytes}\ns_mov_b32 s{d+3}, 0x20000")

DIAG = ""
def stamp(e, n, diag=""):
    if n in (3, 5) and diag != DIAG: return
    if STAMP:
        e(f"s_memrealtime s[{80+2*n}:{81+2*n}]")
        if n in (1, 2):
            e(f"s_memtime s[{90+2*n}:{91+2*n}]")
DBGSTAMP = False
ECHO = None
def stamp_flush(e, role=""):
    if not STAMP:
        return
    e("s_waitcnt lgkmcnt(0) vmcnt(0)")
    stamp(e, 4)
    e("s_waitcnt lgkmcnt(0)")
    if ECHO:
        if role == "cons":
            a_, b_, mult = ECHO
            e("s_or_b32 s26, s2, s25\ns_cmp_lg_u32 s26, 0\ns_cbranch_scc1 L_echo_end")
            e(f"s_sub_u32 s26, s{80+2*b_}, s{80+2*a_}\ns_mul_i32 s26, s26, {mult}\ns_add_u32 s26, s26, 6000")
            e("L_echo:")
            e("s_memrealtime s[28:29]\ns_waitcnt lgkmcnt(0)")
            e("s_sub_u32 s27, s28, s80\ns_cmp_lt_u32 s27, s26\ns_cbranch_scc1 L_echo")
            e("L_echo_end:")
        return
    if DBGSTAMP:
        srd(e, 76, 74, 0, 256)
        e("v_mov_b32 v4, 0\ns_mov_b64 exec, 1")
        sel = {"cons": [(0, 0, 1), (1, 1, 1), (1, 2, 0), (2, 3, 1), (2, 4, 0), (3, 5, 1), (3, 6, 0), (5, 7, 1), (5, 8, 0), (4, 9, 0), (0, 15, 0)],
               "prod": [(2, 10, 0), (1, 11, 0), (3, 12, 0)], "bcons": [(2, 13, 1), (2, 14, 0)]}.get(role, [])
        for k, (st, w, inv) in enumerate(sel):
            e(f"v_mov_b32 v{8+k}, s{80+2*st}")
            if inv: e(f"v_not_b32 v{8+k}, v{8+k}")
            e(f"buffer_atomic_umax v{8+k}, v4, s[76:79], 0 offen offset:{4*w}")
        return
    if role == "prod": e("s_getreg_b32 s94, hwreg(HW_REG_XCC_ID)\ns_mov_b32 s95, 0")
    srd(e, 76, P_WS, WS_ST, 1 << 20)
    e(f"s_lshl_b32 s75, s2, 3\ns_add_u32 s75, s75, s25\ns_lshl_b32 s75, s75, 6")
    for n in range(16):
        e(f"v_mov_b32 v{8+n}, s{80+n}")
    e("v_mov_b32 v4, 0")
    e("s_mov_b64 exec, 1")
    for n in range(4):
        e(f"buffer_store_dwordx4 v[{8+4*n}:{11+4*n}], v4, s[76:79], s75 offen offset:{16*n}")

def chunk_of_pos(e, spos, scls, sdst, st1, st2, nch, lead, sxor=None):
    if not SKEW:
        e(f"s_mov_b32 {sdst}, {spos}")
        return
    e(f"s_sub_u32 {st1}, {spos}, {scls}")
    e(f"s_and_b32 {st1}, {st1}, 3")
    e(f"s_cmp_le_u32 {st1}, {lead}")
    e(f"s_cselect_b32 {st2}, -1, 0")
    e(f"s_cmp_eq_u32 {st1}, 0")
    e(f"s_cselect_b32 {st2}, {lead}, {st2}")
    e(f"s_cmp_lt_u32 {spos}, {scls}")
    e(f"s_cselect_b32 {st2}, 0, {st2}")
    e(f"s_sub_u32 {st1}, {spos}, {st1}")
    e(f"s_cmp_ge_i32 {st1}, {nch if isinstance(nch, str) else nch-3}")
    e(f"s_cselect_b32 {st2}, 0, {st2}")
    e(f"s_add_u32 {sdst}, {spos}, {st2}")
    if sxor:
        e(f"s_xor_b32 {sdst}, {sdst}, {sxor}")

def interleave(e, mfmas, others, per=1, lead=0):
    reads = [x for x in others if x.startswith("ds_")]
    salu = [x for x in others if x.startswith("s_")]
    valu = [x for x in others if x.startswith("v_")]
    def ready(x):
        ops = [t.strip(",") for t in x.split()[1:]]
        dst, srcs = ops[0], ops[1:]
        if any(re.search(rf", {dst}( |$)", r) for r in reads): return False
        if any(y.split()[1].strip(",") in srcs for y in salu): return False
        return True
    for _ in range(lead):
        if reads: e(reads.pop(0))
    for k, m in enumerate(mfmas):
        e(m)
        c = 0
        for _ in range(per):
            if reads: e(reads.pop(0)); c += 1
        while c < 2 and valu and ready(valu[0]):
            e(valu.pop(0)); c += 1
        for _ in range(SALU_PER if c else SALU_PER + 1):
            if salu: e(salu.pop(0))
    for x in reads + salu + valu:
        e(x)

def pack_pair(e, dst, c0, c1):
    e(f"v_cvt_pk_bf16_f32 v{dst}, v{c0}, v{c0+1}")
    e(f"v_cvt_pk_bf16_f32 v{dst+1}, v{c0+2}, v{c0+3}")
    e(f"v_cvt_pk_bf16_f32 v{dst+2}, v{c1}, v{c1+1}")
    e(f"v_cvt_pk_bf16_f32 v{dst+3}, v{c1+2}, v{c1+3}")

def next_slot(s="s33"):
    return [f"s_add_u32 {s}, {s}, {SLOT}", f"s_cmp_eq_u32 {s}, {3*SLOT}", f"s_cselect_b32 {s}, 0, {s}"]

class Phase:
    pass

def zero(e, base, n):
    for k in range(0, n, 2): e(f"v_mov_b64 {vr(base+k,2)}, 0")
def mix(e, mf, rd, fill, lead=0, skip=0, cap=2, most=999):
    rd = list(rd)
    for _ in range(lead):
        if rd: e(rd.pop(0))
    for k, m in enumerate(mf):
        e(m)
        c = 0
        if rd: e(rd.pop(0)); c += 1
        while fill and c < cap and k >= skip and most > 0:
            e(fill.pop(0)); c += 1; most -= 1
    for x in rd: e(x)
def consumer(e, tag, P, nst, stampn=None, drain=False, flush=True, pend=None, fill=None, pre=None, post=None):
    def upd():
        return [f"v_add_u32 v{c}, s33, v{b}" for (c, b) in P.addr]
    m0, m1 = P.mfmas(P.F0), P.mfmas(P.F1)
    if pend is None:
        for x in upd(): e(x)
        e("s_barrier")
        if stampn is not None: stamp(e, stampn)
        for r in P.reads(P.F0, 0): e(r)
    else:
        for m in pend[:PREB]: e(m)
        e("s_barrier")
        if fill and EARLY:
            fill = list(fill)
            mix(e, pend[PREB:], P.reads(P.F0, 0), fill, lead=1, skip=14 - PREB, cap=3, most=40)
        else:
            interleave(e, pend[PREB:], P.reads(P.F0, 0), lead=1)
    if fill:
        fill = list(fill)
        for k in range(2):
            e("s_waitcnt lgkmcnt(0)")
            for x in next_slot(): e(x)
            if EARLY: mix(e, m0, P.reads(P.F1, 1), fill, skip=(2 if k == 0 else 0), cap=(3 if k == 0 else 2))
            else: mix(e, m0, P.reads(P.F1, 1), fill, skip=(5 if k == 0 else 0))
            for x in upd(): e(x)
            e("s_waitcnt vmcnt(0) lgkmcnt(0)" if k + 1 == XD else "s_waitcnt lgkmcnt(0)")
            for m in m1[:PREB]: e(m)
            e("s_barrier")
            mix(e, m1[PREB:], P.reads(P.F0, 0), fill, lead=1)
        for x in fill: e(x)
        stamp(e, 3, "b")
        nst -= 2
    e(f"s_mov_b32 s36, {nst}")
    e(f"s_branch L_{tag}_mid")
    for nm, hk in (("pre", pre), ("post", post)):
        if hk:
            e(f"L_{tag}_{nm}:")
            if nm == "pre": stamp(e, 5, "b")
            if nm == "post": stamp(e, 5, "c")
            for x in hk[1]: e(x)
            if nm == "pre": stamp(e, 3, "c")
            if nm == "post": stamp(e, 3, "d")
            e(f"s_branch L_{tag}_{nm}b")
    e(f"L_{tag}_top:")
    for k, m in enumerate(m1[:PREB]):
        e(m)
        if k == 0 and pre:
            e(f"s_cmp_eq_u32 s36, {pre[0]}\ns_cbranch_scc1 L_{tag}_pre\nL_{tag}_preb:")
    if post: e(f"s_cmp_eq_u32 s36, {post[0]}")
    e("s_barrier")
    if post: e(f"s_cbranch_scc1 L_{tag}_post\nL_{tag}_postb:")
    interleave(e, m1[PREB:], P.reads(P.F0, 0), lead=1)
    e(f"L_{tag}_mid:")
    e("s_waitcnt lgkmcnt(0)")
    tail = next_slot() + ["s_sub_u32 s36, s36, 1", "s_cmp_lg_u32 s36, 0"] + upd()
    interleave(e, m0, P.reads(P.F1, 1) + tail)
    e("s_waitcnt vmcnt(0) lgkmcnt(0)" if drain else "s_waitcnt lgkmcnt(0)")
    e(f"s_cbranch_scc1 L_{tag}_top")
    if flush:
        for m in m1: e(m)
    return m1

FAST = True
class Rec:
    def __init__(self): self.L = []
    def __call__(self, s): self.L += [x.strip() for x in s.split("\n") if x.strip()]
def fill_loads(e, groups, fills):
    for g, f in zip(groups, fills):
        for x in g + f: e(x)
def split_fill(ins, n):
    out, per = [], -(-len(ins) // n)
    ins = list(ins)
    for k in range(n):
        run = ins[:per]; ins = ins[per:]
        while ins and ins[0].split()[0] in ("s_cselect_b32", "s_addc_u32"):
            run.append(ins.pop(0))
        out.append(run)
    out[-1] += ins
    return out
def emit(e, groups):
    for g in groups:
        for x in g: e(x)

def snake(na, nb):
    return [(a, (b if a % 2 == 0 else nb - 1 - b)) for a in range(na) for b in range(nb)]

def t_addr(e, kind, swt, dst):
    e("v_lshrrev_b32 v3, 4, v2\nv_and_b32 v4, 15, v2\nv_lshrrev_b32 v5, 2, v4\nv_and_b32 v6, 3, v4")
    e(f"v_lshlrev_b32 v7, {2 if kind == 'F' else 3}, v3\nv_add_u32 v7, v7, v5\nv_lshlrev_b32 v7, 8, v7")
    e("v_lshlrev_b32 v6, 3, v6\nv_add_u32 v7, v7, v6")
    e("v_and_b32 v6, 1, v3\nv_lshlrev_b32 v6, 2, v6\nv_or_b32 v6, v6, v5")
    e(f"s_lshl_b32 s26, {swt}, 2")
    e("v_xor_b32 v6, s26, v6")
    for q in range(4):
        e(f"v_xor_b32 v5, {q}, v6\nv_lshlrev_b32 v5, 5, v5\nv_add_u32 v{dst+q}, v7, v5")

def t_voff(e, kind, trow, scol, dst):
    e("v_lshrrev_b32 v3, 4, v2\nv_and_b32 v4, 15, v2")
    if kind == "F":
        e("s_and_b32 s26, s30, 1\ns_lshl_b32 s26, s26, 2")
    else:
        e("s_and_b32 s26, s30, 2\ns_lshl_b32 s26, s26, 1")
    e("v_or_b32 v5, s26, v3\nv_lshlrev_b32 v5, 1, v5\nv_xor_b32 v5, v5, v4\nv_lshlrev_b32 v5, 4, v5")
    e("s_lshl_b32 s26, s30, 2")
    e(f"v_add_u32 v6, s26, v3\nv_mul_u32_u24 v6, {trow}, v6")
    e(f"v_add_u32 v5, v5, v6")
    if scol: e(f"v_add_u32 v{dst}, {scol}, v5")
    else: e(f"v_mov_b32 v{dst}, v5")

def t_loads(vreg, srdn, soff, unit, trow):
    out = []
    for i in range(4):
        if i == 0:
            g = [f"s_add_u32 s44, s33, s31", f"s_add_u32 m0, s44, {unit*UNIT}", "s_nop 0"]
        else:
            g = [f"s_add_u32 m0, s44, {unit*UNIT + i*4096}", f"s_add_u32 {soff}, {soff}, {16*trow}"]
        g.append(f"buffer_load_dwordx4 v{vreg}, s[{srdn}:{srdn+3}], {soff} offen lds")
        out.append(g)
    return out

def f_loads(vreg, srdn, soff, unit):
    out = []
    for i in range(4):
        g = ["s_add_u32 s3, s33, s32", f"s_add_u32 m0, s3, {unit*UNIT}", "s_nop 0"] if i == 0 else []
        g.append(f"buffer_load_dwordx4 v{vreg}, s[{srdn}:{srdn+3}], {soff} offen offset:{i*1024} lds")
        out.append(g)
    return out

CPF = 0
CPFAT = 19
CPFC = 11
_ct = [0]
def code_touch(e, halves=(0, 1, 2, 3)):
    _ct[0] += 1
    lab = f"L_ct{_ct[0]}"
    e("s_getpc_b64 s[76:77]")
    e(f"{lab}:")
    e(f"s_sub_u32 s76, s76, {lab}-{NAME}\ns_subb_u32 s77, s77, 0")
    e(f"s_mov_b32 s78, L_code_end-{NAME}\ns_mov_b32 s79, 0x20000")
    e("v_lshlrev_b32 v27, 7, v2")
    if halves == "wave":
        e("s_lshl_b32 s3, s30, 13")
        e("buffer_load_dword v23, v27, s[76:79], s3 offen")
        return
    for h in halves:
        e(f"s_movk_i32 s3, {h*8192}")
        e("buffer_load_dword v23, v27, s[76:79], s3 offen")

def make_tag(e):
    e("s_waitcnt lgkmcnt(0)")
    e("s_mul_i32 s4, s6, 0x9e3779b1\ns_add_u32 s4, s4, 0x7f4a7c15")
    e("s_mul_i32 s5, s7, 0x85ebca6b\ns_add_u32 s5, s5, 0xc2b2ae35")
def flag_store(e, soff, off=0):
    e("v_mov_b32 v24, s4\nv_mov_b32 v25, s5\nv_mov_b32 v26, 0")
    e("s_mov_b64 exec, 1")
    e(f"buffer_store_dwordx2 v[24:25], v26, s[48:51], {soff} offen offset:{off} sc1")
    e("s_mov_b64 exec, -1")
def flag_read(e, vaddr, soff):
    e(f"buffer_load_dwordx2 v[10:11], v{vaddr}, s[48:51], {soff} offen sc1")
def flag_mask(e):
    e("v_cmp_eq_u64 vcc, s[4:5], v[10:11]")
PIPE = 0
def poll_pipe(e, tag, vaddr, soff, check):
    e(f"s_mov_b32 s35, {SPIN}")
    for k in range(PIPE - 1):
        e(f"buffer_load_dwordx2 v[{32+2*k}:{33+2*k}], v{vaddr}, s[48:51], {soff} offen sc1")
        e(f"s_sleep {PSLEEP}")
    e(f"L_{tag}_rd:")
    for k in range(PIPE):
        kk = (k - 1) % PIPE
        e(f"buffer_load_dwordx2 v[{32+2*kk}:{33+2*kk}], v{vaddr}, s[48:51], {soff} offen sc1")
        e(f"s_waitcnt vmcnt({PIPE-1})")
        check(32 + 2*k)
        e(f"s_sleep {PSLEEP}")
    e("s_sub_u32 s35, s35, 1\ns_cmp_lg_u32 s35, 0")
    e(f"s_cbranch_scc1 L_{tag}_rd")
def flag_wait_all(e, tag, vaddr, soff, preloaded=False):
    if PIPE and preloaded:
        def chk(r):
            e(f"v_cmp_ne_u64 vcc, s[4:5], v[{r}:{r+1}]")
            e(f"s_cbranch_vccz L_{tag}_ok")
        chk(10)
        poll_pipe(e, tag, vaddr, soff, chk)
        e(f"L_{tag}_ok:")
        return
    e(f"s_mov_b32 s35, {SPIN}")
    if preloaded: e(f"s_branch L_{tag}_chk")
    e(f"L_{tag}_rd:")
    flag_read(e, vaddr, soff)
    e("s_waitcnt vmcnt(0)")
    e(f"L_{tag}_chk:")
    e("v_cmp_ne_u64 vcc, s[4:5], v[10:11]")
    e(f"s_cbranch_vccz L_{tag}_ok")
    e(f"s_sleep {PSLEEP}")
    e("s_sub_u32 s35, s35, 1\ns_cmp_lg_u32 s35, 0")
    e(f"s_cbranch_scc1 L_{tag}_rd")
    e(f"L_{tag}_ok:")
def lane_flag_addr(e, dst, n):
    e(f"v_min_u32 v{dst}, {n-1}, v2\nv_lshlrev_b32 v{dst}, 7, v{dst}")

DQ_Q, DQ_SC, DQ_ZR, DQ_T = 160, 192, 196, 200
def dq_lanes(e):
    srd(e, 40, P_QW, 0, D*F*4)
    srd(e, 76, P_SC, 0, 32*F*2)
    srd(e, 16, P_ZR, 0, 32*F*2)
    e("v_lshrrev_b32 v3, 3, v2\nv_and_b32 v4, 7, v2")
    e(f"v_mul_u32_u24 v5, {F*4}, v3\nv_lshlrev_b32 v6, 4, v4\nv_add_u32 v21, v5, v6")
    e("v_lshlrev_b32 v22, 3, v4")
def dq_lanes2(e):
    e("v_lshrrev_b32 v1, 2, v4\nv_lshlrev_b32 v1, 13, v1\nv_and_b32 v6, 3, v4\nv_lshlrev_b32 v6, 8, v6")
    e("v_lshlrev_b32 v3, 4, v3\nv_add3_u32 v1, v1, v6, v3")
    srd(e, 12, P_WS, WS_WQ, SZ_WQ)
def dq_loads(e, part):
    no = 2 if part == 0 else 4
    e(f"s_and_b32 s38, s20, 1\ns_mul_i32 s38, s38, {14 if part else LE}\ns_lshr_b32 s35, s23, 1\ns_add_u32 s38, s38, s35")
    if part: e(f"s_cmp_lt_u32 s38, {LE - 14}\ns_cselect_b32 s35, 14, 28\ns_add_u32 s38, s38, s35\ns_lshl_b32 s39, s30, 1")
    else: e("s_mov_b32 s39, s25")
    e("s_and_b32 s47, s22, 6\ns_and_b32 s35, s23, 1\ns_or_b32 s47, s47, s35")
    e("s_lshl_b32 s26, s47, 3\ns_add_u32 s26, s26, s39")
    e(f"s_mul_i32 s27, s26, {16*F*4}\ns_lshl_b32 s35, s38, 8\ns_add_u32 s27, s27, s35")
    e(f"s_lshr_b32 s26, s26, 1\ns_mul_i32 s26, s26, {F*2}\ns_lshl_b32 s35, s38, 7\ns_add_u32 s26, s26, s35")
    for o in range(no):
        for t in range(2):
            e(f"buffer_load_dwordx4 {vr(DQ_Q+8*o+4*t,4)}, v21, s[40:43], s27 offen offset:{t*128} {QAUX}")
        if o == 0:
            for t in range(2):
                e(f"buffer_load_dwordx2 {vr(DQ_SC+2*t,2)}, v22, s[76:79], s26 offen offset:{t*64}")
                e(f"buffer_load_dwordx2 {vr(DQ_ZR+2*t,2)}, v22, s[16:19], s26 offen offset:{t*64}")
        if o < no - 1: e(f"s_add_u32 s27, s27, {8*F*4}")
    e("s_mul_i32 s47, s47, 56\ns_add_u32 s47, s47, s38\ns_lshl_b32 s47, s47, 14\ns_lshl_b32 s39, s39, 10\ns_add_u32 s47, s47, s39")
def dq_math(e, part, extra=0, octs=None):
    no = 2 if part == 0 else 4
    Q, SC, ZR, T = DQ_Q, DQ_SC, DQ_ZR, DQ_T
    for o in (octs if octs is not None else range(no)):
        if octs is None: e(f"s_waitcnt vmcnt({2*(no-1-o) + o + extra})")
        if o == 0:
            for n in range(4):
                e(f"v_lshlrev_b32 v{T+2*n}, 16, v{SC+n}\nv_and_b32 v{T+2*n+1}, 0xffff0000, v{SC+n}")
                e(f"v_lshlrev_b32 v{T+8+2*n}, 16, v{ZR+n}\nv_and_b32 v{T+8+2*n+1}, 0xffff0000, v{ZR+n}")
        q = Q + 8*o
        for n in range(8): e(f"v_cvt_f32_i32 v{q+n}, v{q+n}")
        for n in range(8): e(f"v_cvt_pk_bf16_f32 v{q+n}, 0, v{q+n}")
        for n in range(8): e(f"v_sub_f32 v{q+n}, v{q+n}, v{T+8+n}")
        for n in range(8): e(f"v_cvt_pk_bf16_f32 v{q+n}, 0, v{q+n}")
        for n in range(8): e(f"v_mul_f32 v{q+n}, v{q+n}, v{T+n}")
        for n in range(4): e(f"v_cvt_pk_bf16_f32 v{q+n}, v{q+2*n}, v{q+2*n+1}")
        e(f"buffer_store_dwordx4 {vr(q,4)}, v1, s[12:15], s47 offen offset:{(o>>1)*1024 + (o&1)*128} {STAUX}")

def main_consumer(e):
    if CPRIO: e(f"s_setprio {CPRIO}")
    P = Phase(); P.F0, P.F1 = ACC + 128, ACC + 176
    e("s_lshr_b32 s30, s25, 1\ns_and_b32 s31, s25, 1")
    t_addr(e, "F", "s31", 16)
    e(f"s_lshl_b32 s26, s30, 12\ns_add_u32 s26, s26, {UNIT}\nv_lshlrev_b32 v5, 4, v2\nv_add_u32 v20, s26, v5")
    P.addr = [(8+q, 16+q) for q in range(4)] + [(12, 20)]
    def reads(Fb, ks):
        out = []
        for a in range(4):
            out.append(f"ds_read_b128 {vr(Fb+4*a,4)}, v12 offset:{ks*8192 + a*1024}")
            for t in range(2):
                out.append(f"ds_read_b64_tr_b16 {vr(Fb+16+4*a+2*t,2)}, v{8+a} offset:{ks*4096 + t*8192}")
        return out
    def mf_s(acc):
        return lambda Fb: [f"v_mfma_f32_16x16x32_bf16 {vr(acc+16*a+4*b,4)}, {vr(Fb+4*a,4)}, {vr(Fb+16+4*b,4)}, {vr(acc+16*a+4*b,4)}"
                           for a, b in snake(4, 4)]
    def reads_l(Fb, ks):
        return reads(Fb, ks) + [f"ds_read_b128 {vr(Fb+32+4*a,4)}, v12 offset:{UNIT + ks*8192 + a*1024}" for a in range(4)]
    def mf_l(Fb):
        out = []
        for a, b in snake(8, 4):
            acc, src = (ACC + 64 + 16*a, Fb + 4*a) if a < 4 else (ACC + 16*(a-4), Fb + 32 + 4*(a-4))
            out.append(f"v_mfma_f32_16x16x32_bf16 {vr(acc+4*b,4)}, {vr(src,4)}, {vr(Fb+16+4*b,4)}, {vr(acc+4*b,4)}")
        return out
    zero(e, ACC, 128)
    dq_math(e, 0)
    srd(e, 16, P_WS, WS_WV, SZ_WQ)
    srd(e, 8, P_WS, WS_PX, SZ_WQ)
    e("v_lshrrev_b32 v3, 4, v2\nv_and_b32 v4, 15, v2")
    e(f"s_lshl_b32 s44, s22, 8\ns_lshl_b32 s45, s25, 6\ns_add_u32 s44, s44, s45\ns_mul_i32 s44, s44, {F*2}")
    e("s_lshl_b32 s45, s23, 8\ns_add_u32 s44, s44, s45")
    for b in range(1, 4): e(f"s_add_u32 s{44+b}, s44, {16*b*F*2}")
    e(f"v_and_b32 v5, 7, v4\nv_mul_u32_u24 v5, {F*2}, v5")
    e("v_lshlrev_b32 v6, 4, v3\nv_and_b32 v7, 8, v4\nv_lshlrev_b32 v7, 3, v7\nv_add3_u32 v14, v5, v6, v7")
    e(f"v_add_u32 v15, {8*F*2}, v14")
    e("v_lshlrev_b32 v5, 2, v3\nv_sub_u32 v5, v4, v5")
    e("v_and_b32 v6, 1, v5\nv_lshlrev_b32 v6, 4, v6\nv_mov_b32 v7, 0x3f80\nv_lshlrev_b32 v6, v6, v7\nv_lshrrev_b32 v5, 1, v5")
    e("v_mov_b32 v7, 0\nv_cmp_eq_u32 vcc, 0, v5\ns_nop 1\nv_cndmask_b32 v24, v7, v6, vcc")
    e("v_cmp_eq_u32 vcc, 1, v5\ns_nop 1\nv_cndmask_b32 v25, v7, v6, vcc")
    e("v_lshlrev_b32 v13, 4, v2")
    e("s_lshl_b32 s52, s23, 3\ns_add_u32 s52, s52, s22\ns_lshl_b32 s52, s52, 15\ns_lshl_b32 s26, s25, 13\ns_add_u32 s52, s52, s26")
    e("s_add_u32 s53, s52, 4096\ns_xor_b32 s54, s52, 0x8000\ns_xor_b32 s55, s53, 0x8000")
    e("s_waitcnt vmcnt(0) lgkmcnt(0)\ns_barrier")
    e("v_mov_b64 v[22:23], 0\nv_mov_b64 v[26:27], 0")
    P.reads, P.mfmas = reads_l, mf_l
    e(f"s_and_b32 s26, s20, 1\ns_cselect_b32 s58, {56 - TS - LE}, {LE}")
    pend = consumer(e, "gl", P, "s58", stampn=1, flush=False)
    stamp(e, 5, "a")
    P.reads, P.mfmas = reads, mf_s(ACC)
    fill, RX = [], []
    for u in range(2):
        for b in range(4):
            c0, c1 = ACC + 64 + 16*(2*u) + 4*b, ACC + 64 + 16*(2*u+1) + 4*b
            fill += [f"v_cvt_pk_bf16_f32 v{c0}, v{c0}, v{c0+1}", f"v_cvt_pk_bf16_f32 v{c0+1}, v{c0+2}, v{c0+3}",
                     f"v_cvt_pk_bf16_f32 v{c0+2}, v{c1}, v{c1+1}", f"v_cvt_pk_bf16_f32 v{c0+3}, v{c1+2}, v{c1+3}",
                     f"buffer_store_dwordx4 {vr(c0,4)}, v13, s[8:11], s{54+u} offen offset:{b*1024} {STAUX}"]
            RX.append((P.F0 if u == 0 else P.F1) + 32 + 4*b)
    fill += [f"v_mov_b64 {vr(ACC+64+k,2)}, 0" for k in list(range(16, 32, 2)) + list(range(48, 64, 2)) + list(range(0, 16, 2)) + list(range(32, 48, 2))]
    rx = [f"buffer_load_dwordx4 {vr(RX[4*u+b],4)}, v13, s[8:11], s{52+u} offen offset:{b*1024} sc1" for u in range(2) for b in range(4)]
    consumer(e, "gs", P, TS, pend=pend, fill=fill, pre=(TS - XD, ["s_waitcnt vmcnt(0)"]) if XD > 2 else None, post=(XL, rx))
    stamp(e, 5, "d")
    e("s_waitcnt vmcnt(0)")
    for b in range(4):
        for u in range(2):
            for h in range(2):
                c = ACC + 16*(2*u+h) + 4*b
                e(f"v_mfma_f32_16x16x32_bf16 {vr(c,4)}, {vr(24-2*h,4)}, {vr(RX[4*u+b],4)}, {vr(c,4)}")
    stamp(e, 2)
    e("s_lshl_b32 s40, s23, 5\ns_lshl_b32 s41, s22, 2\ns_add_u32 s40, s40, s41\ns_lshl_b32 s41, s30, 1\ns_add_u32 s40, s40, s41")
    e("s_lshl_b32 s40, s40, 13\ns_lshl_b32 s42, s31, 12\ns_add_u32 s40, s40, s42")
    e("s_add_u32 s41, s40, 8192")
    e("s_mov_b32 s43, s33")
    for x in next_slot("s43"): e(x)
    e("s_cmp_eq_u32 s30, 0\ns_cselect_b32 s43, s33, s43\ns_add_u32 s43, s43, s42")
    e("v_and_b32 v3, 0x33, v2\nv_lshrrev_b32 v4, 1, v2\nv_and_b32 v4, 4, v4\nv_or_b32 v3, v3, v4\nv_lshlrev_b32 v3, 4, v3")
    e("v_and_b32 v4, 4, v2\nv_lshlrev_b32 v4, 8, v4\nv_or_b32 v3, v3, v4")
    e("v_add_u32 v4, s43, v3")
    n = 0
    for u in range(2):
        for b in range(4):
            d = P.F0 + 4*n; n += 1
            pack_pair(e, d, ACC + 16*(2*u) + 4*b, ACC + 16*(2*u+1) + 4*b)
            e(f"buffer_store_dwordx4 {vr(d,4)}, v3, s[16:19], s{40+u} offen offset:{(b>>1)*2048 + (b&1)*128} {STAUX}")
            e(f"ds_write_b128 v4, {vr(d,4)} offset:{u*8192 + (b>>1)*2048 + (b&1)*128}")
    zero(e, ACC, 64)
    srd(e, 16, P_OUT, 0, S*F*2)
    e("v_lshlrev_b32 v16, 4, v2")
    e(f"s_lshl_b32 s26, s25, 12\ns_add_u32 s26, s26, {UNIT}\nv_add_u32 v17, s26, v16")
    P.addr = [(9, 17), (8, 16)]
    def reads(Fb, ks):
        xr = [f"ds_read_b128 {vr(Fb+32+4*b,4)}, v9 offset:{ks*UNIT + b*1024}" for b in range(4)]
        wv = [f"ds_read_b128 {vr(Fb+4*a,4)}, v8 offset:{ks*8192 + a*1024}" for a in range(8)]
        return xr + wv
    def mfmas(Fb):
        return [f"v_mfma_f32_16x16x32_bf16 {vr(ACC+16*a+4*b,4)}, {vr(Fb+4*a,4)}, {vr(Fb+32+4*b,4)}, {vr(ACC+16*a+4*b,4)}"
                for a, b in snake(8, 4)]
    P.reads, P.mfmas = reads, mfmas
    e("s_waitcnt lgkmcnt(0)")
    consumer(e, "gc", P, 16 - TAIL, stampn=3, drain=True, flush=(TAIL == 0))
    def out_ops(Ln, temps):
        ops = []
        for b in range(4):
            d = temps[b % len(temps)]
            for h in range(2):
                u = 2*Ln + h
                c0, c1 = ACC + 16*(2*u) + 4*b, ACC + 16*(2*u+1) + 4*b
                ops += [f"v_cvt_pk_bf16_f32 v{d+4*h}, v{c0}, v{c0+1}", f"v_cvt_pk_bf16_f32 v{d+4*h+1}, v{c0+2}, v{c0+3}",
                        f"v_cvt_pk_bf16_f32 v{d+4*h+2}, v{c1}, v{c1+1}", f"v_cvt_pk_bf16_f32 v{d+4*h+3}, v{c1+2}, v{c1+3}"]
            ops += [f"v_mov_b32 v{d+8+j}, v{d+j}" for j in range(4)]
            ops += [f"v_mov_b32_dpp v{d+j}, v{d+4+j} row_ror:8 row_mask:0xf bank_mask:0xc" for j in range(4)]
            ops += [f"v_mov_b32_dpp v{d+4+j}, v{d+8+j} row_ror:8 row_mask:0xf bank_mask:0x3" for j in range(4)]
            ops += [f"buffer_store_dwordx4 {vr(d,4)}, v14, s[16:19], s{44+b} offen offset:{Ln*128} {OUTAUX}",
                    f"buffer_store_dwordx4 {vr(d+4,4)}, v15, s[16:19], s{44+b} offen offset:{Ln*128} {OUTAUX}"]
        return ops
    if TAIL:
        for t in range(1, TAIL):
            for x in next_slot(): e(x)
            e(f"v_add_u32 v{8+2*t}, s33, v16\nv_add_u32 v{9+2*t}, s33, v17")
        seq = [(g, t, ks) for g in range(2) for t in range(TAIL) for ks in range(2)]
        def hreads(Fb, g, t, ks):
            out = []
            for k in range(4):
                out.append(f"ds_read_b128 {vr(Fb+16+4*k,4)}, v{9+2*t} offset:{ks*UNIT + k*1024}")
                out.append(f"ds_read_b128 {vr(Fb+4*k,4)}, v{8+2*t} offset:{ks*8192 + (4*g+k)*1024}")
            return out
        def hmfmas(Fb, g):
            return [f"v_mfma_f32_16x16x32_bf16 {vr(ACC+16*(4*g+a)+4*b,4)}, {vr(Fb+4*a,4)}, {vr(Fb+16+4*b,4)}, {vr(ACC+16*(4*g+a)+4*b,4)}"
                    for a, b in snake(4, 4)]
        pend = P.mfmas(P.F1)
        fill = out_ops(0, [P.F0 + 32, P.F1 + 32])
        for n, (g, t, ks) in enumerate(seq + [(None, None, None)]):
            Fb = P.F0 if n % 2 == 0 else P.F1
            rd = hreads(Fb, g, t, ks) if g is not None else []
            usefill = n >= 2*TAIL + 1
            k0 = 0
            if g == 0 and ks == 0:
                for m in pend[:PREB]: e(m)
                e("s_barrier")
                k0 = PREB
                e(rd.pop(0))
            for k, m in enumerate(pend[k0:]):
                e(m)
                c = 0
                if rd: e(rd.pop(0)); c += 1
                if usefill and (n > 2*TAIL + 1 or k >= 4):
                    while fill and c < TFILL:
                        e(fill.pop(0)); c += 1
            if g is not None:
                e("s_waitcnt lgkmcnt(0)")
                pend = hmfmas(Fb, g)
        stamp(e, 5)
        for x in fill: e(x)
        e("s_nop 7")
        for x in out_ops(1, [P.F0, P.F0 + 12, P.F1, P.F1 + 12]): e(x)
    else:
        stamp(e, 5)
        e("s_nop 7")
        for Ln in range(2):
            for x in out_ops(Ln, [P.F0 + 48*Ln + 12*k for k in range(4)]): e(x)
    stamp_flush(e, "cons")
    e("s_endpgm")

PPRIO = 0
CPRIO = 0
def main_producer(e):
    if TRACE:
        e("v_mov_b32 v40, 0\nv_mov_b32 v41, 0\nv_mov_b32 v42, 0\nv_mov_b32 v43, 0\ns_mov_b32 s100, 0\ns_mov_b64 s[96:97], 0\ns_mov_b64 s[98:99], 0")
        e.tr = True
    if PPRIO: e(f"s_setprio {PPRIO}")
    e("s_sub_u32 s30, s25, 4\ns_lshl_b32 s31, s30, 10\ns_lshl_b32 s32, s30, 12")
    srd(e, 8, P_V, 0, F*F*2)
    e("s_lshl_b32 s27, s23, 8")
    t_voff(e, "F", F*2, "s27", 8)
    e("v_lshlrev_b32 v5, 4, v2\nv_add_u32 v9, s32, v5")
    e(f"s_mul_i32 s28, s22, {112*8192}\ns_xor_b32 s29, s22, 1\ns_mul_i32 s29, s29, {112*8192}")
    e(f"s_and_b32 s53, s20, 1\ns_cselect_b32 s43, {56 - TS - LE}, {LE}\ns_mul_i32 s53, s53, {LE}")
    def prep():
        e("s_sub_u32 s46, s36, s59")
        chunk_of_pos(e, "s46", "s24", "s37", "s38", "s39", "s55", LEAD)
        e("s_add_u32 s37, s37, s53")
        e(f"s_mul_i32 s45, s37, {64*F*2}")
        e("s_lshl_b32 s38, s37, 14\ns_add_u32 s46, s38, s29\ns_add_u32 s58, s38, s28")
    TL = t_loads(8, 8, "s45", 0, F*2)
    FO, FI2, FI1 = f_loads(9, 12, "s46", 1), f_loads(9, 12, "s58", 2), f_loads(9, 12, "s58", 1)
    LL, S1, S2 = FO + FI2 + TL, FO + TL, FI1 + TL
    def adv():
        for x in next_slot(): e(x)
        e("s_add_u32 s36, s36, 1")
    lane_flag_addr(e, 13, 28)
    e("s_mov_b32 s59, 0\ns_mov_b32 s55, 11\ns_mov_b32 s52, s43")
    srd(e, 40, P_QW, 0, D*F*4)
    e(f"s_mul_i32 s34, s22, {28*128}")
    e("s_lshl_b32 s54, s23, 7\ns_add_u32 s54, s54, s34")
    dq_math(e, 0)
    make_tag(e)
    e("s_waitcnt vmcnt(0)")
    e("s_barrier")
    stamp(e, 2)
    e("s_cmp_lg_u32 s30, 0\ns_cbranch_scc1 L_pa_nf")
    flag_store(e, "s54")
    e("L_pa_nf:")
    e("s_mov_b32 s36, 0")
    for _ in range(2):
        prep(); emit(e, TL); adv()
    flag_read(e, 13, "s34")
    e(f"s_mov_b32 s36, 0\ns_mov_b32 s33, 0")
    prep()
    e("s_waitcnt vmcnt(0)")
    flag_wait_all(e, "fwq", 13, "s34", preloaded=True)
    stamp(e, 1)
    emit(e, FO + FI2); adv()
    prep(); emit(e, FO + FI2); adv()
    e(f"s_and_b32 s34, s22, 6\ns_mul_i32 s34, s34, {28*128}\ns_add_u32 s34, s34, 64")
    lane_flag_addr(e, 13, 56)
    fl = [-1] * 8
    plan = PLAN
    nit = max(plan) + 3
    for it in range(nit):
        prep()
        keep = len(fl) - max([k + 1 for k, t in enumerate(fl) if t == it - 2 or (it == nit - 1 and t == "w")] + [0])
        e(f"s_waitcnt vmcnt({keep})\ns_barrier")
        if it == nit - 1:
            e("s_cmp_lg_u32 s30, 0\ns_cbranch_scc1 L_pa_nf2")
            flag_store(e, "s54", 64)
            e("L_pa_nf2:")
        if it in plan and DQMIX:
            e(f"s_waitcnt vmcnt({min(63, len(fl) - max(k + 1 for k, t in enumerate(fl) if t == 'q'))})")
            r = Rec(); dq_math(r, 1, octs=plan[it])
            va = [x for x in r.L if x.startswith("v_")]; stv = [x for x in r.L if not x.startswith("v_")]
            per = -(-len(va) // 11)
            fill_loads(e, LL, [va[k*per:(k+1)*per] for k in range(12)])
            for x in stv: e(x)
            adv(); fl += [it] * 12 + ["w"] * len(plan[it])
            continue
        emit(e, LL); adv(); fl += [it] * 12
        if it == DQ0:
            dq_loads(e, 1); fl += ["q"] * 12
        if it in plan:
            e(f"s_waitcnt vmcnt({len(fl) - max(k + 1 for k, t in enumerate(fl) if t == 'q')})")
            dq_math(e, 1, octs=plan[it]); fl += ["w"] * len(plan[it])
    assert 2 + nit <= CHK2
    if 2 + nit < CHK2:
        e("L_gl_ptop0:")
        prep()
        e("s_waitcnt vmcnt(12)\ns_barrier")
        emit(e, LL); adv()
        e(f"s_cmp_lt_u32 s36, {CHK2}\ns_cbranch_scc1 L_gl_ptop0")
    prep()
    e("s_waitcnt vmcnt(12)\ns_barrier")
    flag_read(e, 13, "s34")
    emit(e, LL); adv()
    assert CHK2 == 13
    e("s_mov_b32 s43, s52\ns_mov_b32 s59, 14\ns_add_u32 s53, s53, 14\ns_sub_u32 s55, s43, 17")
    prep()
    e("s_waitcnt vmcnt(12)\ns_barrier")
    flag_wait_all(e, "fwq2", 13, "s34", preloaded=True)
    emit(e, LL); adv()
    e(f"v_min_u32 v13, 15, v2\nv_lshlrev_b32 v14, 7, v13")
    e(f"s_lshl_b32 s26, s23, 10\ns_add_u32 s26, s26, {FL_WV}\ns_lshl_b32 s27, s22, 10\ns_add_u32 s27, s27, {FL_XR - 1024}")
    e("v_mov_b32 v3, s26\nv_mov_b32 v4, s27\nv_cmp_gt_u32 vcc, 8, v13\ns_nop 1\nv_cndmask_b32 v3, v4, v3, vcc\nv_add_u32 v13, v14, v3")
    e("s_lshl_b32 s54, s22, 7\ns_add_u32 s54, s54, s26")
    e(f"s_add_u32 s40, s54, {FL_PX - FL_WV}\ns_xor_b32 s41, s40, 128")
    e("v_mov_b32 v3, s40\nv_cmp_gt_u32 vcc, 16, v2\ns_nop 1\nv_cndmask_b32 v13, v3, v13, vcc")
    srd(e, 16, P_WS, WS_XR, SZ_XR)
    e("s_lshl_b32 s76, s22, 19\ns_lshl_b32 s42, s23, 18\ns_and_b32 s77, s23, 3\ns_lshl_b32 s27, s22, 1")
    e("s_mov_b32 s52, 0\ns_mov_b32 s34, 0")
    e("L_gl_ptop:")
    prep()
    e("s_waitcnt vmcnt(12)\ns_barrier")
    if CPF & 16:
        e(f"s_cmp_lg_u32 s36, {CPFAT}\ns_cbranch_scc1 L_nct5")
        code_touch(e, "wave")
        e("L_nct5:")
    emit(e, LL); adv()
    e("s_cmp_lt_u32 s36, s43\ns_cbranch_scc1 L_gl_ptop")
    e(f"s_mov_b32 s36, 0\ns_mov_b32 s59, 0\ns_mov_b32 s53, {56 - TS}\ns_mov_b32 s55, {TS - 3}")
    def prepc(own=None, pos="s36"):
        if own is None:
            chunk_of_pos(e, pos, "s77", "s37", "s38", "s39", 14, LEADC)
            e("s_add_u32 s37, s37, 2\ns_and_b32 s38, s37, 6\ns_lshl_b32 s38, s38, 1\ns_add_u32 s38, s38, s27\ns_and_b32 s38, s38, 15")
            e("s_lshr_b32 s39, s37, 2\ns_and_b32 s39, s39, 2\ns_xor_b32 s38, s38, s39\ns_and_b32 s37, s37, 1\ns_or_b32 s37, s37, s38")
        else:
            e(f"s_add_u32 s37, s27, {own}")
        e("s_lshl_b32 s45, s37, 14\ns_add_u32 s45, s45, s42")
        e("s_lshl_b32 s46, s37, 15\ns_add_u32 s46, s46, s76\ns_add_u32 s47, s46, 16384")
    WL, X0, X1 = f_loads(9, 12, "s45", 0), f_loads(9, 16, "s46", 1), f_loads(9, 16, "s47", 2)
    def need(tag, xr_only=False, px=False):
        if px: e("s_mov_b32 s38, 0x10000")
        else: e(f"s_lshr_b32 s38, s37, 1\ns_lshl_b32 s38, {0x100 if xr_only else 0x101}, s38")
        e("s_andn2_b32 s39, s38, s52")
        e(f"s_cbranch_scc0 L_{tag}_ok")
        e(f"s_mov_b32 s35, {SPIN}")
        e(f"L_{tag}_rd:")
        flag_read(e, 13, "s34")
        e("s_waitcnt vmcnt(0)")
        flag_mask(e)
        e("s_nop 1\ns_mov_b32 s52, vcc_lo")
        e("s_andn2_b32 s39, s38, s52")
        e(f"s_cbranch_scc0 L_{tag}_ok")
        e(f"s_sleep {PSLEEP}")
        e("s_sub_u32 s35, s35, 1\ns_cmp_lg_u32 s35, 0")
        e(f"s_cbranch_scc1 L_{tag}_rd")
        e(f"L_{tag}_ok:")
    def pxflag(bar):
        if bar == XD:
            e("s_cmp_lg_u32 s30, 0\ns_cbranch_scc1 L_px_nf")
            flag_store(e, "s41")
            e("L_px_nf:")
    npl = 0
    prev = 12
    for t in range(npl, TS):
        prep()
        e(f"s_waitcnt vmcnt({prev})\ns_barrier")
        pxflag(t - 2)
        k = t - (TS - 3)
        if k == 0:
            flag_mask(e)
            e("s_nop 1\ns_mov_b32 s52, vcc_lo")
        if k == -1 or k == 2: flag_read(e, 13, "s34")
        emit(e, S2); prev = 8
        if k >= 0 and not LATEX:
            if k < 2: prepc(k)
            else: prepc(None, "s34")
            need(f"fx{k}", True)
            emit(e, X1); prev = 12
        adv()
    XA = (X0 + X1) if LATEX else X0
    nx = len(XA)
    srd(e, 12, P_WS, WS_WV, SZ_WQ)
    stamp(e, 3)
    prepc(0)
    def pxcheck():
        e("s_cmp_lg_u32 s30, 0\ns_cbranch_scc1 L_fpx_ok")
        flag_mask(e)
        e("s_nop 1\ns_mov_b32 s52, vcc_lo")
        need("fpx", px=True)
    e(f"s_waitcnt vmcnt({prev})")
    if XL == 2: pxcheck()
    e("s_barrier")
    if LATEX: need("fx0", True)
    if XL == 1: flag_read(e, 13, "s34")
    emit(e, XA)
    for x in next_slot(): e(x)
    prepc(1)
    e(f"s_waitcnt vmcnt({nx})")
    if XL == 1: pxcheck()
    e("s_barrier")
    emit(e, XA)
    for x in next_slot(): e(x)
    e("s_mov_b32 s36, 0")
    prepc()
    if LATEX: need("fx2", True)
    e(f"s_waitcnt vmcnt({nx})\ns_barrier")
    emit(e, XA)
    e(f"s_waitcnt vmcnt({nx})\ns_barrier")
    e("s_cmp_lg_u32 s30, 0\ns_cbranch_scc1 L_pc_nf")
    flag_store(e, "s54")
    e("L_pc_nf:")
    need("fw0")
    stamp(e, 5)
    emit(e, WL); adv()
    prepc()
    need("fw1")
    emit(e, WL + X0 + X1); adv()
    e("L_gc_ptop:")
    prepc()
    e("s_waitcnt vmcnt(12)\ns_barrier")
    need("fw2")
    if CPF & 4:
        e(f"s_xor_b32 s26, s36, {CPFC}\ns_or_b32 s26, s26, s30\ns_cmp_lg_u32 s26, 0\ns_cbranch_scc1 L_nct3")
        code_touch(e, (0, 1))
        e("L_nct3:")
    emit(e, WL + X0 + X1); adv()
    e("s_cmp_lt_u32 s36, 14\ns_cbranch_scc1 L_gc_ptop")
    e("s_waitcnt vmcnt(12)\ns_barrier\ns_waitcnt vmcnt(0)\ns_barrier")
    e("s_or_b32 s26, s2, s30\ns_cmp_lg_u32 s26, 0\ns_cbranch_scc1 L_pc_end")
    lane_flag_addr(e, 13, 64)
    e(f"s_mov_b32 s34, {FL_XR}")
    flag_wait_all(e, "fall", 13, "s34")
    e(f"s_mov_b32 s26, {FL_E}")
    flag_store(e, "s26")
    e("L_pc_end:")
    e.tr = False
    if TRACE:
        srd(e, 76, P_WS, WS_ST + (1 << 20), 1 << 22)
        e("s_lshl_b32 s75, s2, 3\ns_add_u32 s75, s75, s25\ns_lshl_b32 s75, s75, 10")
        e("v_lshlrev_b32 v4, 4, v2")
        e("buffer_store_dwordx4 v[40:43], v4, s[76:79], s75 offen")
    stamp_flush(e, "prod")
    e("s_endpgm")

FAKEB = 0
PFDELAY = 0
def spare(e):
    srd(e, 8, P_U, 0, D*D*2)
    srd(e, 12, P_X, 0, S*D*2)
    srd(e, 16, P_WS, WS_XR, SZ_XR)
    if HALF:
        e("s_mov_b32 s22, s20\ns_sub_u32 s24, s21, 28\ns_and_b32 s23, s22, 1\ns_lshl_b32 s26, s24, 1\ns_or_b32 s23, s23, s26")
    else:
        e("s_mov_b32 s22, s20\ns_sub_u32 s24, s21, 28\ns_add_u32 s23, s22, s24\ns_and_b32 s23, s23, 7")
    e("s_mov_b32 s53, 0")
    e("s_cmp_ge_u32 s25, 4\ns_cbranch_scc1 L_pb")
    if CPF & 1:
        e("s_cmp_lg_u32 s25, 0\ns_cbranch_scc1 L_nct1")
        code_touch(e)
        e("L_nct1:")
    e("s_lshr_b32 s30, s25, 1\ns_and_b32 s31, s25, 1")
    t_addr(e, "R", "s31", 16)
    e("v_lshrrev_b32 v5, 1, v4\nv_xor_b32 v5, v5, v3\nv_lshlrev_b32 v5, 4, v5")
    e(f"s_lshl_b32 s26, s30, 14\ns_add_u32 s26, s26, {UNIT}")
    e("v_lshlrev_b32 v6, 7, v4\nv_add3_u32 v20, v5, v6, s26\nv_xor_b32 v21, 64, v20")
    P = Phase(); P.F0, P.F1 = ACC + 128, ACC + 176
    P.addr = [(8+q, 16+q) for q in range(4)] + [(12, 20), (13, 21)]
    def reads(Fb, ks):
        out = []
        for a in range(4):
            for t in range(2):
                out.append(f"ds_read_b64_tr_b16 {vr(Fb+32+4*a+2*t,2)}, v{8+a} offset:{ks*8192 + t*1024}")
            for h in range(2):
                out.append(f"ds_read_b128 {vr(Fb+4*(2*a+h),4)}, v{12+ks} offset:{(2*a+h)*2048}")
        return out
    def mfmas(Fb):
        return [f"v_mfma_f32_16x16x32_bf16 {vr(ACC+16*a+4*b,4)}, {vr(Fb+32+4*b,4)}, {vr(Fb+4*a,4)}, {vr(ACC+16*a+4*b,4)}"
                for a, b in snake(8, 4)]
    P.reads, P.mfmas = reads, mfmas
    stamp(e, 1)
    e("L_bl:")
    zero(e, ACC, 128)
    consumer(e, "gb", P, 16, drain=True)
    e("s_lshl_b32 s40, s22, 5\ns_lshl_b32 s41, s23, 2\ns_add_u32 s40, s40, s41\ns_lshl_b32 s41, s31, 1\ns_add_u32 s40, s40, s41")
    e("s_lshl_b32 s40, s40, 14\ns_lshl_b32 s41, s30, 13\ns_add_u32 s40, s40, s41")
    e("s_add_u32 s41, s40, 4096\ns_add_u32 s42, s40, 16384\ns_add_u32 s43, s40, 20480")
    e("v_lshlrev_b32 v3, 4, v2")
    n = 0
    for u in range(2):
        for a in range(8):
            d = P.F0 + 4*n; n += 1
            pack_pair(e, d, ACC + 16*a + 4*(2*u), ACC + 16*a + 4*(2*u+1))
            e(f"buffer_store_dwordx4 {vr(d,4)}, v3, s[16:19], s{40+2*u+(a>>2)} offen offset:{(a&3)*1024} {STAUX}")
    e("s_xor_b32 s23, s23, 1\ns_add_u32 s53, s53, 1\ns_cmp_lt_u32 s53, 2\ns_cbranch_scc1 L_bl")
    stamp(e, 2)
    e("s_waitcnt vmcnt(0)\ns_barrier")
    stamp_flush(e, "bcons")
    e("s_endpgm")
    e("L_pb:")
    if PPRIO: e(f"s_setprio {PPRIO}")
    e("s_sub_u32 s30, s25, 4\ns_lshl_b32 s31, s30, 10\ns_lshl_b32 s32, s30, 12")
    t_voff(e, "R", 2048, None, 8)
    e("s_and_b32 s26, s30, 1\ns_lshl_b32 s26, s26, 2")
    e("v_or_b32 v5, s26, v3\nv_and_b32 v6, 7, v2\nv_xor_b32 v5, v5, v6\nv_lshlrev_b32 v5, 4, v5")
    e("s_lshl_b32 s26, s30, 3")
    e("v_lshrrev_b32 v6, 3, v2\nv_add_u32 v6, s26, v6\nv_lshlrev_b32 v6, 11, v6")
    e("v_add_u32 v9, v5, v6")
    def prep():
        e("s_and_b32 s34, s36, 15")
        chunk_of_pos(e, "s34", "s24", "s37", "s38", "s39", 16, LEAD)
        if BROT: e("s_lshl_b32 s38, s20, 1\ns_add_u32 s37, s37, s38\ns_and_b32 s37, s37, 15")
        e(f"s_lshr_b32 s38, s36, 4\ns_xor_b32 s38, s38, s23\ns_lshl_b32 s38, s38, 8\ns_lshl_b32 s45, s37, 17\ns_add_u32 s45, s45, s38")
        e(f"s_lshl_b32 s38, s22, 19\ns_lshl_b32 s46, s37, 7\ns_add_u32 s46, s46, s38")
    xl = []
    for u in range(2):
        for i in range(4):
            g = [f"s_add_u32 m0, s44, {(1+u)*UNIT + i*4096}"]
            g += [f"s_add_u32 s46, s46, {32*2048}" if (u or i) else "s_nop 0"]
            g.append("buffer_load_dwordx4 v9, s[12:15], s46 offen lds")
            xl.append(g)
    LD = t_loads(8, 8, "s45", 0, 2048) + xl
    def adv():
        for x in next_slot(): e(x)
        e("s_add_u32 s36, s36, 1")
    e(f"s_lshl_b32 s27, s22, 10\ns_lshl_b32 s26, s23, 7\ns_add_u32 s27, s27, s26\ns_add_u32 s27, s27, {FL_XR}")
    e("s_mov_b32 s36, 0")
    for _ in range(2):
        prep(); emit(e, LD); adv()
    make_tag(e)
    e("L_gb_ptop:")
    prep()
    e("s_waitcnt vmcnt(12)\ns_barrier")
    e("s_xor_b32 s26, s36, 19\ns_or_b32 s26, s26, s30\ns_cmp_lg_u32 s26, 0\ns_cbranch_scc1 L_pb_nf")
    flag_store(e, "s27")
    e("L_pb_nf:")
    if CPF & 2:
        e("s_xor_b32 s26, s36, 26\ns_or_b32 s26, s26, s30\ns_cmp_lg_u32 s26, 0\ns_cbranch_scc1 L_nct2")
        code_touch(e)
        e("L_nct2:")
    emit(e, LD); adv()
    e("s_cmp_lt_u32 s36, 32\ns_cbranch_scc1 L_gb_ptop")
    e("s_waitcnt vmcnt(12)\ns_barrier\ns_waitcnt vmcnt(0)\ns_barrier")
    e("s_barrier")
    e("s_cmp_lg_u32 s30, 0\ns_cbranch_scc1 L_pb_end")
    e("s_xor_b32 s27, s27, 128")
    flag_store(e, "s27")
    e("L_pb_end:")
    stamp_flush(e)
    e("s_endpgm")

def kernel(e):
    e(f".globl {NAME}\n.p2align 8\n.type {NAME},@function\n{NAME}:")
    if STAMP:
        for n in range(1, 8): e(f"s_mov_b64 s[{80+2*n}:{81+2*n}], 0")
    stamp(e, 0)
    e("s_load_dwordx16 s[60:75], s[0:1], 0")
    e("s_load_dwordx2 s[56:57], s[0:1], 64")
    e("s_cmp_ge_u32 s2, 256\ns_cbranch_scc1 L_end")
    e("s_and_b32 s20, s2, 7\ns_lshr_b32 s21, s2, 3")
    e("v_lshrrev_b32 v1, 6, v0\nv_and_b32 v2, 63, v0\ns_nop 0\nv_readfirstlane_b32 s25, v1")
    e("s_and_b32 s26, s21, 3\ns_lshl_b32 s22, s26, 1\ns_and_b32 s23, s20, 1\ns_add_u32 s22, s22, s23")
    e("s_lshr_b32 s23, s20, 1\ns_mul_i32 s23, s23, 7\ns_lshr_b32 s24, s21, 2\ns_add_u32 s23, s23, s24")
    e("s_add_u32 s24, s26, s23\ns_and_b32 s24, s24, 3")
    e("s_mov_b32 s33, 0")
    e(f"s_mov_b32 s26, {WS_FL + FL_E}")
    e("s_waitcnt lgkmcnt(0)")
    e("s_load_dwordx2 s[6:7], s[56:57], s26")
    srd(e, 48, P_WS, WS_FL, FL_BYTES)
    if CPF & 8:
        e("s_cmp_lg_u32 s25, 7\ns_cbranch_scc1 L_nct4")
        code_touch(e)
        e("L_nct4:")
    e("s_cmp_ge_u32 s21, 28\ns_cbranch_scc1 L_spare")
    dq_lanes(e)
    dq_loads(e, 0)
    dq_lanes2(e)
    e("s_cmp_ge_u32 s25, 4\ns_cbranch_scc1 L_mainp")
    main_consumer(e)
    e("L_mainp:")
    main_producer(e)
    e("L_spare:")
    spare(e)
    e("L_end:")
    e("s_endpgm")
    e("L_code_end:")
    e(f'.section .rodata,"a"\n.p2align 6\n.amdhsa_kernel {NAME}')
    e(f".amdhsa_next_free_vgpr 256\n.amdhsa_next_free_sgpr {102 if TRACE else 96}\n.amdhsa_accum_offset 256")
    e(".amdhsa_group_segment_fixed_size 0\n.amdhsa_kernarg_size 72\n.amdhsa_user_sgpr_count 2")
    e(".amdhsa_user_sgpr_kernarg_segment_ptr 1\n.amdhsa_system_sgpr_workgroup_id_x 1")
    e(".amdhsa_float_denorm_mode_32 3")
    e(".end_amdhsa_kernel")

HEADER = open("standalone__weight_only_int_quip__prompt.s.ref").read().split("; Override")[0]
ASLIST = False
DOC = """; y = (x @ U) @ (dequant(qw) @ V), one persistent launch, one workgroup per CU (generated by the author's own script).
;  - waves 0-3: LDS reads + MFMA, waves 4-7: LDS-DMA loads, one barrier per K64 stage, three LDS slots of 48 KB.
"""
def generate():
    e = Asm()
    out = HEADER
    if ASLIST:
        out += f"; @launch kernel={NAME} grid=(256,1,1) block=(512,1,1) lds={LDS_BYTES}\n"
    else:
        out += f"; @launch grid=(256,1,1) block=(512,1,1) lds={LDS_BYTES}\n"
    out += DOC
    e('.amdgcn_target "amdgcn-amd-amdhsa--gfx950"\n.text')
    kernel(e)
    return out + e.text()

if __name__ == "__main__":
    args = [a for a in sys.argv[1:] if not a.startswith("-")]
    for a in sys.argv[1:]:
        if a.startswith("-"):
            k, v = a[1:].split("=", 1)
            globals()[k] = eval(v)
    path = args[0] if args else "standalone__weight_only_int_quip__prompt.s"
    open(path, "w").write(generate())
    print("wrote", path)
```
